```python
import torch

def _softmax(x, axis=-1):
    return torch.softmax(x, dim=axis)
def _gelu(x):
    return torch.nn.functional.gelu(x, approximate="tanh")
def _silu(x):
    return torch.nn.functional.silu(x)
def _sigmoid(x):
    return torch.sigmoid(x)
def _layernorm(x, axis=-1, eps=1e-5):
    m = x.mean(dim=axis, keepdim=True)
    v = x.var(dim=axis, keepdim=True, unbiased=False)
    return (x - m) / torch.sqrt(v + eps)
def _scatter_add(tgt, idx, src, axis=0):
    return tgt.clone().index_add_(axis, idx, src)
def _segment_sum(src, seg, n):
    out = torch.zeros((n,) + src.shape[1:], dtype=src.dtype)
    return out.index_add_(0, seg, src)
def _pad(x, pw):
    flat = tuple(v for pair in reversed(pw) for v in pair)
    return torch.nn.functional.pad(x, flat)

kernel_name = 'interleave_layers__spectral_fnet__dense_activation_relu__prompt'

def setup_inputs():

    _w = (lambda a: (lambda t: t.to(torch.bfloat16) if t.is_floating_point() else t)(torch.as_tensor(a)))
    def _A_setup():
        B, S, D = 1, 2048, 640
        ns = torch.arange(S)[:, None] * torch.arange(S)[None, :]
        nd = torch.arange(D)[:, None] * torch.arange(D)[None, :]
        Ws_re = torch.cos(-2.0 * torch.pi * ns / S).to(float)
        Ws_im = torch.sin(-2.0 * torch.pi * ns / S).to(float)
        Wd_re = torch.cos(-2.0 * torch.pi * nd / D).to(float)
        Wd_im = torch.sin(-2.0 * torch.pi * nd / D).to(float)
        return {
            "x": _w((lambda *s: torch.randn(*s, dtype=torch.bfloat16) * 0.05)(B, S, D)),
            "dft_seq_re": _w(Ws_re),
            "dft_seq_im": _w(Ws_im),
            "dft_hid_re": _w(Wd_re),
            "dft_hid_im": _w(Wd_im),
        }
    _A_in = _A_setup()

    def _B_setup():
        B, S, D, Dff = 1, 2048, 640, 1536
        return {
            "x": _w((lambda *s: torch.randn(*s, dtype=torch.bfloat16) * 0.05)(B, S, D)),
            "w1": _w((lambda *s: torch.randn(*s, dtype=torch.bfloat16) * 1.6)(D, Dff)),
            "w2": _w((lambda *s: torch.randn(*s, dtype=torch.bfloat16) * 1.6)(Dff, D)),
        }
    _B_in = _B_setup()

    return {
        "A_x": _A_in["x"],
        "A_dft_seq_re": _A_in["dft_seq_re"],
        "A_dft_seq_im": _A_in["dft_seq_im"],
        "A_dft_hid_re": _A_in["dft_hid_re"],
        "A_dft_hid_im": _A_in["dft_hid_im"],
        "B_x": _B_in["x"],
        "B_w1": _B_in["w1"],
        "B_w2": _B_in["w2"],
    }

def reference(A_x, A_dft_seq_re, A_dft_seq_im, A_dft_hid_re, A_dft_hid_im, B_x, B_w1, B_w2):
    def _A_ref(x, dft_seq_re, dft_seq_im, dft_hid_re, dft_hid_im):
        a = torch.einsum("bsd,ed->bse", x, dft_hid_re)
        b = torch.einsum("bsd,ed->bse", x, dft_hid_im)
        y = torch.einsum("ts,bse->bte", dft_seq_re, a) - torch.einsum("ts,bse->bte", dft_seq_im, b)
        return y

    def _B_ref(x, w1, w2):
        h = torch.einsum("bsd,df->bsf", x, w1)
        zero = torch.zeros_like(h)
        h = torch.maximum(h, zero)
        return torch.einsum("bsf,fd->bsd", h, w2)

    x = A_x
    x = x + _A_ref(_layernorm(x, axis=-1), A_dft_seq_re, A_dft_seq_im, A_dft_hid_re, A_dft_hid_im)
    x = x + _B_ref(_layernorm(x, axis=-1), B_w1, B_w2)
    x = x + _A_ref(_layernorm(x, axis=-1), A_dft_seq_re, A_dft_seq_im, A_dft_hid_re, A_dft_hid_im)
    x = x + _B_ref(_layernorm(x, axis=-1), B_w1, B_w2)
    return x
```

```python
import sys, struct
import re
OPT = dict(stamps='', fast=1, pf=1, reuse=1, dbg=0, ns=11, na=8, nb=8, touch=0, p4s=11, nw2a=2, ks=8, dsc=1, outsc=0, hpre=10, xsc=0)
for a in sys.argv[1:]:
    k, v = a.split('='); OPT[k] = v if k == 'stamps' else int(v)
NAMES = []
f2h = lambda x: hex(struct.unpack('<I', struct.pack('<f', x))[0])
KB = 1024
FLAGC = 0
FLAGG = 32*KB
STAMP = 64*KB
S2B   = 256*KB
W1P   = 512*KB
W2P   = W1P + 1920*KB
XF2   = W2P + 1920*KB
LBASE = XF2 + 2560*KB
XTIN, XTMID, TT, HH, SS = 0, 2560*KB, 5120*KB, 7680*KB, 13824*KB
LSTR  = 14336*KB
TSTR = LSTR
if OPT['reuse']:
    XTIN, XTMID, TT, HH, SS, LSTR, TSTR = 0, 0, 2560*KB, 7680*KB, 13824*KB, 0, 2560*KB
WS_BYTES = 268435456
L_X = 0
L_RED = 80*KB
L_M1 = 140*KB
L_M2 = 148*KB
L_R = 156*KB
LDS2 = 157*KB
XFS = 528
L1_XF = 0
L1_M1 = 44*KB
L1_R = 52*KB
LDS1 = 53*KB

class Asm:
    def __init__(s, kn): s.l = []; s.vm = []; s.lg = []; s.nst = 0; s.kn = kn; s.pre = kn + '_'
    def __call__(s, t):
        for x in t.strip('\n').split('\n'): s.l.append('    ' + x.strip() if not x.strip().endswith(':') else x.strip())
    def vmop(s, t, tag): s(t); s.vm.append(tag)
    def lgop(s, t, tag): s(t); s.lg.append(tag)
    def waitvm(s, tag=None):
        n = 0
        if tag is not None:
            if tag not in s.vm: return
            idx = max(i for i, t in enumerate(s.vm) if t == tag); n = len(s.vm) - 1 - idx
        n = min(n, 63); s(f's_waitcnt vmcnt({n})'); s.vm = s.vm[len(s.vm)-n:] if n else []
    def waitlg(s, tag=None):
        n = 0
        if tag is not None:
            if tag not in s.lg: return
            idx = max(i for i, t in enumerate(s.lg) if t == tag); n = len(s.lg) - 1 - idx
        n = min(n, 15); s(f's_waitcnt lgkmcnt({n})'); s.lg = s.lg[len(s.lg)-n:] if n else []
    def stamp(s, name):
        name = s.pre + name
        if OPT['stamps'] and re.search(OPT['stamps'], name):
            s(f's_memrealtime s[{64+2*s.nst}:{65+2*s.nst}]'); NAMES.append(f'; @stamp {s.kn} {s.nst} {name}'); s.nst += 1; assert s.nst <= 16, name
    def note(s, name, reg):
        name = s.pre + name
        if OPT['stamps'] and re.search(OPT['stamps'], name):
            s(f's_mov_b32 s{64+2*s.nst}, {reg}'); NAMES.append(f'; @stamp {s.kn} {s.nst} {name}'); s.nst += 1; assert s.nst <= 16, name
    def dump_stamps(s, wsreg):
        if OPT['stamps']:
            s('s_waitcnt lgkmcnt(0)')
            s(f's_lshl_b32 s40, s2, 9\ns_lshl_b32 s41, {wsreg}, 6\ns_add_u32 s40, s40, s41\ns_add_u32 s40, s40, {STAMP + s.stamp_off}\nv_mov_b32 v14, s40')
            for i in range(s.nst):
                s(f'v_mov_b32 v15, s{64+2*i}\nbuffer_store_dword v15, v14, s[8:11], 0 offen offset:{4*i}')
    def dump_dbg(s):
        if OPT['dbg'] and s.kn == 'k2':
            s(f"""s_cmp_lg_u32 s2, 37
            s_cbranch_scc1 k2_nodbg
            s_cmp_lg_u32 s18, 0
            s_cbranch_scc1 k2_nodbg
            s_load_dwordx2 s[40:41], s[0:1], 72
            s_mov_b32 s44, s64
            s_mov_b32 s42, 256
            s_mov_b32 s43, 0x20000
            v_mov_b32 v14, 0
            s_waitcnt lgkmcnt(0)""")
            for i in range(1, s.nst):
                s(f's_sub_u32 s45, s{64+2*i}, s44\nv_mov_b32 v15, s45\nbuffer_store_dword v15, v14, s[40:43], 0 offen offset:{4*i}')
            s('k2_nodbg:')
    def text(s): return '\n'.join(s.l) + '\n'
vr = lambda a, n=4: f'v[{a}:{a+n-1}]'
ar = lambda a, n=4: f'a[{a}:{a+n-1}]'

def head(name): return f".globl {name}\n.p2align 8\n.type {name},@function\n{name}:\n"
def desc(name, nfv, acc):
    return f""".amdhsa_kernel {name}
  .amdhsa_next_free_vgpr {nfv}
  .amdhsa_next_free_sgpr 100
  .amdhsa_accum_offset {acc}
  .amdhsa_group_segment_fixed_size 0
  .amdhsa_kernarg_size 88
  .amdhsa_user_sgpr_count 2
  .amdhsa_user_sgpr_kernarg_segment_ptr 1
  .amdhsa_system_sgpr_workgroup_id_x 1
.end_amdhsa_kernel
"""
def ids(E):
    E("""s_and_b32 s16, s2, 7
    s_lshr_b32 s23, s2, 6
    s_lshl_b32 s23, s23, 3
    s_or_b32 s16, s16, s23
    s_lshr_b32 s17, s2, 3
    s_and_b32 s17, s17, 7
    s_lshr_b32 s19, s17, 2
    s_sub_u32 s20, 64, s16
    s_cmp_eq_u32 s16, 0
    s_cselect_b32 s20, 32, s20
    s_cmp_eq_u32 s19, 0
    s_cselect_b32 s20, s16, s20
    s_and_b32 s23, s17, 3
    s_mul_i32 s21, s23, 5
    s_add_u32 s21, s21, 1
    s_lshr_b32 s21, s21, 1
    s_and_b32 s23, s23, 1
    s_sub_u32 s22, 3, s23""")

def gen_G(E, sE):
    A, B, K2, F, PH = 176, 192, 208, 210, 211
    E(f"""s_lshl_b32 s23, {sE}, 5
    s_add_u32 s23, s23, 1
    v_and_b32 v{F}, 31, v0
    v_add_u32 v{F}, s23, v{F}
    v_cvt_f32_u32 v{F}, v{F}
    v_mul_f32 v{F}, {f2h(1/640)}, v{F}
    v_lshrrev_b32 v{PH}, 5, v0
    v_lshlrev_b32 v{PH}, 3, v{PH}
    v_add_u32 v{PH}, 1, v{PH}
    v_cvt_f32_u32 v{PH}, v{PH}
    v_mul_f32 v{PH}, v{PH}, v{F}
    v_mul_f32 v{PH+1}, {f2h(16.0)}, v{F}
    v_cos_f32 v{K2}, v{PH+1}
    v_add_f32 v{PH+2}, v{PH}, v{PH+1}
    v_add_f32 v{K2}, v{K2}, v{K2}""")
    for s in range(8):
        E(f"""v_cos_f32 v{A+2*s}, v{PH}
        v_sin_f32 v{A+2*s+1}, v{PH}
        v_cos_f32 v{B+2*s}, v{PH+2}
        v_sin_f32 v{B+2*s+1}, v{PH+2}""")
        if s < 7: E(f"v_add_f32 v{PH}, v{PH}, v{F}\nv_add_f32 v{PH+2}, v{PH+2}, v{F}")
    E(f"v_mov_b32 v{K2+1}, v{K2}")
    def pack(k, S):
        for u in range(4):
            E(f"v_cvt_pk_bf16_f32 v{16+8*k+u}, v{S+4*u}, v{S+4*u+2}\nv_cvt_pk_bf16_f32 v{20+8*k+u}, v{S+4*u+1}, v{S+4*u+3}")
    pack(0, A); pack(1, B)
    for k in range(2, 20):
        for s in range(8):
            E(f"v_pk_fma_f32 v[{A+2*s}:{A+2*s+1}], v[{B+2*s}:{B+2*s+1}], v[{K2}:{K2+1}], v[{A+2*s}:{A+2*s+1}] neg_lo:[0,0,1] neg_hi:[0,0,1]")
        pack(k, A); A, B = B, A

def gen_M1(E, sw, lbase, t0):
    E(f"""v_and_b32 v{t0+1}, 15, v0
    v_bfe_u32 v{t0}, v0, 4, 1
    s_lshr_b32 s23, {sw}, 1
    v_add_u32 v{t0}, s23, v{t0}
    v_lshlrev_b32 v{t0}, 3, v{t0}
    v_lshrrev_b32 v{t0+2}, 5, v0
    v_lshlrev_b32 v{t0+2}, 2, v{t0+2}
    s_and_b32 s23, {sw}, 1
    s_lshl_b32 s23, s23, 4
    v_add_u32 v{t0+2}, s23, v{t0+2}
    s_lshl_b32 s23, {sw}, 10
    s_add_u32 s23, s23, {lbase}
    v_lshl_add_u32 v{t0+3}, v0, 4, s23""")
    for mt in range(2):
        for s in range(8):
            E(f"""v_add_u32 v{t0+4}, {8*(s>>2)+(s&3)}, v{t0+2}
            v_mad_u32_u24 v{t0+4}, v{t0+4}, v{t0+1}, v{t0}
            v_and_b32 v{t0+4}, 31, v{t0+4}
            v_cvt_f32_u32 v{t0+4}, v{t0+4}
            v_mul_f32 v{t0+4}, {f2h(1/32)}, v{t0+4}
            v_cos_f32 v{t0+8+s}, v{t0+4}""")
        E("s_nop 0")
        for u in range(4): E(f"v_cvt_pk_bf16_f32 v{t0+8+u}, v{t0+8+2*u}, v{t0+9+2*u}")
        E(f"ds_write_b128 v{t0+3}, {vr(t0+8)} offset:{mt*4096}")
        if mt == 0: E(f"v_add_u32 v{t0+1}, 16, v{t0+1}\ns_nop 0")

def dft_unit(E, lx, ps, lm1, vR, sT, stf, mid=None):
    AC, AS, AB, R, Z = 176, 192, 208, 224, 240
    E(f"""v_and_b32 v14, 31, v0
    v_lshlrev_b32 v14, 4, v14
    v_lshrrev_b32 v15, 5, v0
    v_mul_u32_u24 v13, {ps}, v15
    v_add_u32 v14, v14, v13""")
    def rd(k):
        b = AB + 8*(k & 1)
        E.lgop(f"ds_read_b128 {vr(b)}, v14 offset:{lx + 2*k*ps}", ('A', k))
        E.lgop(f"ds_read_b128 {vr(b+4)}, v14 offset:{lx + (40+2*k)*ps}", ('A', k))
    rd(0); rd(1)
    E(f"""v_mov_b32 v{Z}, 0
    v_mov_b32 v{Z+1}, 0
    v_mov_b32 v{Z+2}, 0
    v_mul_u32_u24 v{Z+3}, 0x3f8000, v15
    v_lshlrev_b32 v{Z+3}, 8, v{Z+3}""")
    for k in range(20):
        b = AB + 8*(k & 1)
        E.waitlg(('A', k))
        c0 = '0' if k == 0 else vr(AC, 16); c1 = '0' if k == 0 else vr(AS, 16)
        E(f"v_mfma_f32_32x32x16_bf16 {vr(AC,16)}, {vr(b)}, {vr(16+8*k)}, {c0}")
        E(f"v_mfma_f32_32x32x16_bf16 {vr(AS,16)}, {vr(b+4)}, {vr(20+8*k)}, {c1}")
        if k == 19: E(f"v_mfma_f32_32x32x16_bf16 {vr(AC,16)}, {vr(b+4)}, {vr(Z)}, {vr(AC,16)}")
        if k + 2 < 20: rd(k+2)
        if k == 17:
            for g4 in range(4): E.lgop(f"ds_read_b128 {vr(R+4*g4)}, {vR} offset:{32*g4}", 'R')
    m1reg = lambda i: (160 + 4*i) if i < 4 else (208 + 4*(i-4))
    E(f"v_lshlrev_b32 v13, 4, v0\nv_add_u32 v13, {lm1}, v13")
    for i in range(4): E.lgop(f"ds_read_b128 {vr(m1reg(i))}, v13 offset:{1024*i}", 'M1')
    if mid: mid()
    E("s_nop 7")
    for i in range(4, 8): E.lgop(f"ds_read_b128 {vr(m1reg(i))}, v13 offset:{1024*i}", 'M1')
    E.waitlg('R')
    for p in range(8): E(f"v_pk_mul_f32 {vr(AS+2*p,2)}, {vr(AS+2*p,2)}, {vr(R+2*p,2)}")
    for p in range(8): E(f"v_cvt_pk_bf16_f32 v{Z+8+p}, v{AS+2*p}, v{AS+2*p+1}")
    for p in range(8): E(f"v_pk_mul_f32 {vr(AC+2*p,2)}, {vr(AC+2*p,2)}, {vr(R+2*p,2)}")
    for p in range(8): E(f"v_cvt_pk_bf16_f32 v{Z+p}, v{AC+2*p}, v{AC+2*p+1}")
    E.waitlg()
    E(f"""v_and_b32 v14, 15, v0
    v_mul_u32_u24 v14, 81920, v14
    v_bfe_u32 v13, v0, 4, 1
    v_lshl_add_u32 v14, v13, 5, v14
    v_lshl_add_u32 v14, v15, 4, v14""")
    for mt in range(2):
        D = AS if mt == 0 else AC
        for ks in range(4):
            E(f"v_mfma_f32_32x32x16_bf16 {vr(D,16)}, {vr(Z+4*ks)}, {vr(m1reg(4*mt+ks))}, {'0' if ks == 0 else vr(D,16)}")
    E(f"s_add_u32 s23, {sT}, {16*81920}")
    for mt in range(2):
        D = AS if mt == 0 else AC
        E("s_nop 6" if mt == 0 else "s_nop 0")
        for r in range(8): E(f"v_permlane16_swap_b32 v{D+r}, v{D+8+r}")
        for r in range(8):
            E(f"v_cvt_pk_bf16_f32 v{R+8*mt+r}, v{D+r}, v{D+8+r}")
            if r & 3 == 3: E.vmop(f"buffer_store_dwordx4 {vr(R+8*mt+r-3)}, v14, s[8:11], {sT if mt == 0 else 's23'} offen offset:{16*(r-3)} {stf}", 'Tst')

SPIN = 200000
KN = "interleave_layers__spectral_fnet__dense_activation_relu__prompt_kernel"
def kern():
    DS = 'sc1' if OPT['dsc'] else ''
    OOL = []
    E = Asm('k2'); E.stamp_off = 0
    uid = [0]
    def lab(p): uid[0] += 1; return f"k2_{p}{uid[0]}"
    NS = OPT['ns']; NW2 = OPT['nw2a']; KS = OPT['ks']; assert KS - NW2 <= 7
    E("""s_cmp_ge_u32 s2, 256
    s_cbranch_scc1 k2_done""")
    E.stamp('start')
    E(f"""s_load_dwordx2 s[4:5], s[0:1], 0
    s_load_dwordx4 s[60:63], s[0:1], 48
    s_load_dwordx2 s[12:13], s[0:1], 64
    s_load_dwordx2 s[52:53], s[0:1], 72
    s_load_dwordx2 s[8:9], s[0:1], 80
    s_memrealtime s[46:47]
    v_lshrrev_b32 v1, 6, v0
    s_mov_b32 s6, {2048*1280}
    s_mov_b32 s7, 0x20000
    v_readfirstlane_b32 s18, v1
    s_mov_b32 s10, {WS_BYTES}
    s_mov_b32 s11, 0x20000
    s_mov_b32 s14, {2048*1280}
    s_mov_b32 s15, 0x20000
    s_mov_b32 s54, 256
    s_mov_b32 s55, 0x20000""")
    ids(E)
    E(f"""v_lshrrev_b32 v1, 3, v0
    v_and_b32 v2, 7, v0
    v_lshlrev_b32 v3, 6, v1
    v_add_u32 v3, s20, v3
    v_mul_u32_u24 v3, 1280, v3
    v_lshl_add_u32 v4, v2, 4, v3
    v_add_u32 v4, 2, v4
    v_lshlrev_b32 v5, 4, v2
    v_sub_u32 v5, v3, v5
    v_add_u32 v5, {1264-512}, v5
    v_mov_b32 v10, 0
    s_waitcnt lgkmcnt(0)""")
    LD = 216
    for k in range(5):
        E.vmop(f"buffer_load_dwordx4 {vr(LD+8*k)}, v4, s[4:7], 0 offen offset:{128*k}", ('x', k))
        E.vmop(f"buffer_load_dwordx4 {vr(LD+8*k+4)}, v5, s[4:7], 0 offen offset:{128*(4-k)}", ('x', k))
    E.vmop("buffer_load_ushort v12, v3, s[4:7], 0 offen", ('x', 4))
    E(f"""s_lshl_b32 s56, s2, 2
    s_add_u32 s56, s56, s18
    s_cmp_lg_u32 s56, 0
    s_cbranch_scc1 k2_non
    s_or_b32 s46, s46, 1
    v_mov_b32 v11, s46
    s_mov_b64 exec, 1
    buffer_store_dword v11, v10, s[52:55], 0 offen sc1
    s_mov_b64 exec, -1
    k2_non:
    v_mul_u32_u24 v6, {XFS}, v2
    v_lshl_add_u32 v6, v1, 4, v6
    v_cmp_eq_u32 s[30:31], 7, v2
    v_lshlrev_b32 v8, 2, v1
    v_and_b32 v0, 63, v0
    s_add_u32 s21, s21, s18
    v_and_b32 v1, 15, v0
    v_lshrrev_b32 v2, 4, v0
    v_lshlrev_b32 v3, 4, v0
    s_mov_b32 s51, 0x20000
    s_cmp_ge_u32 s56, 480
    s_cbranch_scc1 k2_pk2""")
    E(f"""s_mov_b32 s48, s60
    s_mov_b32 s49, s61
    s_mov_b32 s50, {640*3072}
    s_mul_i32 s57, s56, 2731
    s_lshr_b32 s57, s57, 16
    s_mul_i32 s58, s57, 24
    s_sub_u32 s58, s56, s58
    s_cmp_ge_u32 s57, 10
    s_cselect_b32 s33, 10, 0
    s_sub_u32 s33, s57, s33
    s_lshl_b32 s33, s33, 5
    v_lshl_add_u32 v4, v2, 3, s33
    v_add_u32 v5, 1, v4
    v_sub_u32 v7, 632, v4
    s_cmp_ge_u32 s57, 10
    s_cselect_b64 s[34:35], -1, 0
    s_cselect_b32 s36, 7, 0
    v_cndmask_b32 v5, v5, v7, s[34:35]
    v_mul_u32_u24 v5, 3072, v5
    s_lshl_b32 s33, s58, 7
    v_lshl_add_u32 v7, v1, 3, s33
    v_add_u32 v5, v5, v7
    v_cmp_eq_u32 vcc, 312, v4
    s_and_b64 vcc, vcc, s[34:35]
    s_nop 1
    v_cndmask_b32 v7, v5, v7, vcc""")
    for s in range(8):
        E(f"s_xor_b32 s37, s36, {s}\ns_mul_i32 s37, s37, 3072\nbuffer_load_dwordx2 {ar(2*s,2)}, {'v7' if s == 7 else 'v5'}, s[48:51], s37 offen")
    E(f"""s_branch k2_pkm
    k2_pk2:
    s_cmp_ge_u32 s56, 864
    s_cbranch_scc1 k2_pkm
    s_mov_b32 s48, s62
    s_mov_b32 s49, s63
    s_mov_b32 s50, {1536*1280}
    s_sub_u32 s57, s56, 480
    s_and_b32 s58, s57, 7
    s_lshr_b32 s57, s57, 3
    s_mul_i32 s33, s57, 43
    s_lshr_b32 s33, s33, 8
    s_mul_i32 s32, s33, 6
    s_sub_u32 s32, s57, s32
    s_mul_i32 s33, s33, 12
    s_mul_i32 s34, s32, 3
    s_add_u32 s34, s34, s33
    s_mul_i32 s35, s32, 6
    s_add_u32 s35, s35, s33
    s_sub_u32 s35, s35, 22
    v_lshrrev_b32 v4, 1, v2
    v_mul_u32_u24 v4, 3, v4
    v_add_u32 v4, s35, v4
    v_and_b32 v5, 1, v2
    s_and_b32 s36, s34, 3
    s_cmp_eq_u32 s36, 3
    s_cselect_b32 s36, 61, 1
    s_cmp_ge_u32 s32, 4
    s_cselect_b32 s36, 32, s36
    s_cselect_b64 vcc, -1, 0
    v_mov_b32 v7, s34
    v_cndmask_b32 v4, v7, v4, vcc
    v_cndmask_b32 v5, v2, v5, vcc
    v_lshrrev_b32 v7, 2, v4
    v_and_b32 v4, 3, v4
    v_lshl_add_u32 v4, v7, 6, v4
    v_lshl_add_u32 v4, v5, 4, v4
    v_mul_u32_u24 v4, 1280, v4
    s_mul_i32 s36, s36, 1280
    s_mul_i32 s33, s58, 80
    s_add_u32 s34, s33, 2
    v_lshl_add_u32 v5, v1, 2, s34
    v_add_u32 v5, v5, v4
    s_sub_u32 s34, 1276, s33
    v_lshlrev_b32 v7, 2, v1
    v_sub_u32 v7, s34, v7
    v_add_u32 v7, v7, v4
    v_lshrrev_b32 v9, 2, v1
    v_and_b32 v13, 1, v1
    v_lshl_add_u32 v9, v9, 1, v13
    s_mul_i32 s33, s58, 40
    s_add_u32 s33, s33, 32
    v_add_u32 v9, s33, v9
    v_add_u32 v13, 1, v9
    v_cmp_eq_u32 vcc, 319, v9
    v_sub_u32 v9, 639, v9
    v_and_b32 v14, 2, v1
    v_cndmask_b32 v9, v9, 0, vcc
    v_cmp_eq_u32 vcc, 0, v14
    s_nop 1
    v_cndmask_b32 v9, v9, v13, vcc
    v_lshl_add_u32 v9, v9, 1, v4""")
    for s in range(8):
        E(f"""s_mul_i32 s37, s36, {s>>2}
        s_add_u32 s37, s37, {(s&3)*4*1280}
        buffer_load_dword a{s}, v5, s[48:51], s37 offen
        buffer_load_dword a{8+s}, v7, s[48:51], s37 offen
        buffer_load_ushort a{16+s}, v9, s[48:51], s37 offen""")
    E("k2_pkm:")
    E(f"""s_lshl_b32 s45, s2, 7
    s_lshl_b32 s23, s18, 2
    s_add_u32 s45, s45, s23
    v_mov_b32 v13, s45
    s_mov_b32 s23, {FLAGG}
    s_mov_b64 exec, 1
    buffer_store_dword v10, v13, s[8:11], 0 offen offset:{FLAGC}
    buffer_store_dword v10, v13, s[8:11], s23 offen sc1
    s_mov_b64 exec, -1
    buffer_load_dword v11, v10, s[52:55], 0 offen sc1
    s_cmp_lg_u32 s18, 3
    s_cbranch_scc1 k2_nw3""")
    if OPT['pf']:
        E(f"""s_getpc_b64 s[40:41]
        k2_pc:
        s_sub_u32 s40, s40, k2_pc-{KN}
        s_subb_u32 s41, s41, 0
        s_mov_b32 s42, k2_end-{KN}
        s_mov_b32 s43, 0x20000
        s_lshr_b32 s23, s2, 3
        s_lshl_b32 s23, s23, 10
        v_add_u32 v14, s23, v3
        v_add_u32 v15, 0x8000, v14
        buffer_load_dwordx4 v[16:19], v14, s[40:43], 0 offen
        buffer_load_dwordx4 v[16:19], v15, s[40:43], 0 offen""")
    E("s_mov_b32 s38, 0\nk2_m1l:")
    gen_M1(E, 's38', L_M1, 176)
    E("s_add_u32 s38, s38, 1\ns_cmp_lt_u32 s38, 4\ns_cbranch_scc1 k2_m1l\nk2_nw3:\ns_cmp_ge_u32 s18, s22\ns_cbranch_scc1 k2_nog")
    gen_G(E, 's21')
    E("k2_nog:"); E.stamp('gen')
    E(f"""s_waitcnt vmcnt(0)
    v_readfirstlane_b32 s46, v11
    s_mov_b32 s32, 0x05040100
    s_mov_b32 s33, 0x07060302
    s_cmp_eq_u32 s46, 0
    s_cbranch_scc1 k2_nonw
    k2_nonb:""")
    E.vm = []
    OOL.append(f"""k2_nonw:
    s_mov_b32 s38, 0
    k2_nonl:
    buffer_load_dword v11, v10, s[52:55], 0 offen sc1
    s_add_u32 s38, s38, 1
    s_cmp_gt_u32 s38, {SPIN}
    s_cbranch_scc1 k2_nonb
    s_waitcnt vmcnt(0)
    v_readfirstlane_b32 s46, v11
    s_nop 0
    s_cmp_eq_u32 s46, 0
    s_cbranch_scc1 k2_nonl
    s_branch k2_nonb""")
    E.stamp('x0')
    E("s_cmp_ge_u32 s56, 864\ns_cbranch_scc1 k2_pkd")
    A0, P0 = 176, 200
    for i in range(16): E(f"v_accvgpr_read_b32 v{A0+i}, a{i}")
    E("s_cmp_ge_u32 s56, 480\ns_cbranch_scc1 k2_st2")
    for u in range(4):
        for v in range(4): E(f"v_perm_b32 v{P0+4*u+v}, v{A0+4*v+2+(u>>1)}, v{A0+4*v+(u>>1)}, s{32+(u&1)}")
        E(f"""s_lshl_b32 s34, s58, 2
        s_add_u32 s34, s34, {u}
        s_mul_i32 s35, s34, 171
        s_lshr_b32 s35, s35, 9
        s_mul_i32 s36, s35, 57
        s_add_u32 s36, s36, s34
        s_mul_i32 s37, s57, 3
        s_add_u32 s36, s36, s37
        s_lshl_b32 s36, s36, 10
        s_add_u32 s36, s36, {W1P}
        buffer_store_dwordx4 {vr(P0+4*u)}, v3, s[8:11], s36 offen sc1""")
    E(f"""s_nop 0
    s_branch k2_pkd
    k2_st2:
    s_mul_i32 s34, s58, 48
    s_add_u32 s34, s34, s57
    s_mul_i32 s34, s34, 5120
    s_add_u32 s34, s34, {W2P}
    s_add_u32 s35, s34, 4096""")
    for i in range(8): E(f"v_accvgpr_read_b32 v{A0+16+i}, a{16+i}")
    for t in range(4):
        for v in range(4): E(f"v_perm_b32 v{P0+4*t+v}, v{A0+8*(t>>1)+2*v+1}, v{A0+8*(t>>1)+2*v}, s{32+((t&1)^(t>>1))}")
        E(f"buffer_store_dwordx4 {vr(P0+4*t)}, v3, s[8:11], s34 offen offset:{1024*t} sc1")
    for v in range(4): E(f"v_perm_b32 v{A0+v}, v{A0+16+2*v+1}, v{A0+16+2*v}, s32")
    E(f"buffer_store_dwordx4 {vr(A0)}, v3, s[8:11], s35 offen sc1\ns_nop 0\nk2_pkd:")
    LO, HI, EE, OO, SM, SQ = 180, 188, 196, 204, 212, 214
    E(f"v_mov_b32 v{SM}, 0\nv_mov_b32 v{SM+1}, 0\nv_mov_b32 v{SQ}, 0\nv_mov_b32 v{SQ+1}, 0")
    for k in range(5):
        lo, hi = LD+8*k, LD+8*k+4
        for u in range(4):
            E(f"""v_lshlrev_b32 v{LO+2*u}, 16, v{lo+u}
            v_and_b32 v{LO+2*u+1}, 0xffff0000, v{lo+u}
            v_and_b32 v{HI+2*u}, 0xffff0000, v{hi+3-u}
            v_lshlrev_b32 v{HI+2*u+1}, 16, v{hi+3-u}""")
        if k == 4:
            E(f"v_lshlrev_b32 v12, 16, v12\nv_cndmask_b32 v{HI+7}, v{HI+7}, v12, s[30:31]")
        for u in range(4):
            E(f"""v_pk_add_f32 {vr(EE+2*u,2)}, {vr(LO+2*u,2)}, {vr(HI+2*u,2)}
            v_pk_add_f32 {vr(OO+2*u,2)}, {vr(LO+2*u,2)}, {vr(HI+2*u,2)} neg_lo:[0,1] neg_hi:[0,1]
            v_pk_fma_f32 {vr(SQ,2)}, {vr(LO+2*u,2)}, {vr(LO+2*u,2)}, {vr(SQ,2)}
            v_pk_add_f32 {vr(SM,2)}, {vr(SM,2)}, {vr(EE+2*u,2)}
            v_pk_fma_f32 {vr(SQ,2)}, {vr(HI+2*u,2)}, {vr(HI+2*u,2)}, {vr(SQ,2)}""")
        if k == 4:
            E(f"v_cndmask_b32 v{EE+7}, v{EE+7}, v{LO+7}, s[30:31]\nv_cndmask_b32 v{OO+7}, v{OO+7}, v{HI+7}, s[30:31]")
        for u in range(4): E(f"v_cvt_pk_bf16_f32 v{EE+u}, v{EE+2*u}, v{EE+2*u+1}")
        for u in range(4): E(f"v_cvt_pk_bf16_f32 v{OO+u}, v{OO+2*u}, v{OO+2*u+1}")
        E(f"ds_write_b128 v6, {vr(EE)} offset:{L_X + 8*k*XFS}\nds_write_b128 v6, {vr(OO)} offset:{L_X + (40+8*k)*XFS}")
    E(f"""v_add_f32 v{SM}, v{SM}, v{SM+1}
    v_add_f32 v{SQ}, v{SQ}, v{SQ+1}
    v_add_u32 v8, {L_R}, v8
    s_nop 0""")
    for d in ["quad_perm:[1,0,3,2]", "quad_perm:[2,3,0,1]", "row_half_mirror"]:
        E(f"""v_add_f32_dpp v{SM}, v{SM}, v{SM} {d} row_mask:0xf bank_mask:0xf
        v_add_f32_dpp v{SQ}, v{SQ}, v{SQ} {d} row_mask:0xf bank_mask:0xf
        s_nop 1""")
    E(f"""v_mul_f32 v{SM}, {f2h(1/640)}, v{SM}
    v_mul_f32 v{SQ}, {f2h(1/640)}, v{SQ}
    v_fma_f32 v{SQ}, -v{SM}, v{SM}, v{SQ}
    v_max_f32 v{SQ}, 0, v{SQ}
    v_add_f32 v{SQ}, {f2h(1e-5)}, v{SQ}
    v_rsq_f32 v{SQ}, v{SQ}
    v_lshrrev_b32 v9, 5, v0
    ds_write_b32 v8, v{SQ}
    v_lshlrev_b32 v9, 4, v9
    v_add_u32 v9, {L_R}, v9""")
    E.stamp('ln')
    E("s_waitcnt vmcnt(0) lgkmcnt(0)\ns_barrier")
    E.stamp('bar')

    def setup():
        E(f"""s_mul_i32 s24, s16, 81920
        s_and_b32 s25, s20, 31
        s_mul_i32 s25, s25, 10
        s_add_u32 s25, s25, s21
        s_lshl_b32 s25, s25, 13
        s_getreg_b32 s26, hwreg(HW_REG_XCC_ID)
        s_and_b32 s26, s26, 15
        s_add_u32 s26, s26, 16
        s_add_u32 s26, s26, s46
        s_mul_i32 s28, s16, 196608
        s_mul_i32 s29, s17, 5
        s_lshr_b32 s29, s29, 1
        s_mul_i32 s30, s17, 3
        s_lshr_b32 s30, s30, 1
        s_lshl_b32 s39, s17, 2
        s_add_u32 s39, s39, s18
        s_mul_i32 s44, s39, {60*KB}
        s_add_u32 s39, s44, {W1P}
        s_add_u32 s44, s44, {W2P}
        v_lshlrev_b32 v1, 4, v0
        v_and_b32 v14, 31, v0
        v_lshrrev_b32 v15, 5, v0
        v_and_b32 v2, 3, v14
        v_bfe_u32 v3, v14, 2, 1
        v_lshl_add_u32 v2, v3, 4, v2
        v_bfe_u32 v3, v14, 3, 2
        v_lshl_add_u32 v2, v3, 2, v2
        v_lshlrev_b32 v2, 2, v2
        v_lshl_add_u32 v2, v15, 9, v2
        s_lshl_b32 s23, s19, 5
        v_add_u32 v5, s23, v14
        v_sub_u32 v6, 63, v5
        v_sub_u32 v7, 32, v14
        v_and_b32 v7, 31, v7
        v_sub_u32 v8, 95, v5
        s_cmp_eq_u32 s19, 0
        s_cselect_b64 s[36:37], -1, 0
        v_cndmask_b32 v7, v8, v7, s[36:37]
        s_cmp_eq_u32 s16, 0
        s_cselect_b64 s[36:37], -1, 0
        v_cndmask_b32 v6, v6, v7, s[36:37]
        v_lshrrev_b32 v3, 4, v5
        v_lshlrev_b32 v3, 10, v3
        v_and_b32 v7, 15, v5
        v_lshl_add_u32 v3, v7, 4, v3
        v_lshl_add_u32 v3, v15, 8, v3
        v_lshrrev_b32 v4, 4, v6
        v_lshlrev_b32 v4, 10, v4
        v_and_b32 v7, 15, v6
        v_lshl_add_u32 v4, v7, 4, v4
        v_lshl_add_u32 v4, v15, 8, v4
        v_mov_b32 v9, v6
        v_add_u32 v6, 640, v6
        v_cmp_eq_u32 vcc, 0, v15
        s_and_b32 s23, s2, 0xc7
        v_and_b32 v12, 7, v0
        v_cndmask_b32 v5, v6, v5, vcc
        v_lshlrev_b32 v5, 3, v5
        v_lshl_add_u32 v12, v12, 3, s23
        v_lshlrev_b32 v12, 7, v12
        v_and_b32 v13, 7, v14
        v_lshrrev_b32 v7, 3, v14
        v_lshl_add_u32 v13, v7, 6, v13
        v_lshl_add_u32 v13, v15, 5, v13
        s_and_b32 s23, s17, 3
        s_lshl_b32 s23, s23, 3
        v_add_u32 v13, s23, v13
        v_lshlrev_b32 v13, 7, v13
        v_add_u32 v13, {FLAGG}, v13
        v_lshrrev_b32 v7, 4, v0
        v_and_b32 v8, 15, v0
        v_and_b32 v6, 1, v7
        s_and_b32 s23, s18, 1
        s_lshl_b32 s23, s23, 1
        v_add_u32 v6, s23, v6
        v_lshlrev_b32 v6, 8, v6
        v_lshl_add_u32 v6, v8, 4, v6
        v_lshl_add_u32 v6, v15, 10, v6""")
    def gen_M2():
        E(f"""v_and_b32 v224, 31, v0
        v_lshlrev_b32 v224, 6, v224
        v_add_u32 v224, s20, v224
        s_lshl_b32 s23, s18, 4
        v_lshrrev_b32 v225, 5, v0
        v_lshl_add_u32 v225, v225, 2, s23
        v_mul_u32_u24 v225, v225, v224
        s_lshl_b32 s23, s18, 11
        s_add_u32 s23, s23, {L_M2}
        v_add_u32 v226, s23, v1""")
        for kk in range(2):
            for u in range(4):
                E(f"""v_and_b32 v227, 2047, v225
                v_cvt_f32_u32 v227, v227
                v_mul_f32 v227, {f2h(1/2048)}, v227
                v_cos_f32 v228, v227
                v_sin_f32 v229, v227
                v_add_u32 v225, v225, v224
                v_cvt_pk_bf16_f32 v{232+4*kk+u}, v228, v229""")
            if kk == 0: E("v_lshl_add_u32 v225, v224, 2, v225")
            E(f"ds_write_b128 v226, {vr(232+4*kk)} offset:{1024*kk}")
    def res_loads(L):
        l = lab('nor'); E(f"s_cmp_ge_u32 s18, s22\ns_cbranch_scc1 {l}")
        E("s_lshl_b32 s33, s21, 12\ns_add_u32 s33, s33, s24")
        if L == 0:
            E(f"""s_sub_u32 s23, 64, s16
            s_cmp_eq_u32 s16, 0
            s_cselect_b32 s23, 32, s23
            v_mov_b32 v7, s23
            v_mov_b32 v8, s16
            v_cmp_gt_u32 vcc, 32, v9
            v_and_b32 v9, 31, v9
            v_and_b32 v10, 31, v0
            v_cndmask_b32 v7, v7, v8, vcc
            v_lshl_add_u32 v9, v9, 6, v7
            v_mul_u32_u24 v9, 1280, v9
            v_lshl_add_u32 v10, v10, 6, s20
            v_mul_u32_u24 v10, 1280, v10
            v_lshrrev_b32 v7, 5, v0
            v_lshlrev_b32 v7, 4, v7
            s_lshl_b32 s23, s21, 6
            s_add_u32 s38, s23, 2
            v_add3_u32 v10, v10, v7, s38
            s_sub_u32 s38, 1232, s23
            v_sub_u32 v7, s38, v7
            v_add_u32 v7, v7, v9""")
            for rh in range(2): E.vmop(f"buffer_load_dwordx4 {vr(192+4*rh)}, v10, s[4:7], 0 offen offset:{32*rh}", 'res')
            for rh in range(2): E.vmop(f"buffer_load_dwordx4 {vr(200+4*rh)}, v7, s[4:7], 0 offen offset:{32*(1-rh)}", 'res')
            E.vmop("buffer_load_ushort v8, v9, s[4:7], 0 offen", 'res')
        else:
            E(f"s_add_u32 s34, s33, {LBASE+LSTR+XTIN}\ns_add_u32 s35, s34, 40960")
            for rh in range(2): E.vmop(f"buffer_load_dwordx4 {vr(192+4*rh)}, v3, s[8:11], s34 offen offset:{512*rh} {DS}", 'res')
            for rh in range(2): E.vmop(f"buffer_load_dwordx4 {vr(200+4*rh)}, v4, s[8:11], s35 offen offset:{512*rh} {DS}", 'res')
        E(f"{l}:")
    def t_loads(L):
        E(f"s_add_u32 s31, s25, {LBASE+TT+L*TSTR}\ns_add_u32 s32, s31, 4096")
        for k in range(8):
            for u in range(4):
                E.vmop(f"buffer_load_dword v{160+4*k+u}, v2, s[8:11], s{31 if k < 4 else 32} offen offset:{(k%4)*1024+u*128} sc1", ('T', k))
    def w1_loads(p0, p1, tagp='W1'):
        for p in range(p0, p1):
            E(f"s_add_u32 s23, s29, {p}\ns_cmp_ge_u32 s23, 20\ns_cselect_b32 s38, 20, 0\ns_sub_u32 s23, s23, s38\ns_mul_i32 s23, s23, 3072\ns_add_u32 s23, s23, s39")
            for t in range(3):
                E.vmop(f"buffer_load_dwordx4 {vr(16+12*(p%12)+4*t)}, v1, s[8:11], s23 offen offset:{1024*t}", (tagp, p))
    def w2_loads(kk):
        E(f"s_add_u32 s23, s30, {kk}\ns_cmp_ge_u32 s23, 12\ns_cselect_b32 s38, 12, 0\ns_sub_u32 s23, s23, s38\ns_mul_i32 s23, s23, 5120\ns_add_u32 s23, s23, s44\ns_add_u32 s38, s23, 4096")
        for t in range(5):
            E.vmop(f"buffer_load_dwordx4 {ar(20*kk+4*t)}, v1, s[8:11], {'s23' if t < 4 else 's38'} offen offset:{1024*(t%4)}", 'W2')
    def gflag(val):
        E(f"""s_add_u32 s23, s46, {val}
        v_mov_b32 v15, s23
        v_mov_b32 v14, s45
        s_mov_b32 s23, {FLAGG}
        s_mov_b64 exec, 1
        buffer_store_dword v15, v14, s[8:11], s23 offen sc1
        s_mov_b64 exec, -1""")
    def spin(loads, n, val, t=252):
        l = lab('poll'); l2 = lab('pout')
        E(f"""s_mov_b32 s38, 0
        s_add_u32 s23, s46, {val}
        {l}:
        {loads}
        s_add_u32 s38, s38, 1
        s_cmp_gt_u32 s38, {SPIN}
        s_cbranch_scc1 {l2}
        s_waitcnt vmcnt(0)""")
        for i in range(n): E(f"v_subrev_u32 v{t+i}, s23, v{t+i}")
        E(f"v_max3_u32 v{t}, v{t}, v{t+1}, v{t+2}")
        if n == 4: E(f"v_max_u32 v{t}, v{t}, v{t+3}")
        E(f"v_cmp_lt_u32 vcc, 15, v{t}\ns_cbranch_vccnz {l}\n{l2}:")
    poll = lambda val: spin(f"buffer_load_dwordx4 v[252:255], v12, s[8:11], 0 offen offset:{FLAGC} sc1", 4, val)
    gpoll = lambda val: spin("buffer_load_dwordx3 v[252:254], v13, s[8:11], 0 offen sc1", 3, val)
    def publish(val):
        l = lab('pub'); l2 = lab('pubs')
        E(f"""s_add_u32 s23, s46, {val}
        v_mov_b32 v14, s45
        v_mov_b32 v15, s23
        s_cmp_lg_u32 s27, 0
        s_cbranch_scc1 {l2}
        s_mov_b64 exec, 1
        buffer_store_dword v15, v14, s[8:11], 0 offen offset:{FLAGC}
        s_mov_b64 exec, -1
        {l}:""")
        OOL.append(f"""{l2}:
        buffer_wbl2 sc1
        s_waitcnt vmcnt(0)
        s_mov_b64 exec, 1
        buffer_store_dword v15, v14, s[8:11], 0 offen offset:{FLAGC} sc1
        s_mov_b64 exec, -1
        s_branch {l}""")
    def acquire():
        l = lab('acq'); l2 = lab('acqs')
        E(f"s_cmp_lg_u32 s27, 0\ns_cbranch_scc1 {l2}\n{l}:")
        OOL.append(f"{l2}:\nbuffer_inv sc1\ns_waitcnt vmcnt(0)\ns_branch {l}")
    def idload(): E.vmop(f"buffer_load_dword v11, v12, s[8:11], 0 offen offset:{FLAGC+16} sc1", 'id')
    def idcheck():
        d = lab('idd'); l = lab('idv')
        E(f"""v_cmp_ne_u32 vcc, s26, v11
        s_mov_b32 s27, {0 if OPT['fast'] else 1}
        s_cbranch_vccnz {l}
        {d}:""")
        OOL.append(f"""{l}:
        s_mov_b32 s38, 0
        s_add_u32 s23, s46, 16
        {l}a:
        buffer_load_dword v11, v12, s[8:11], 0 offen offset:{FLAGC+16} sc1
        s_add_u32 s38, s38, 1
        s_cmp_gt_u32 s38, {SPIN}
        s_cbranch_scc1 {l}b
        s_waitcnt vmcnt(0)
        v_subrev_u32 v14, s23, v11
        v_cmp_lt_u32 vcc, 15, v14
        s_cbranch_vccnz {l}a
        {l}b:
        v_cmp_ne_u32 vcc, s26, v11
        s_nop 1
        s_cmp_lg_u64 vcc, 0
        s_cselect_b32 s27, 1, s27
        s_branch {d}""")
    def sync(val, tag, post012=None, name=''):
        l3 = lab('w3'); lb = lab('sb')
        E(f"s_cmp_eq_u32 s18, 3\ns_cbranch_scc1 {l3}")
        E.waitvm(tag); publish(val); E.stamp('pub'+name)
        if post012: post012()
        E(f"s_branch {lb}\n{l3}:\ns_waitcnt vmcnt(0)")
        publish(val); poll(val)
        E(f"{lb}:\ns_waitcnt lgkmcnt(0)\ns_barrier"); E.lg = []; acquire(); E.stamp('poll'+name)
    def touch():
        E(f"v_lshlrev_b32 v14, 7, v0")
        for (base, sb, ms, n) in ((LBASE+XTMID, 's24', 10240, 80), (LBASE+HH, 's28', 24576, 192), (XF2, 's24', 10240, 80)):
            E(f"s_mul_i32 s38, s17, {ms}\ns_add_u32 s23, {sb}, s38\ns_add_u32 s23, s23, {base}")
            for i in range(0, n, 64):
                if n - i < 64: E(f"s_mov_b64 exec, {hex((1 << (n-i)) - 1)}")
                E.vmop("buffer_load_dword v255, v14, s[8:11], s23 offen sc1", 'tch'); E("s_add_u32 s23, s23, 8192")
            E("s_mov_b64 exec, -1")
        E(f"s_mul_i32 s23, s16, 10240\ns_mul_i32 s38, s17, 1280\ns_add_u32 s23, s23, s38\ns_add_u32 s23, s23, {LBASE+SS}\ns_mov_b64 exec, 0x3ff")
        E.vmop("buffer_load_dword v255, v14, s[8:11], s23 offen sc1", 'tch')
        E(f"s_lshl_b32 s23, s16, 12\ns_lshl_b32 s38, s17, 9\ns_add_u32 s23, s23, s38\ns_add_u32 s23, s23, {S2B}\ns_mov_b64 exec, 0xf")
        E.vmop("buffer_load_dword v255, v14, s[8:11], s23 offen sc1", 'tch')
        E("s_mov_b64 exec, -1")
    def p2a(L):
        lb = LBASE + L*LSTR
        l = lab('nou')
        E(f"s_cmp_ge_u32 s18, s22\ns_cbranch_scc1 {l}")
        t_loads(L)
        E(f"v_add_u32 v14, {L_M2}, v1")
        for k in range(8): E.lgop(f"ds_read_b128 {vr(224+4*k)}, v14 offset:{1024*k}", ('M2', k))
        E(f"""s_cmp_eq_u32 s21, 9
        s_cselect_b32 s37, -1, 0
        s_mov_b32 s36, 0""")
        for k in range(8):
            E.waitvm(('T', k)); E.waitlg(('M2', k))
            if k == 0: E.stamp('T0')
            E(f"v_mfma_f32_32x32x16_bf16 {vr(208,16)}, {vr(160+4*k)}, {vr(224+4*k)}, {'0' if k == 0 else vr(208,16)}")
        if L == 0: idload()
        E.waitvm('res')
        LO, HI, D = 160, 176, 208
        for u in range(8):
            E(f"""v_lshlrev_b32 v{LO+2*u}, 16, v{192+u}
            v_and_b32 v{LO+2*u+1}, 0xffff0000, v{192+u}""")
            if L: E(f"v_lshlrev_b32 v{HI+2*u}, 16, v{200+u}\nv_and_b32 v{HI+2*u+1}, 0xffff0000, v{200+u}")
            else: E(f"v_and_b32 v{HI+2*u}, 0xffff0000, v{200+(u^3)}\nv_lshlrev_b32 v{HI+2*u+1}, 16, v{200+(u^3)}")
        if L == 0: E(f"v_lshlrev_b32 v8, 16, v8\nv_cndmask_b32 v{HI+15}, v{HI+15}, v8, s[36:37]")
        XS = 'sc1' if L == 0 and OPT['xsc'] else ''
        for u in range(8): E(f"v_pk_add_f32 {vr(LO+2*u,2)}, {vr(LO+2*u,2)}, {vr(D+2*u,2)}")
        E(f"v_cndmask_b32 v{D+15}, v{D+15}, 0, s[36:37]")
        for u in range(8): E(f"v_cvt_pk_bf16_f32 v{192+u}, v{LO+2*u}, v{LO+2*u+1}")
        E(f"s_add_u32 s34, s33, {lb+XTMID}\ns_add_u32 s35, s34, 40960")
        for rh in range(2): E.vmop(f"buffer_store_dwordx4 {vr(192+4*rh)}, v3, s[8:11], s34 offen offset:{512*rh} {XS}", 'st')
        for u in range(8): E(f"v_pk_add_f32 {vr(HI+2*u,2)}, {vr(HI+2*u,2)}, {vr(D+2*u,2)}")
        for u in range(8): E(f"v_cvt_pk_bf16_f32 v{200+u}, v{HI+2*u}, v{HI+2*u+1}")
        for rh in range(2): E.vmop(f"buffer_store_dwordx4 {vr(200+4*rh)}, v4, s[8:11], s35 offen offset:{512*rh} {XS}", 'st')
        for (X, o) in ((LO, 224), (HI, 228)):
            E(f"v_pk_mul_f32 {vr(o+2,2)}, {vr(X,2)}, {vr(X,2)}\nv_pk_add_f32 {vr(o,2)}, {vr(X,2)}, {vr(X+2,2)}\nv_pk_fma_f32 {vr(o+2,2)}, {vr(X+2,2)}, {vr(X+2,2)}, {vr(o+2,2)}")
            for u in range(2, 8):
                E(f"v_pk_add_f32 {vr(o,2)}, {vr(o,2)}, {vr(X+2*u,2)}\nv_pk_fma_f32 {vr(o+2,2)}, {vr(X+2*u,2)}, {vr(X+2*u,2)}, {vr(o+2,2)}")
        E(f"""v_add_f32 v224, v224, v225
        v_add_f32 v225, v226, v227
        v_add_f32 v228, v228, v229
        v_add_f32 v229, v230, v231
        s_mul_i32 s23, s16, 10240
        s_lshl_b32 s38, s21, 9
        v_permlane32_swap_b32 v224, v228
        v_permlane32_swap_b32 v225, v229
        s_add_u32 s23, s23, s38
        s_add_u32 s23, s23, {lb+SS}
        v_pk_add_f32 v[224:225], v[224:225], v[228:229]""")
        E.vmop("buffer_store_dwordx2 v[224:225], v5, s[8:11], s23 offen", 'st')
        if L == 0:
            OOL.append(f"{l}:\nbuffer_load_dword v11, v12, s[8:11], 0 offen offset:{FLAGC+16} sc1\ns_waitcnt vmcnt(0)\ns_branch {l}x")
            E(f"{l}x:")
        else: E(f"{l}:")

    def rot(dst, base, add, mod, mul, plus):
        return f"s_add_u32 {dst}, {base}, {add}\ns_cmp_ge_u32 {dst}, {mod}\ns_cselect_b32 s38, {mod}, 0\ns_sub_u32 {dst}, {dst}, s38\ns_mul_i32 {dst}, {dst}, {mul}\ns_add_u32 {dst}, {dst}, {plus}"
    w1s = lambda p: f"s{42+p}" if p >= 11 else ['s96','s97','s98','s99','s43','s46','s47','s62'][10-p]
    def ffn1_pre(L):
        lb = LBASE + L*LSTR
        E(f"s_add_u32 s41, s24, {lb+XTMID}\ns_add_u32 s42, s29, s18\ns_lshl_b32 s40, s18, 12")
        for cc in range(5): E(rot(f"s{48+cc}", 's42', 4*cc, 20, 4096, 's41'))
        for p in range(NS, 20): E(rot(w1s(p), 's29', p, 20, 3072, 's39'))
        if L == 0:
            for kk in range(NW2, KS): E(rot(f"s{31+kk-NW2}", 's30', kk, 12, 5120, 's44'))
        E(f"""s_mul_i32 s42, s18, 3072
        s_min_u32 s42, s42, 7168
        s_mul_i32 s63, s16, 10240
        s_add_u32 s63, s63, s42
        s_add_u32 s63, s63, {lb+SS}
        s_add_u32 s42, s42, {L_RED}
        s_add_u32 m0, s40, {L_X}""")
    def ffn1(L):
        lb = LBASE + L*LSTR
        ACC, BF, ONES = 160, 208, 240
        xld = lambda cc, tt: E.vmop(f"buffer_load_dwordx4 v1, s[8:11], s{48+cc} offen offset:{1024*tt} {DS} lds", ('X', cc))
        for tt in range(4): xld(0, tt)
        E("s_mov_b32 m0, s42\nv_add_u32 v15, 0x10000, v1")
        for i in range(3): E.vmop(f"buffer_load_dwordx4 v1, s[8:11], s63 offen offset:{1024*i} {DS} lds", ('X', 1))
        E(f"s_add_u32 m0, s40, {L_X + 16384}\nv_lshlrev_b32 v14, 3, v0")
        for tt in range(4): xld(1, tt)
        E(f"v_add_u32 v14, {L_RED}, v14\nv_add_u32 v10, 4096, v1")
        if L == 0:
            for u in range(4): E(f"v_mov_b32 v{ONES+u}, 0x3f803f80")
            E("s_nop 0")
            E.waitvm(('W1', NS-1)); E("s_nop 0")
            for p in range(NS):
                for t in range(3):
                    E(f"v_mfma_f32_16x16x32_bf16 {ar(240+4*t)}, {vr(16+12*p+4*t)}, {vr(ONES)}, {'0' if p == 0 else ar(240+4*t)}")
        rdB = lambda p, tt: E.lgop(f"ds_read_b128 {vr(BF+16*(p&1)+4*tt)}, {'v1' if p < 16 else 'v15'} offset:{L_X + (p%16)*4096 + tt*1024}", ('B', p, tt))
        Q = []
        w1one = lambda p, t: E.vmop(f"buffer_load_dwordx4 {vr(16+12*(p%12)+4*t)}, v1, s[8:11], {w1s(p)} offen offset:{1024*t}", ('W1', p))
        w2one = lambda kk, t: E.vmop(f"buffer_load_dwordx4 {ar(20*kk+4*t)}, {'v1' if t < 4 else 'v10'}, s[8:11], s{31+kk-NW2} offen offset:{1024*(t%4)}", 'W2')
        for it in list(range(NS, 8)) + [('X', 2)] + list(range(max(NS, 8), 12)) + [('X', 3), 12, 13, 14, 15, ('X', 4), 16, 17, 18, 19]:
            if isinstance(it, tuple): Q += [(0, (lambda c=it[1], t=t: xld(c, t)), (it[1] if t == 0 else None)) for t in range(4)]
            else: Q += [(max(it-11, 0), (lambda p=it, t=t: w1one(p, t)), None) for t in range(3)]
        if L == 0:
            for kk in range(NW2, KS): Q += [(0, (lambda k=kk, t=t: w2one(k, t)), None) for t in range(5)]
        E.waitvm(('X', 0)); E("s_barrier"); E.stamp('X0')
        for tt in range(4): rdB(0, tt)
        ST, SM = 244, 248
        for p in range(20):
            n = 0
            slots = (5, 7, 9) if p < OPT['p4s'] else (4, 6, 8, 10)
            for tt in range(4):
                for t in range(3):
                    if n == 0: E.waitvm(('W1', p))
                    if t == 0: E.waitlg(('B', p, tt))
                    a = ACC + 16*t + 4*tt
                    E(f"v_mfma_f32_16x16x32_bf16 {vr(a)}, {vr(16+12*(p%12)+4*t)}, {vr(BF+16*(p&1)+4*tt)}, {'0' if p == 0 else vr(a)}")
                    n += 1
                    if n == 1 and p < 19 and (p+1) % 4 == 0: E.waitvm(('X', (p+1)//4)); E("s_barrier")
                    if n in (2, 4, 6, 8) and p < 19: rdB(p+1, n//2-1)
                    if n+1 in slots and Q and Q[0][2] is not None: E(f"s_add_u32 m0, s40, {L_X + Q[0][2]*16384}")
                    if n in slots and Q and Q[0][0] <= p: Q.pop(0)[1]()
                    if 4 <= p <= 8:
                        if n in (1, 3): E.lgop(f"ds_read2st64_b64 {vr(SM+2*(n-1))}, v14 offset0:{4*(p-4)+n-1} offset1:{4*(p-4)+n}", ('S', p))
                        if n == 10:
                            E.waitlg(('S', p))
                            E(f"v_add_f32 v{SM}, v{SM}, v{SM+2}\nv_add_f32 v{SM+1}, v{SM+1}, v{SM+3}")
                        if n == 11: E(f"v_add_f32 v{SM+4}, v{SM+4}, v{SM+6}\nv_add_f32 v{SM+5}, v{SM+5}, v{SM+7}")
                        if n == 12:
                            if p == 4: E(f"v_add_f32 v{ST}, v{SM}, v{SM+4}\nv_add_f32 v{ST+1}, v{SM+1}, v{SM+5}")
                            else: E(f"v_add3_f32 v{ST}, v{SM}, v{SM+4}, v{ST}\nv_add3_f32 v{ST+1}, v{SM+1}, v{SM+5}, v{ST+1}".replace('v_add3_f32', 'v_xadd') if 0 else
                                    f"v_add_f32 v{ST}, v{ST}, v{SM}\nv_add_f32 v{ST+1}, v{ST+1}, v{SM+1}\nv_add_f32 v{ST}, v{ST}, v{SM+4}\nv_add_f32 v{ST+1}, v{ST+1}, v{SM+5}")
                    if p == 9:
                        seq = [f"v_mul_f32 v{ST}, {f2h(1/640)}, v{ST}", f"v_mul_f32 v{ST+1}, {f2h(1/640)}, v{ST+1}",
                               f"v_fma_f32 v{ST+1}, -v{ST}, v{ST}, v{ST+1}", f"v_max_f32 v{ST+1}, 0, v{ST+1}",
                               f"v_add_f32 v{ST+1}, {f2h(1e-5)}, v{ST+1}", f"v_rsq_f32 v{ST+1}, v{ST+1}",
                               f"v_and_b32 v{ST+2}, 15, v0", f"v_lshlrev_b32 v{ST+2}, 2, v{ST+2}", f"s_lshl_b32 s23, s18, 6",
                               f"v_add_u32 v{ST+3}, s23, v{ST+2}", f"v_sub_f32 v{ST}, 0, v{ST}", None]
                        if seq[n-1]: E(seq[n-1])
                    if p == 10 and n in (1, 3, 10, 11): tt2 = (1, 3, 10, 11).index(n); E.lgop(f"ds_bpermute_b32 v{SM+2*tt2}, v{ST+2}, v{ST} offset:{64*tt2}", 'm')
                    if p == 10 and n == 12: E.lgop(f"ds_bpermute_b32 v7, v{ST+3}, v{ST+1}", 'm')
            if L == 0 and p >= NS:
                for t in range(3):
                    E(f"v_mfma_f32_16x16x32_bf16 {ar(240+4*t)}, {vr(16+12*(p%12)+4*t)}, {vr(ONES)}, {ar(240+4*t)}")
        assert not Q, len(Q)
        E.stamp('f1end')
        CS = 128
        E("s_nop 5")
        for i in range(12): E(f"v_accvgpr_read_b32 v{CS+i}, a{240+i}")
        E.waitlg()
        E(f"s_mul_i32 s23, s17, 6\ns_add_u32 s38, s23, s18\ns_lshl_b32 s38, s38, 12\ns_add_u32 s38, s38, s28\ns_add_u32 s38, s38, {lb+HH}")
        E(f"s_lshr_b32 s35, s18, 1\ns_add_u32 s35, s35, s23\ns_add_u32 s35, s35, 4\ns_lshl_b32 s35, s35, 12\ns_add_u32 s35, s35, s28\ns_add_u32 s35, s35, {lb+HH}")
        O = 16
        for tt in range(4):
            for t in range(3):
                a = ACC + 16*t + 4*tt
                for u in range(2):
                    E(f"v_pk_fma_f32 {vr(a+2*u,2)}, {vr(CS+4*t+2*u,2)}, {vr(SM+2*tt,2)}, {vr(a+2*u,2)} op_sel_hi:[1,0,1]")
            for t in range(3):
                a = ACC + 16*t + 4*tt
                o = O + 4*tt + 2*t if t < 2 else O + 16 + 2*tt
                for u in range(2): E(f"v_cvt_pk_bf16_f32 v{o+u}, v{a+2*u}, v{a+2*u+1}")
            for t in range(3):
                o = O + 4*tt + 2*t if t < 2 else O + 16 + 2*tt
                for u in range(2): E(f"v_pk_max_i16 v{o+u}, v{o+u}, 0")
            E.vmop(f"buffer_store_dwordx4 {vr(O+4*tt)}, v1, s[8:11], s38 offen offset:{1024*tt}", 'st')
            if tt & 1:
                o = O + 16 + 2*(tt-1)
                E(f"s_nop 0\nv_permlane32_swap_b32 v{o}, v{o+2}\nv_permlane32_swap_b32 v{o+1}, v{o+3}")
                E.vmop(f"buffer_store_dwordx4 {vr(o)}, v6, s[8:11], s35 offen offset:{1024*(tt-1)}", 'st')

    def ffn2(L):
        lb = LBASE + L*LSTR
        HF, ACC = 16, (208, 228)
        E(f"s_mul_i32 s34, s18, {12*4096}\ns_add_u32 s34, s34, s28\ns_add_u32 s34, s34, {lb+HH}")
        for kk in range(12):
            E(f"s_add_u32 s23, s30, {kk}\ns_cmp_ge_u32 s23, 12\ns_cselect_b32 s38, 12, 0\ns_sub_u32 s23, s23, s38\ns_lshl_b32 s23, s23, 12\ns_add_u32 s{52+kk}, s23, s34")
        for b in range(4):
            E(f"s_add_u32 s23, s18, {b+1}\ns_and_b32 s23, s23, 3\ns_lshl_b32 s23, s23, 10\nv_add_u32 v{248+b}, s23, v1")
        HQ = [(b, kk) for b in range(4) for kk in range(12)]
        def hld():
            b, kk = HQ.pop(0)
            E.vmop(f"buffer_load_dwordx4 {vr(HF+48*b+4*kk)}, v{248+b}, s[8:11], s{52+kk} offen {DS}", ('h', b, kk))
        E(f"""v_lshrrev_b32 v14, 4, v0
        v_and_b32 v15, 15, v0
        s_mul_i32 s23, s17, 5
        v_add_u32 v8, s23, v14
        v_lshrrev_b32 v9, 2, v8
        v_lshlrev_b32 v9, 12, v9
        v_and_b32 v10, 3, v8
        v_lshl_add_u32 v9, v10, 8, v9
        v_lshlrev_b32 v10, 9, v8
        s_lshl_b32 s38, s18, 10
        v_lshl_add_u32 v11, v15, 4, s38
        v_add_u32 v8, v9, v11
        s_add_u32 s23, s23, 4
        s_lshr_b32 s35, s23, 2
        s_lshl_b32 s35, s35, 12
        s_and_b32 s36, s23, 3
        s_lshl_b32 s36, s36, 8
        s_add_u32 s35, s35, s36
        v_lshl_add_u32 v9, v14, 2, v11
        v_add_u32 v9, s35, v9
        s_lshr_b32 s35, s18, 1
        s_mul_i32 s35, s35, 40960
        s_and_b32 s36, s18, 1
        s_lshl_b32 s36, s36, 8
        s_add_u32 s35, s35, s36
        v_lshl_add_u32 v11, v15, 4, s35
        v_add_u32 v10, v10, v11
        s_lshl_b32 s23, s23, 9
        v_lshl_add_u32 v11, v14, 2, v11
        v_add_u32 v11, s23, v11""")
        RES, PART = 16, 64
        sync(4*L+2, 'st', post012=(lambda: [w2_loads(kk) for kk in range(KS, 12)]) if L == 0 else None, name='h')
        for i in range(OPT['hpre']): hld()
        E.waitvm('W2')
        for b in range(4):
            A = ACC[b & 1]; P = ACC[(b+1) & 1]
            n = 0
            for kk in range(12):
                E.waitvm(('h', b, kk))
                if b == 0 and kk == 0: E.stamp('h0')
                for t in range(5):
                    E(f"v_mfma_f32_16x16x32_bf16 {vr(A+4*t)}, {ar(20*kk+4*t)}, {vr(HF+48*b+4*kk)}, {'0' if kk == 0 else vr(A+4*t)}")
                    n += 1
                    if t == 1 and HQ: hld()
                    if b >= 1 and n == 9:
                        E(f"s_add_u32 s23, s18, {b}\ns_and_b32 s23, s23, 3\ns_mul_i32 s23, s23, {3*5120}\ns_add_u32 s23, s23, {L_RED + (b-1)*5120}\nv_add_u32 v14, s23, v1")
                    if b >= 1 and 11 <= n <= 19 and n % 2 == 1:
                        t2 = (n-11)//2
                        E.lgop(f"ds_write_b128 v14, {vr(P+4*t2)} offset:{1024*t2}", 'red')
                    if b == 1 and n == 25:
                        E(f"s_add_u32 s34, s24, {lb+XTMID}\ns_add_u32 s35, s34, 40960")
                        E.vmop(f"buffer_load_dwordx4 {vr(RES)}, v8, s[8:11], s34 offen {DS}", 'res')
                        E.vmop(f"buffer_load_dwordx4 {vr(RES+4)}, v8, s[8:11], s35 offen {DS}", 'res')
                        E.vmop(f"buffer_load_dword v{RES+8}, v9, s[8:11], s34 offen {DS}", 'res')
                        E.vmop(f"buffer_load_dword v{RES+9}, v9, s[8:11], s35 offen {DS}", 'res')
                    if b == 3 and n == 30:
                        E.waitlg(); E(f"s_barrier\ns_mul_i32 s23, s18, {3*5120}\ns_add_u32 s23, s23, {L_RED}\nv_add_u32 v14, s23, v1")
                    if b == 3 and 32 <= n < 47:
                        i = n - 32
                        E.lgop(f"ds_read_b128 {vr(PART+4*i)}, v14 offset:{1024*i}", 'part')
        E.stamp('f2end')
        A = ACC[1]
        X = 32
        E.waitvm('res')
        pr = lambda u: (8*(u >> 2) + (u & 3), 8*(u >> 2) + (u & 3) + 4) if u < 8 else (2*u, 2*u+1)
        for u in range(10): E(f"v_lshlrev_b32 v{X+pr(u)[0]}, 16, v{RES+u}\nv_and_b32 v{X+pr(u)[1]}, 0xffff0000, v{RES+u}")
        E.waitlg()
        for u in range(10):
            E(f"v_pk_add_f32 {vr(PART+2*u,2)}, {vr(PART+2*u,2)}, {vr(PART+20+2*u,2)}\nv_pk_add_f32 {vr(A+2*u,2)}, {vr(A+2*u,2)}, {vr(PART+40+2*u,2)}")
        for u in range(10):
            E(f"v_pk_add_f32 {vr(A+2*u,2)}, {vr(A+2*u,2)}, {vr(PART+2*u,2)}")
        E("v_mov_b32 v14, v7")
        for u in range(10):
            E(f"v_pk_fma_f32 {vr(X+2*u,2)}, {vr(A+2*u,2)}, v[14:15], {vr(X+2*u,2)} op_sel_hi:[1,0,1]")
        O = 64
        if L == 0:
            nb = LBASE + LSTR
            for u in range(10): E(f"v_cvt_pk_bf16_f32 v{O+u}, v{X+pr(u)[0]}, v{X+pr(u)[1]}")
            EE, OO = 80, 92
            for u in range(4):
                E(f"v_pk_add_f32 {vr(EE+2*u,2)}, {vr(X+2*u,2)}, {vr(X+8+2*u,2)}\nv_pk_add_f32 {vr(OO+2*u,2)}, {vr(X+2*u,2)}, {vr(X+8+2*u,2)} neg_lo:[0,1] neg_hi:[0,1]")
            E(f"""v_pk_add_f32 {vr(EE+8,2)}, {vr(X+16,2)}, {vr(X+18,2)}
            v_pk_add_f32 {vr(OO+8,2)}, {vr(X+16,2)}, {vr(X+18,2)} neg_lo:[0,1] neg_hi:[0,1]
            s_cmp_eq_u32 s17, 7
            s_cselect_b32 s37, 0xffff0000, 0
            s_mov_b32 s36, 0
            s_add_u32 s34, s24, {XF2}
            s_add_u32 s35, s34, 20480
            v_cndmask_b32 v{EE+9}, v{EE+9}, v{X+17}, s[36:37]
            v_cndmask_b32 v{OO+9}, v{OO+9}, v{X+19}, s[36:37]""")
            for u in range(5):
                a, b = (u, u+4) if u < 4 else (8, 9)
                E(f"v_cvt_pk_bf16_f32 v{EE+u}, v{EE+a}, v{EE+b}\nv_cvt_pk_bf16_f32 v{OO+u}, v{OO+a}, v{OO+b}")
            E.vmop(f"buffer_store_dwordx4 {vr(EE)}, v10, s[8:11], s34 offen", 'st')
            E.vmop(f"buffer_store_dwordx4 {vr(OO)}, v10, s[8:11], s35 offen", 'st')
            E.vmop(f"buffer_store_dword v{EE+4}, v11, s[8:11], s34 offen", 'st')
            E.vmop(f"buffer_store_dword v{OO+4}, v11, s[8:11], s35 offen", 'st')
            E(f"v_pk_mul_f32 v[106:107], {vr(X,2)}, {vr(X,2)}\nv_pk_add_f32 v[104:105], {vr(X,2)}, {vr(X+2,2)}\nv_pk_fma_f32 v[106:107], {vr(X+2,2)}, {vr(X+2,2)}, v[106:107]")
            for u in range(2, 10): E(f"v_pk_add_f32 v[104:105], v[104:105], {vr(X+2*u,2)}\nv_pk_fma_f32 v[106:107], {vr(X+2*u,2)}, {vr(X+2*u,2)}, v[106:107]")
            E(f"""v_add_f32 v104, v104, v105
            v_add_f32 v105, v106, v107
            s_lshl_b32 s23, s16, 12
            s_lshl_b32 s38, s17, 9
            s_add_u32 s23, s23, s38
            v_permlane32_swap_b32 v104, v105
            s_lshl_b32 s38, s18, 7
            s_add_u32 s23, s23, s38
            v_add_f32 v104, v104, v105
            s_add_u32 s23, s23, {S2B}
            v_mov_b32 v105, v104
            v_and_b32 v106, 15, v0
            v_lshrrev_b32 v107, 5, v0
            v_permlane16_swap_b32 v104, v105
            v_lshlrev_b32 v106, 3, v106
            v_lshl_add_u32 v106, v107, 2, v106
            v_add_f32 v104, v104, v105""")
            E.vmop("buffer_store_dword v104, v106, s[8:11], s23 offen", 'st')
            E(f"s_add_u32 s34, s24, {nb+XTIN}\ns_add_u32 s35, s34, 40960")
            E.vmop(f"buffer_store_dwordx4 {vr(O)}, v8, s[8:11], s34 offen", 'st')
            E.vmop(f"buffer_store_dwordx4 {vr(O+4)}, v8, s[8:11], s35 offen", 'st')
            E.vmop(f"buffer_store_dword v{O+8}, v9, s[8:11], s34 offen", 'st')
            E.vmop(f"buffer_store_dword v{O+9}, v9, s[8:11], s35 offen", 'st')
        else:
            for u in range(4): E(f"v_cvt_pk_bf16_f32 v{O+u}, v{X+u}, v{X+4+u}\nv_cvt_pk_bf16_f32 v{O+4+u}, v{X+15-u}, v{X+11-u}")
            E(f"""v_cvt_pk_bf16_f32 v{O+8}, v{X+16}, v{X+17}
            v_cvt_pk_bf16_f32 v{O+9}, v{X+18}, v{X+19}
            s_sub_u32 s23, 64, s16
            s_cmp_eq_u32 s16, 0
            s_cselect_b32 s23, 32, s23
            s_cmp_lt_u32 s18, 2
            s_cselect_b32 s23, s16, s23
            s_and_b32 s38, s18, 1
            s_lshl_b32 s38, s38, 10
            s_add_u32 s23, s23, s38
            v_and_b32 v80, 15, v0
            v_lshl_add_u32 v80, v80, 6, s23
            v_mul_u32_u24 v80, 1280, v80
            v_lshrrev_b32 v81, 4, v0
            s_mul_i32 s23, s17, 80
            s_add_u32 s38, s23, 2
            v_lshl_add_u32 v82, v81, 4, s38
            v_add_u32 v82, v82, v80
            buffer_store_dwordx4 {vr(O)}, v82, s[12:15], 0 offen {'sc1' if OPT['outsc'] else ''}
            s_sub_u32 s38, 1264, s23
            v_lshlrev_b32 v83, 4, v81
            v_sub_u32 v83, s38, v83
            v_add_u32 v83, v83, v80
            buffer_store_dwordx4 {vr(O+4)}, v83, s[12:15], 0 offen {'sc1' if OPT['outsc'] else ''}
            s_add_u32 s38, s23, 66
            v_lshl_add_u32 v84, v81, 2, s38
            v_add_u32 v84, v84, v80
            buffer_store_dword v{O+8}, v84, s[12:15], 0 offen {'sc1' if OPT['outsc'] else ''}
            s_sub_u32 s38, 1214, s23
            v_lshlrev_b32 v85, 2, v81
            v_sub_u32 v85, s38, v85
            v_add_u32 v86, -2, v85
            v_cmp_eq_u32 vcc, 640, v86
            v_add_u32 v85, v85, v80
            buffer_store_short v{O+9}, v85, s[12:15], 0 offen {'sc1' if OPT['outsc'] else ''}
            v_cndmask_b32 v86, v86, 0, vcc
            v_add_u32 v86, v86, v80
            buffer_store_short_d16_hi v{O+9}, v86, s[12:15], 0 offen {'sc1' if OPT['outsc'] else ''}""")

    def p4():
        def g():
            l = lab('nog')
            E(f"s_cmp_ge_u32 s18, s22\ns_cbranch_scc1 {l}")
            gen_G(E, 's21')
            E(f"{l}:"); E.stamp('gen')
        sync(3, None, post012=g, name='xf')
        E(f"""s_mul_i32 s23, s19, 40960
        s_add_u32 s23, s23, s24
        s_mul_i32 s38, s18, 10240
        s_add_u32 s23, s23, s38
        s_add_u32 s23, s23, {XF2}""")
        for i in range(10):
            if i % 4 == 0: E(f"s_add_u32 m0, s38, {L_X + 1024*i}\ns_add_u32 s34, s23, {1024*i}")
            E.vmop(f"buffer_load_dwordx4 v1, s[8:11], s34 offen offset:{1024*(i%4)} {DS} lds", 'XF')
        E(f"""v_and_b32 v14, 31, v0
        v_lshlrev_b32 v14, 3, v14
        s_lshl_b32 s23, s16, 12
        s_lshl_b32 s38, s19, 8
        s_add_u32 s23, s23, s38
        s_add_u32 s23, s23, {S2B}""")
        for m in range(8): E.vmop(f"buffer_load_dwordx2 {vr(224+2*m,2)}, v14, s[8:11], s23 offen offset:{512*m} {DS}", 'S')
        E.waitvm('S')
        for m in range(1, 8): E(f"v_pk_add_f32 v[224:225], v[224:225], {vr(224+2*m,2)}")
        E(f"""v_mul_f32 v224, {f2h(1/640)}, v224
        v_mul_f32 v225, {f2h(1/640)}, v225
        v_fma_f32 v225, -v224, v224, v225
        v_max_f32 v225, 0, v225
        v_add_f32 v225, {f2h(1e-5)}, v225
        v_rsq_f32 v225, v225
        s_lshl_b32 s23, s18, 8
        s_add_u32 s23, s23, {L_R}
        v_lshl_add_u32 v14, v0, 2, s23
        ds_write_b32 v14, v225
        v_lshrrev_b32 v9, 5, v0
        v_lshl_add_u32 v9, v9, 4, s23
        s_waitcnt lgkmcnt(0)
        s_barrier""")
        E.stamp('xf')
        l = lab('nou')
        E(f"""s_cmp_ge_u32 s18, s22
        s_cbranch_scc1 {l}
        v_mov_b32 v10, v13
        s_mul_i32 s32, s21, 8192
        s_lshl_b32 s33, s20, 7
        s_add_u32 s32, s32, s33
        s_add_u32 s32, s32, {LBASE + TSTR + TT}""")
        dft_unit(E, L_X, 512, L_M1, 'v9', 's32', 'sc1')
        E(f"v_mov_b32 v13, v10\n{l}:")

    NA, NB = OPT['na'], OPT['nb']
    E(f"""s_cmp_eq_u32 s18, 3
    s_cbranch_scc1 k2_w3a
    s_cmp_ge_u32 s18, s22
    s_cbranch_scc1 k2_nou0
    s_mul_i32 s32, s21, 8192
    s_lshl_b32 s33, s20, 7
    s_add_u32 s32, s32, s33
    s_add_u32 s32, s32, {LBASE + TT}""")
    dft_unit(E, L_X, XFS, L_M1, 'v9', 's32', 'sc1')
    E("k2_nou0:"); E.stamp('dft')
    E.waitvm(); gflag(1); E.stamp('gpub0')
    setup(); res_loads(0); gen_M2()
    E("s_barrier"); E.stamp('B1')
    w1_loads(0, NA)
    sv = list(E.vm)
    E("s_branch k2_B2\nk2_w3a:")
    gflag(1); setup()
    E(f"v_mov_b32 v14, s45\nv_mov_b32 v15, s26\ns_mov_b64 exec, 1\nbuffer_store_dword v15, v14, s[8:11], 0 offen offset:{FLAGC+4} sc1\ns_mov_b64 exec, -1")
    if OPT['touch'] == 1: touch()
    gen_M2()
    E(f"v_lshlrev_b32 v10, 7, v0\nv_add_u32 v10, {FLAGG+12}, v10\ns_mov_b32 s40, 8192\ns_mov_b32 s41, 16384\ns_mov_b32 s42, 24576")
    spin("buffer_load_dword v252, v10, s[8:11], 0 offen sc1\nbuffer_load_dword v253, v10, s[8:11], s40 offen sc1\nbuffer_load_dword v254, v10, s[8:11], s41 offen sc1\nbuffer_load_dword v255, v10, s[8:11], s42 offen sc1", 4, 1)
    E.stamp('pkpoll')
    w1_loads(0, NS)
    E("s_barrier")
    for kk in list(range(NW2)) + list(range(KS, 12)): w2_loads(kk)
    if OPT['touch'] == 2: touch()
    gpoll(1)
    E("k2_B2:\ns_waitcnt lgkmcnt(0)\ns_barrier"); E.lg = []; E.stamp('gpoll0')
    E.vm = sv
    E.pre = 'k2_a_'
    E("s_cmp_eq_u32 s18, 3\ns_cbranch_scc1 k2_w3b")
    p2a(0)
    E.stamp('p2a')
    E.waitvm(); idcheck(); publish(1); E.stamp('pub1')
    w1_loads(NA, NS)
    for kk in range(NW2): w2_loads(kk)
    ffn1_pre(0)
    sv = list(E.vm)
    E("s_branch k2_sb1\nk2_w3b:")
    if OPT['touch'] == 3: touch()
    ffn1_pre(0)
    idload(); E.waitvm(); idcheck(); publish(1); poll(1)
    E("k2_sb1:\ns_barrier"); acquire(); E.stamp('poll1')
    E.vm = sv
    ffn1(0)
    ffn2(0)
    p4()
    E("s_cmp_eq_u32 s18, 3\ns_cbranch_scc1 k2_gpoll")
    E.waitvm(); gflag(2); E.stamp('gpub')
    res_loads(1)
    w1_loads(0, NB)
    sv = list(E.vm)
    E("s_branch k2_gdone\nk2_gpoll:")
    w1_loads(0, NS)
    gpoll(2)
    E("k2_gdone:\ns_barrier")
    E.vm = sv
    E.stamp('gpoll')
    E.pre = 'k2_b_'
    p2a(1)
    E.stamp('p2a')
    ffn1_pre(1)
    sync(5, None, post012=lambda: w1_loads(NB, NS), name='1')
    ffn1(1)
    ffn2(1)
    if OPT['stamps']: E("s_waitcnt vmcnt(0)"); E.stamp('end')
    E.dump_stamps('s18'); E.dump_dbg()
    E("k2_done:\ns_endpgm")
    for o in OOL: E(o)
    E("k2_end:")
    return head(KN) + E.text()

src = f"""; FNet (folded hidden DFT + 2-stage sequence DFT on MFMA) + ReLU FFN, two layers, one persistent kernel.  Generated by hand-written generator scripts.
; @launch grid=(256,1,1) block=(256,1,1) lds={LDS2}
.amdgcn_target "amdgcn-amd-amdhsa--gfx950"
.text
""" + kern() + '.section .rodata,"a"\n.p2align 6\n' + desc(KN, 512, 256)
print(src + '\n'.join(NAMES))
```

```python
import sys, struct
import re
OPT = dict(stamps='', fast=1, pf=1, reuse=1, dbg=0, ns=11, na=8, nb=8, touch=0, p4s=11, nw2a=2, ks=8, dsc=1, outsc=0, hpre=10, xsc=0, wso=0)
for a in sys.argv[1:]:
    k, v = a.split('='); OPT[k] = v if k == 'stamps' else int(v)
NAMES = []
f2h = lambda x: hex(struct.unpack('<I', struct.pack('<f', x))[0])
KB = 1024
FLAGC = 0
FLAGG = 32*KB
STAMP = 64*KB
S2B   = 256*KB
W1P   = 512*KB
W2P   = W1P + 1920*KB
XF2   = W2P + 1920*KB
LBASE = XF2 + 2560*KB
XTIN, XTMID, TT, HH, SS = 0, 2560*KB, 5120*KB, 7680*KB, 13824*KB
LSTR  = 14336*KB
TSTR = LSTR
if OPT['reuse']:
    XTIN, XTMID, TT, HH, SS, LSTR, TSTR = 0, 0, 2560*KB, 7680*KB, 13824*KB, 0, 2560*KB
WS_BYTES = 268435456
L_X = 0
L_RED = 80*KB
L_M1 = 140*KB
L_M2 = 148*KB
L_R = 156*KB
LDS2 = 157*KB
XFS = 528
L1_XF = 0
L1_M1 = 44*KB
L1_R = 52*KB
LDS1 = 53*KB

class Asm:
    def __init__(s, kn): s.l = []; s.vm = []; s.lg = []; s.nst = 0; s.kn = kn; s.pre = kn + '_'
    def __call__(s, t):
        for x in t.strip('\n').split('\n'): s.l.append('    ' + x.strip() if not x.strip().endswith(':') else x.strip())
    def vmop(s, t, tag): s(t); s.vm.append(tag)
    def lgop(s, t, tag): s(t); s.lg.append(tag)
    def waitvm(s, tag=None):
        n = 0
        if tag is not None:
            if tag not in s.vm: return
            idx = max(i for i, t in enumerate(s.vm) if t == tag); n = len(s.vm) - 1 - idx
        n = min(n, 63); s(f's_waitcnt vmcnt({n})'); s.vm = s.vm[len(s.vm)-n:] if n else []
    def waitlg(s, tag=None):
        n = 0
        if tag is not None:
            if tag not in s.lg: return
            idx = max(i for i, t in enumerate(s.lg) if t == tag); n = len(s.lg) - 1 - idx
        n = min(n, 15); s(f's_waitcnt lgkmcnt({n})'); s.lg = s.lg[len(s.lg)-n:] if n else []
    def stamp(s, name):
        name = s.pre + name
        if OPT['stamps'] and re.search(OPT['stamps'], name):
            s(f's_memrealtime s[{64+2*s.nst}:{65+2*s.nst}]'); NAMES.append(f'; @stamp {s.kn} {s.nst} {name}'); s.nst += 1; assert s.nst <= 16, name
    def note(s, name, reg):
        name = s.pre + name
        if OPT['stamps'] and re.search(OPT['stamps'], name):
            s(f's_mov_b32 s{64+2*s.nst}, {reg}'); NAMES.append(f'; @stamp {s.kn} {s.nst} {name}'); s.nst += 1; assert s.nst <= 16, name
    def dump_stamps(s, wsreg):
        if OPT['stamps']:
            s('s_waitcnt lgkmcnt(0)')
            s(f's_lshl_b32 s40, s2, 9\ns_lshl_b32 s41, {wsreg}, 6\ns_add_u32 s40, s40, s41\ns_add_u32 s40, s40, {STAMP + s.stamp_off}\nv_mov_b32 v14, s40')
            for i in range(s.nst):
                s(f'v_mov_b32 v15, s{64+2*i}\nbuffer_store_dword v15, v14, s[8:11], 0 offen offset:{4*i}')
    def dump_dbg(s):
        if OPT['dbg'] and s.kn == 'k2':
            s(f"""s_cmp_lg_u32 s2, 37
            s_cbranch_scc1 k2_nodbg
            s_cmp_lg_u32 s18, 0
            s_cbranch_scc1 k2_nodbg
            s_load_dwordx2 s[40:41], s[0:1], 72
            s_mov_b32 s44, s64
            s_mov_b32 s42, 256
            s_mov_b32 s43, 0x20000
            v_mov_b32 v14, 0
            s_waitcnt lgkmcnt(0)""")
            for i in range(1, s.nst):
                s(f's_sub_u32 s45, s{64+2*i}, s44\nv_mov_b32 v15, s45\nbuffer_store_dword v15, v14, s[40:43], 0 offen offset:{4*i}')
            s('k2_nodbg:')
    def text(s): return '\n'.join(s.l) + '\n'
vr = lambda a, n=4: f'v[{a}:{a+n-1}]'
ar = lambda a, n=4: f'a[{a}:{a+n-1}]'

def head(name): return f".globl {name}\n.p2align 8\n.type {name},@function\n{name}:\n"
def desc(name, nfv, acc):
    return f""".amdhsa_kernel {name}
  .amdhsa_next_free_vgpr {nfv}
  .amdhsa_next_free_sgpr 100
  .amdhsa_accum_offset {acc}
  .amdhsa_group_segment_fixed_size 0
  .amdhsa_kernarg_size 88
  .amdhsa_user_sgpr_count 2
  .amdhsa_user_sgpr_kernarg_segment_ptr 1
  .amdhsa_system_sgpr_workgroup_id_x 1
.end_amdhsa_kernel
"""
def ids(E):
    E("""s_and_b32 s16, s2, 7
    s_lshr_b32 s23, s2, 6
    s_lshl_b32 s23, s23, 3
    s_or_b32 s16, s16, s23
    s_lshr_b32 s17, s2, 3
    s_and_b32 s17, s17, 7
    s_lshr_b32 s19, s17, 2
    s_sub_u32 s20, 64, s16
    s_cmp_eq_u32 s16, 0
    s_cselect_b32 s20, 32, s20
    s_cmp_eq_u32 s19, 0
    s_cselect_b32 s20, s16, s20
    s_and_b32 s23, s17, 3
    s_mul_i32 s21, s23, 5
    s_add_u32 s21, s21, 1
    s_lshr_b32 s21, s21, 1
    s_and_b32 s23, s23, 1
    s_sub_u32 s22, 3, s23""")

def gen_G(E, sE):
    A, B, K2, F, PH = 176, 192, 208, 210, 211
    E(f"""s_lshl_b32 s23, {sE}, 5
    s_add_u32 s23, s23, 1
    v_and_b32 v{F}, 31, v0
    v_add_u32 v{F}, s23, v{F}
    v_cvt_f32_u32 v{F}, v{F}
    v_mul_f32 v{F}, {f2h(1/640)}, v{F}
    v_lshrrev_b32 v{PH}, 5, v0
    v_lshlrev_b32 v{PH}, 3, v{PH}
    v_add_u32 v{PH}, 1, v{PH}
    v_cvt_f32_u32 v{PH}, v{PH}
    v_mul_f32 v{PH}, v{PH}, v{F}
    v_mul_f32 v{PH+1}, {f2h(16.0)}, v{F}
    v_cos_f32 v{K2}, v{PH+1}
    v_add_f32 v{PH+2}, v{PH}, v{PH+1}
    v_add_f32 v{K2}, v{K2}, v{K2}""")
    for s in range(8):
        E(f"""v_cos_f32 v{A+2*s}, v{PH}
        v_sin_f32 v{A+2*s+1}, v{PH}
        v_cos_f32 v{B+2*s}, v{PH+2}
        v_sin_f32 v{B+2*s+1}, v{PH+2}""")
        if s < 7: E(f"v_add_f32 v{PH}, v{PH}, v{F}\nv_add_f32 v{PH+2}, v{PH+2}, v{F}")
    E(f"v_mov_b32 v{K2+1}, v{K2}")
    def pack(k, S):
        for u in range(4):
            E(f"v_cvt_pk_bf16_f32 v{16+8*k+u}, v{S+4*u}, v{S+4*u+2}\nv_cvt_pk_bf16_f32 v{20+8*k+u}, v{S+4*u+1}, v{S+4*u+3}")
    pack(0, A); pack(1, B)
    for k in range(2, 20):
        for s in range(8):
            E(f"v_pk_fma_f32 v[{A+2*s}:{A+2*s+1}], v[{B+2*s}:{B+2*s+1}], v[{K2}:{K2+1}], v[{A+2*s}:{A+2*s+1}] neg_lo:[0,0,1] neg_hi:[0,0,1]")
        pack(k, A); A, B = B, A

def gen_M1(E, sw, lbase, t0):
    E(f"""v_and_b32 v{t0+1}, 15, v0
    v_bfe_u32 v{t0}, v0, 4, 1
    s_lshr_b32 s23, {sw}, 1
    v_add_u32 v{t0}, s23, v{t0}
    v_lshlrev_b32 v{t0}, 3, v{t0}
    v_lshrrev_b32 v{t0+2}, 5, v0
    v_lshlrev_b32 v{t0+2}, 2, v{t0+2}
    s_and_b32 s23, {sw}, 1
    s_lshl_b32 s23, s23, 4
    v_add_u32 v{t0+2}, s23, v{t0+2}
    s_lshl_b32 s23, {sw}, 10
    s_add_u32 s23, s23, {lbase}
    v_lshl_add_u32 v{t0+3}, v0, 4, s23""")
    for mt in range(2):
        for s in range(8):
            E(f"""v_add_u32 v{t0+4}, {8*(s>>2)+(s&3)}, v{t0+2}
            v_mad_u32_u24 v{t0+4}, v{t0+4}, v{t0+1}, v{t0}
            v_and_b32 v{t0+4}, 31, v{t0+4}
            v_cvt_f32_u32 v{t0+4}, v{t0+4}
            v_mul_f32 v{t0+4}, {f2h(1/32)}, v{t0+4}
            v_cos_f32 v{t0+8+s}, v{t0+4}""")
        E("s_nop 0")
        for u in range(4): E(f"v_cvt_pk_bf16_f32 v{t0+8+u}, v{t0+8+2*u}, v{t0+9+2*u}")
        E(f"ds_write_b128 v{t0+3}, {vr(t0+8)} offset:{mt*4096}")
        if mt == 0: E(f"v_add_u32 v{t0+1}, 16, v{t0+1}\ns_nop 0")

def dft_unit(E, lx, ps, lm1, vR, sT, stf, mid=None):
    AC, AS, AB, R, Z = 176, 192, 208, 224, 240
    E(f"""v_and_b32 v14, 31, v0
    v_lshlrev_b32 v14, 4, v14
    v_lshrrev_b32 v15, 5, v0
    v_mul_u32_u24 v13, {ps}, v15
    v_add_u32 v14, v14, v13""")
    def rd(k):
        b = AB + 8*(k & 1)
        E.lgop(f"ds_read_b128 {vr(b)}, v14 offset:{lx + 2*k*ps}", ('A', k))
        E.lgop(f"ds_read_b128 {vr(b+4)}, v14 offset:{lx + (40+2*k)*ps}", ('A', k))
    rd(0); rd(1)
    E(f"""v_mov_b32 v{Z}, 0
    v_mov_b32 v{Z+1}, 0
    v_mov_b32 v{Z+2}, 0
    v_mul_u32_u24 v{Z+3}, 0x3f8000, v15
    v_lshlrev_b32 v{Z+3}, 8, v{Z+3}""")
    for k in range(20):
        b = AB + 8*(k & 1)
        E.waitlg(('A', k))
        c0 = '0' if k == 0 else vr(AC, 16); c1 = '0' if k == 0 else vr(AS, 16)
        E(f"v_mfma_f32_32x32x16_bf16 {vr(AC,16)}, {vr(b)}, {vr(16+8*k)}, {c0}")
        E(f"v_mfma_f32_32x32x16_bf16 {vr(AS,16)}, {vr(b+4)}, {vr(20+8*k)}, {c1}")
        if k == 19: E(f"v_mfma_f32_32x32x16_bf16 {vr(AC,16)}, {vr(b+4)}, {vr(Z)}, {vr(AC,16)}")
        if k + 2 < 20: rd(k+2)
        if k == 17:
            for g4 in range(4): E.lgop(f"ds_read_b128 {vr(R+4*g4)}, {vR} offset:{32*g4}", 'R')
    m1reg = lambda i: (160 + 4*i) if i < 4 else (208 + 4*(i-4))
    E(f"v_lshlrev_b32 v13, 4, v0\nv_add_u32 v13, {lm1}, v13")
    for i in range(4): E.lgop(f"ds_read_b128 {vr(m1reg(i))}, v13 offset:{1024*i}", 'M1')
    if mid: mid()
    E("s_nop 7")
    for i in range(4, 8): E.lgop(f"ds_read_b128 {vr(m1reg(i))}, v13 offset:{1024*i}", 'M1')
    E.waitlg('R')
    for p in range(8): E(f"v_pk_mul_f32 {vr(AS+2*p,2)}, {vr(AS+2*p,2)}, {vr(R+2*p,2)}")
    for p in range(8): E(f"v_cvt_pk_bf16_f32 v{Z+8+p}, v{AS+2*p}, v{AS+2*p+1}")
    for p in range(8): E(f"v_pk_mul_f32 {vr(AC+2*p,2)}, {vr(AC+2*p,2)}, {vr(R+2*p,2)}")
    for p in range(8): E(f"v_cvt_pk_bf16_f32 v{Z+p}, v{AC+2*p}, v{AC+2*p+1}")
    E.waitlg()
    E(f"""v_and_b32 v14, 15, v0
    v_mul_u32_u24 v14, 81920, v14
    v_bfe_u32 v13, v0, 4, 1
    v_lshl_add_u32 v14, v13, 5, v14
    v_lshl_add_u32 v14, v15, 4, v14""")
    for mt in range(2):
        D = AS if mt == 0 else AC
        for ks in range(4):
            E(f"v_mfma_f32_32x32x16_bf16 {vr(D,16)}, {vr(Z+4*ks)}, {vr(m1reg(4*mt+ks))}, {'0' if ks == 0 else vr(D,16)}")
    E(f"s_add_u32 s23, {sT}, {16*81920}")
    for mt in range(2):
        D = AS if mt == 0 else AC
        E("s_nop 6" if mt == 0 else "s_nop 0")
        for r in range(8): E(f"v_permlane16_swap_b32 v{D+r}, v{D+8+r}")
        for r in range(8):
            E(f"v_cvt_pk_bf16_f32 v{R+8*mt+r}, v{D+r}, v{D+8+r}")
            if r & 3 == 3: E.vmop(f"buffer_store_dwordx4 {vr(R+8*mt+r-3)}, v14, s[8:11], {sT if mt == 0 else 's23'} offen offset:{16*(r-3)} {stf}", 'Tst')

SPIN = 60000
KN = "interleave_layers__spectral_fnet__dense_activation_relu__prompt_kernel"
def kern():
    DS = 'sc1' if OPT['dsc'] else ''
    OOL = []
    E = Asm('k2'); E.stamp_off = 0
    uid = [0]
    def lab(p): uid[0] += 1; return f"k2_{p}{uid[0]}"
    NS = OPT['ns']; NW2 = OPT['nw2a']; KS = OPT['ks']; assert KS - NW2 <= 7
    E("""s_cmp_ge_u32 s2, 256
    s_cbranch_scc1 k2_done""")
    E.stamp('start')
    if OPT['pf']:
        E(f"""s_getpc_b64 s[40:41]
        k2_pc:
        s_sub_u32 s40, s40, k2_pc-{KN}
        s_subb_u32 s41, s41, 0
        s_mov_b32 s42, k2_end-{KN}
        s_mov_b32 s43, 0x20000
        s_lshr_b32 s23, s2, 3
        s_lshl_b32 s23, s23, 10
        v_lshl_add_u32 v14, v0, 2, s23
        v_add_u32 v15, 0x8000, v14
        buffer_load_dword v16, v14, s[40:43], 0 offen
        buffer_load_dword v16, v15, s[40:43], 0 offen""")
    E(f"""s_load_dwordx2 s[4:5], s[0:1], 0
    s_load_dwordx4 s[60:63], s[0:1], 48
    s_load_dwordx2 s[12:13], s[0:1], 64
    s_load_dwordx2 s[52:53], s[0:1], 72
    s_load_dwordx2 s[8:9], s[0:1], 80
    s_memrealtime s[46:47]
    v_lshrrev_b32 v1, 6, v0
    s_mov_b32 s6, {2048*1280}
    s_mov_b32 s7, 0x20000
    v_readfirstlane_b32 s18, v1
    s_mov_b32 s10, {WS_BYTES - OPT['wso']*KB*KB}
    s_mov_b32 s11, 0x20000
    s_mov_b32 s14, {2048*1280}
    s_mov_b32 s15, 0x20000
    s_mov_b32 s54, 256
    s_mov_b32 s55, 0x20000""")
    ids(E)
    E(f"""v_lshrrev_b32 v1, 3, v0
    v_and_b32 v2, 7, v0
    v_lshlrev_b32 v3, 6, v1
    v_add_u32 v3, s20, v3
    v_mul_u32_u24 v3, 1280, v3
    v_lshl_add_u32 v4, v2, 4, v3
    v_add_u32 v4, 2, v4
    v_lshlrev_b32 v5, 4, v2
    v_sub_u32 v5, v3, v5
    v_add_u32 v5, {1264-512}, v5
    v_mov_b32 v10, 0
    s_waitcnt lgkmcnt(0)""")
    if OPT['wso']: E(f"s_add_u32 s8, s8, {OPT['wso']*KB*KB}\ns_addc_u32 s9, s9, 0")
    LD = 216
    for k in range(5):
        E.vmop(f"buffer_load_dwordx4 {vr(LD+8*k)}, v4, s[4:7], 0 offen offset:{128*k}", ('x', k))
        E.vmop(f"buffer_load_dwordx4 {vr(LD+8*k+4)}, v5, s[4:7], 0 offen offset:{128*(4-k)}", ('x', k))
    E.vmop("buffer_load_ushort v12, v3, s[4:7], 0 offen", ('x', 4))
    E(f"""s_lshl_b32 s56, s2, 2
    s_add_u32 s56, s56, s18
    s_cmp_lg_u32 s56, 0
    s_cbranch_scc1 k2_non
    s_or_b32 s46, s46, 1
    v_mov_b32 v11, s46
    s_mov_b64 exec, 1
    buffer_store_dword v11, v10, s[52:55], 0 offen sc1
    s_mov_b64 exec, -1
    k2_non:
    v_mul_u32_u24 v6, {XFS}, v2
    v_lshl_add_u32 v6, v1, 4, v6
    v_cmp_eq_u32 s[30:31], 7, v2
    v_lshlrev_b32 v8, 2, v1
    v_and_b32 v0, 63, v0
    s_add_u32 s21, s21, s18
    v_and_b32 v1, 15, v0
    v_lshrrev_b32 v2, 4, v0
    v_lshlrev_b32 v3, 4, v0
    s_mov_b32 s51, 0x20000
    s_mul_i32 s59, s2, 2428
    s_lshr_b32 s59, s59, 16
    s_mul_i32 s23, s59, 108
    s_sub_u32 s56, s56, s23
    s_cmp_ge_u32 s2, 216
    s_cselect_b32 s56, 108, s56
    s_cmp_ge_u32 s56, 60
    s_cbranch_scc1 k2_pk2""")
    E(f"""s_mov_b32 s48, s60
    s_mov_b32 s49, s61
    s_mov_b32 s50, {640*3072}
    s_mul_i32 s57, s56, 171
    s_lshr_b32 s57, s57, 9
    s_sub_u32 s58, s59, s57
    s_mul_i32 s58, s58, 3
    s_add_u32 s58, s58, s56
    s_cmp_ge_u32 s57, 10
    s_cselect_b32 s33, 10, 0
    s_sub_u32 s33, s57, s33
    s_lshl_b32 s33, s33, 5
    v_lshl_add_u32 v4, v2, 3, s33
    v_add_u32 v5, 1, v4
    v_sub_u32 v7, 632, v4
    s_cmp_ge_u32 s57, 10
    s_cselect_b64 s[34:35], -1, 0
    s_cselect_b32 s36, 7, 0
    v_cndmask_b32 v5, v5, v7, s[34:35]
    v_mul_u32_u24 v5, 3072, v5
    s_lshl_b32 s33, s58, 7
    v_lshl_add_u32 v7, v1, 3, s33
    v_add_u32 v5, v5, v7
    v_cmp_eq_u32 vcc, 312, v4
    s_and_b64 vcc, vcc, s[34:35]
    s_nop 1
    v_cndmask_b32 v7, v5, v7, vcc""")
    for s in range(8):
        E(f"s_xor_b32 s37, s36, {s}\ns_mul_i32 s37, s37, 3072\nbuffer_load_dwordx2 {ar(2*s,2)}, {'v7' if s == 7 else 'v5'}, s[48:51], s37 offen")
    E(f"""s_branch k2_pkm
    k2_pk2:
    s_cmp_ge_u32 s56, 108
    s_cbranch_scc1 k2_pkm
    s_mov_b32 s48, s62
    s_mov_b32 s49, s63
    s_mov_b32 s50, {1536*1280}
    s_sub_u32 s57, s56, 60
    s_mov_b32 s58, s59
    s_mul_i32 s33, s57, 43
    s_lshr_b32 s33, s33, 8
    s_mul_i32 s32, s33, 6
    s_sub_u32 s32, s57, s32
    s_mul_i32 s33, s33, 12
    s_mul_i32 s34, s32, 3
    s_add_u32 s34, s34, s33
    s_mul_i32 s35, s32, 6
    s_add_u32 s35, s35, s33
    s_sub_u32 s35, s35, 22
    v_lshrrev_b32 v4, 1, v2
    v_mul_u32_u24 v4, 3, v4
    v_add_u32 v4, s35, v4
    v_and_b32 v5, 1, v2
    s_and_b32 s36, s34, 3
    s_cmp_eq_u32 s36, 3
    s_cselect_b32 s36, 61, 1
    s_cmp_ge_u32 s32, 4
    s_cselect_b32 s36, 32, s36
    s_cselect_b64 vcc, -1, 0
    v_mov_b32 v7, s34
    v_cndmask_b32 v4, v7, v4, vcc
    v_cndmask_b32 v5, v2, v5, vcc
    v_lshrrev_b32 v7, 2, v4
    v_and_b32 v4, 3, v4
    v_lshl_add_u32 v4, v7, 6, v4
    v_lshl_add_u32 v4, v5, 4, v4
    v_mul_u32_u24 v4, 1280, v4
    s_mul_i32 s36, s36, 1280
    s_mul_i32 s33, s58, 80
    s_add_u32 s34, s33, 2
    v_lshl_add_u32 v5, v1, 2, s34
    v_add_u32 v5, v5, v4
    s_sub_u32 s34, 1276, s33
    v_lshlrev_b32 v7, 2, v1
    v_sub_u32 v7, s34, v7
    v_add_u32 v7, v7, v4
    v_lshrrev_b32 v9, 2, v1
    v_and_b32 v13, 1, v1
    v_lshl_add_u32 v9, v9, 1, v13
    s_mul_i32 s33, s58, 40
    s_add_u32 s33, s33, 32
    v_add_u32 v9, s33, v9
    v_add_u32 v13, 1, v9
    v_cmp_eq_u32 vcc, 319, v9
    v_sub_u32 v9, 639, v9
    v_and_b32 v14, 2, v1
    v_cndmask_b32 v9, v9, 0, vcc
    v_cmp_eq_u32 vcc, 0, v14
    s_nop 1
    v_cndmask_b32 v9, v9, v13, vcc
    v_lshl_add_u32 v9, v9, 1, v4""")
    for s in range(8):
        E(f"""s_mul_i32 s37, s36, {s>>2}
        s_add_u32 s37, s37, {(s&3)*4*1280}
        buffer_load_dword a{s}, v5, s[48:51], s37 offen
        buffer_load_dword a{8+s}, v7, s[48:51], s37 offen
        buffer_load_ushort a{16+s}, v9, s[48:51], s37 offen""")
    E("k2_pkm:")
    E(f"""s_lshl_b32 s45, s2, 7
    s_lshl_b32 s23, s18, 2
    s_add_u32 s45, s45, s23
    v_mov_b32 v13, s45
    s_mov_b32 s23, {FLAGG}
    s_mov_b64 exec, 1
    buffer_store_dword v10, v13, s[8:11], 0 offen offset:{FLAGC}
    buffer_store_dword v10, v13, s[8:11], s23 offen sc1
    s_mov_b64 exec, -1
    buffer_load_dword v11, v10, s[52:55], 0 offen sc1
    s_cmp_lg_u32 s18, 3
    s_cbranch_scc1 k2_nw3""")
    E("s_mov_b32 s38, 0\nk2_m1l:")
    gen_M1(E, 's38', L_M1, 176)
    E("s_add_u32 s38, s38, 1\ns_cmp_lt_u32 s38, 4\ns_cbranch_scc1 k2_m1l\nk2_nw3:\ns_cmp_ge_u32 s18, s22\ns_cbranch_scc1 k2_nog")
    gen_G(E, 's21')
    E("k2_nog:"); E.stamp('gen')
    E(f"""s_waitcnt vmcnt(0)
    v_readfirstlane_b32 s46, v11
    s_mov_b32 s32, 0x05040100
    s_mov_b32 s33, 0x07060302
    s_cmp_eq_u32 s46, 0
    s_cbranch_scc1 k2_nonw
    k2_nonb:""")
    E.vm = []
    OOL.append(f"""k2_nonw:
    s_mov_b32 s38, 0
    k2_nonl:
    buffer_load_dword v11, v10, s[52:55], 0 offen sc1
    s_add_u32 s38, s38, 1
    s_cmp_gt_u32 s38, {SPIN}
    s_cbranch_scc1 k2_nonb
    s_waitcnt vmcnt(0)
    v_readfirstlane_b32 s46, v11
    s_nop 0
    s_cmp_eq_u32 s46, 0
    s_cbranch_scc1 k2_nonl
    s_branch k2_nonb""")
    E.stamp('x0')
    E("s_cmp_ge_u32 s56, 108\ns_cbranch_scc1 k2_pkd")
    A0, P0 = 176, 200
    for i in range(16): E(f"v_accvgpr_read_b32 v{A0+i}, a{i}")
    E("s_cmp_ge_u32 s56, 60\ns_cbranch_scc1 k2_st2")
    for u in range(4):
        for v in range(4): E(f"v_perm_b32 v{P0+4*u+v}, v{A0+4*v+2+(u>>1)}, v{A0+4*v+(u>>1)}, s{32+(u&1)}")
        E(f"""s_lshl_b32 s34, s58, 2
        s_add_u32 s34, s34, {u}
        s_mul_i32 s35, s34, 171
        s_lshr_b32 s35, s35, 9
        s_mul_i32 s36, s35, 57
        s_add_u32 s36, s36, s34
        s_mul_i32 s37, s57, 3
        s_add_u32 s36, s36, s37
        s_lshl_b32 s36, s36, 10
        s_add_u32 s36, s36, {W1P}
        buffer_store_dwordx4 {vr(P0+4*u)}, v3, s[8:11], s36 offen sc1""")
    E(f"""s_nop 0
    s_branch k2_pkd
    k2_st2:
    s_mul_i32 s34, s58, 48
    s_add_u32 s34, s34, s57
    s_mul_i32 s34, s34, 5120
    s_add_u32 s34, s34, {W2P}
    s_add_u32 s35, s34, 4096""")
    for i in range(8): E(f"v_accvgpr_read_b32 v{A0+16+i}, a{16+i}")
    for t in range(4):
        for v in range(4): E(f"v_perm_b32 v{P0+4*t+v}, v{A0+8*(t>>1)+2*v+1}, v{A0+8*(t>>1)+2*v}, s{32+((t&1)^(t>>1))}")
        E(f"buffer_store_dwordx4 {vr(P0+4*t)}, v3, s[8:11], s34 offen offset:{1024*t} sc1")
    for v in range(4): E(f"v_perm_b32 v{A0+v}, v{A0+16+2*v+1}, v{A0+16+2*v}, s32")
    E(f"buffer_store_dwordx4 {vr(A0)}, v3, s[8:11], s35 offen sc1\ns_nop 0\nk2_pkd:")
    LO, HI, EE, OO, SM, SQ = 180, 188, 196, 204, 212, 214
    E(f"v_mov_b32 v{SM}, 0\nv_mov_b32 v{SM+1}, 0\nv_mov_b32 v{SQ}, 0\nv_mov_b32 v{SQ+1}, 0")
    for k in range(5):
        lo, hi = LD+8*k, LD+8*k+4
        for u in range(4):
            E(f"""v_lshlrev_b32 v{LO+2*u}, 16, v{lo+u}
            v_and_b32 v{LO+2*u+1}, 0xffff0000, v{lo+u}
            v_and_b32 v{HI+2*u}, 0xffff0000, v{hi+3-u}
            v_lshlrev_b32 v{HI+2*u+1}, 16, v{hi+3-u}""")
        if k == 4:
            E(f"v_lshlrev_b32 v12, 16, v12\nv_cndmask_b32 v{HI+7}, v{HI+7}, v12, s[30:31]")
        for u in range(4):
            E(f"""v_pk_add_f32 {vr(EE+2*u,2)}, {vr(LO+2*u,2)}, {vr(HI+2*u,2)}
            v_pk_add_f32 {vr(OO+2*u,2)}, {vr(LO+2*u,2)}, {vr(HI+2*u,2)} neg_lo:[0,1] neg_hi:[0,1]
            v_pk_fma_f32 {vr(SQ,2)}, {vr(LO+2*u,2)}, {vr(LO+2*u,2)}, {vr(SQ,2)}
            v_pk_add_f32 {vr(SM,2)}, {vr(SM,2)}, {vr(EE+2*u,2)}
            v_pk_fma_f32 {vr(SQ,2)}, {vr(HI+2*u,2)}, {vr(HI+2*u,2)}, {vr(SQ,2)}""")
        if k == 4:
            E(f"v_cndmask_b32 v{EE+7}, v{EE+7}, v{LO+7}, s[30:31]\nv_cndmask_b32 v{OO+7}, v{OO+7}, v{HI+7}, s[30:31]")
        for u in range(4): E(f"v_cvt_pk_bf16_f32 v{EE+u}, v{EE+2*u}, v{EE+2*u+1}")
        for u in range(4): E(f"v_cvt_pk_bf16_f32 v{OO+u}, v{OO+2*u}, v{OO+2*u+1}")
        E(f"ds_write_b128 v6, {vr(EE)} offset:{L_X + 8*k*XFS}\nds_write_b128 v6, {vr(OO)} offset:{L_X + (40+8*k)*XFS}")
    E(f"""v_add_f32 v{SM}, v{SM}, v{SM+1}
    v_add_f32 v{SQ}, v{SQ}, v{SQ+1}
    v_add_u32 v8, {L_R}, v8
    s_nop 0""")
    for d in ["quad_perm:[1,0,3,2]", "quad_perm:[2,3,0,1]", "row_half_mirror"]:
        E(f"""v_add_f32_dpp v{SM}, v{SM}, v{SM} {d} row_mask:0xf bank_mask:0xf
        v_add_f32_dpp v{SQ}, v{SQ}, v{SQ} {d} row_mask:0xf bank_mask:0xf
        s_nop 1""")
    E(f"""v_mul_f32 v{SM}, {f2h(1/640)}, v{SM}
    v_mul_f32 v{SQ}, {f2h(1/640)}, v{SQ}
    v_fma_f32 v{SQ}, -v{SM}, v{SM}, v{SQ}
    v_max_f32 v{SQ}, 0, v{SQ}
    v_add_f32 v{SQ}, {f2h(1e-5)}, v{SQ}
    v_rsq_f32 v{SQ}, v{SQ}
    v_lshrrev_b32 v9, 5, v0
    ds_write_b32 v8, v{SQ}
    v_lshlrev_b32 v9, 4, v9
    v_add_u32 v9, {L_R}, v9""")
    E.stamp('ln')
    E("s_waitcnt vmcnt(0) lgkmcnt(0)\ns_barrier")
    E.stamp('bar')

    def setup():
        E(f"""s_mul_i32 s24, s16, 81920
        s_and_b32 s25, s20, 31
        s_mul_i32 s25, s25, 10
        s_add_u32 s25, s25, s21
        s_lshl_b32 s25, s25, 13
        s_getreg_b32 s26, hwreg(HW_REG_XCC_ID)
        s_and_b32 s26, s26, 15
        s_add_u32 s26, s26, 16
        s_add_u32 s26, s26, s46
        s_mul_i32 s28, s16, 196608
        s_mul_i32 s29, s17, 5
        s_lshr_b32 s29, s29, 1
        s_mul_i32 s30, s17, 3
        s_lshr_b32 s30, s30, 1
        s_lshl_b32 s39, s17, 2
        s_add_u32 s39, s39, s18
        s_mul_i32 s44, s39, {60*KB}
        s_add_u32 s39, s44, {W1P}
        s_add_u32 s44, s44, {W2P}
        v_lshlrev_b32 v1, 4, v0
        v_and_b32 v14, 31, v0
        v_lshrrev_b32 v15, 5, v0
        v_and_b32 v2, 3, v14
        v_bfe_u32 v3, v14, 2, 1
        v_lshl_add_u32 v2, v3, 4, v2
        v_bfe_u32 v3, v14, 3, 2
        v_lshl_add_u32 v2, v3, 2, v2
        v_lshlrev_b32 v2, 2, v2
        v_lshl_add_u32 v2, v15, 9, v2
        s_lshl_b32 s23, s19, 5
        v_add_u32 v5, s23, v14
        v_sub_u32 v6, 63, v5
        v_sub_u32 v7, 32, v14
        v_and_b32 v7, 31, v7
        v_sub_u32 v8, 95, v5
        s_cmp_eq_u32 s19, 0
        s_cselect_b64 s[36:37], -1, 0
        v_cndmask_b32 v7, v8, v7, s[36:37]
        s_cmp_eq_u32 s16, 0
        s_cselect_b64 s[36:37], -1, 0
        v_cndmask_b32 v6, v6, v7, s[36:37]
        v_lshrrev_b32 v3, 4, v5
        v_lshlrev_b32 v3, 10, v3
        v_and_b32 v7, 15, v5
        v_lshl_add_u32 v3, v7, 4, v3
        v_lshl_add_u32 v3, v15, 8, v3
        v_lshrrev_b32 v4, 4, v6
        v_lshlrev_b32 v4, 10, v4
        v_and_b32 v7, 15, v6
        v_lshl_add_u32 v4, v7, 4, v4
        v_lshl_add_u32 v4, v15, 8, v4
        v_mov_b32 v9, v6
        v_add_u32 v6, 640, v6
        v_cmp_eq_u32 vcc, 0, v15
        s_and_b32 s23, s2, 0xc7
        v_and_b32 v12, 7, v0
        v_cndmask_b32 v5, v6, v5, vcc
        v_lshlrev_b32 v5, 3, v5
        v_lshl_add_u32 v12, v12, 3, s23
        v_lshlrev_b32 v12, 7, v12
        v_and_b32 v13, 7, v14
        v_lshrrev_b32 v7, 3, v14
        v_lshl_add_u32 v13, v7, 6, v13
        v_lshl_add_u32 v13, v15, 5, v13
        s_and_b32 s23, s17, 3
        s_lshl_b32 s23, s23, 3
        v_add_u32 v13, s23, v13
        v_lshlrev_b32 v13, 7, v13
        v_add_u32 v13, {FLAGG}, v13
        v_lshrrev_b32 v7, 4, v0
        v_and_b32 v8, 15, v0
        v_and_b32 v6, 1, v7
        s_and_b32 s23, s18, 1
        s_lshl_b32 s23, s23, 1
        v_add_u32 v6, s23, v6
        v_lshlrev_b32 v6, 8, v6
        v_lshl_add_u32 v6, v8, 4, v6
        v_lshl_add_u32 v6, v15, 10, v6""")
    def gen_M2():
        E(f"""v_and_b32 v224, 31, v0
        v_lshlrev_b32 v224, 6, v224
        v_add_u32 v224, s20, v224
        s_lshl_b32 s23, s18, 4
        v_lshrrev_b32 v225, 5, v0
        v_lshl_add_u32 v225, v225, 2, s23
        v_mul_u32_u24 v225, v225, v224
        s_lshl_b32 s23, s18, 11
        s_add_u32 s23, s23, {L_M2}
        v_add_u32 v226, s23, v1""")
        for kk in range(2):
            for u in range(4):
                E(f"""v_and_b32 v227, 2047, v225
                v_cvt_f32_u32 v227, v227
                v_mul_f32 v227, {f2h(1/2048)}, v227
                v_cos_f32 v228, v227
                v_sin_f32 v229, v227
                v_add_u32 v225, v225, v224
                v_cvt_pk_bf16_f32 v{232+4*kk+u}, v228, v229""")
            if kk == 0: E("v_lshl_add_u32 v225, v224, 2, v225")
            E(f"ds_write_b128 v226, {vr(232+4*kk)} offset:{1024*kk}")
    def res_loads(L):
        l = lab('nor'); E(f"s_cmp_ge_u32 s18, s22\ns_cbranch_scc1 {l}")
        E("s_lshl_b32 s33, s21, 12\ns_add_u32 s33, s33, s24")
        if L == 0:
            E(f"""s_sub_u32 s23, 64, s16
            s_cmp_eq_u32 s16, 0
            s_cselect_b32 s23, 32, s23
            v_mov_b32 v7, s23
            v_mov_b32 v8, s16
            v_cmp_gt_u32 vcc, 32, v9
            v_and_b32 v9, 31, v9
            v_and_b32 v10, 31, v0
            v_cndmask_b32 v7, v7, v8, vcc
            v_lshl_add_u32 v9, v9, 6, v7
            v_mul_u32_u24 v9, 1280, v9
            v_lshl_add_u32 v10, v10, 6, s20
            v_mul_u32_u24 v10, 1280, v10
            v_lshrrev_b32 v7, 5, v0
            v_lshlrev_b32 v7, 4, v7
            s_lshl_b32 s23, s21, 6
            s_add_u32 s38, s23, 2
            v_add3_u32 v10, v10, v7, s38
            s_sub_u32 s38, 1232, s23
            v_sub_u32 v7, s38, v7
            v_add_u32 v7, v7, v9""")
            for rh in range(2): E.vmop(f"buffer_load_dwordx4 {vr(192+4*rh)}, v10, s[4:7], 0 offen offset:{32*rh}", 'res')
            for rh in range(2): E.vmop(f"buffer_load_dwordx4 {vr(200+4*rh)}, v7, s[4:7], 0 offen offset:{32*(1-rh)}", 'res')
            E.vmop("buffer_load_ushort v8, v9, s[4:7], 0 offen", 'res')
        else:
            E(f"s_add_u32 s34, s33, {LBASE+LSTR+XTIN}\ns_add_u32 s35, s34, 40960")
            for rh in range(2): E.vmop(f"buffer_load_dwordx4 {vr(192+4*rh)}, v3, s[8:11], s34 offen offset:{512*rh} {DS}", 'res')
            for rh in range(2): E.vmop(f"buffer_load_dwordx4 {vr(200+4*rh)}, v4, s[8:11], s35 offen offset:{512*rh} {DS}", 'res')
        E(f"{l}:")
    def t_loads(L):
        E(f"s_add_u32 s31, s25, {LBASE+TT+L*TSTR}\ns_add_u32 s32, s31, 4096")
        for k in range(8):
            for u in range(4):
                E.vmop(f"buffer_load_dword v{160+4*k+u}, v2, s[8:11], s{31 if k < 4 else 32} offen offset:{(k%4)*1024+u*128} sc1", ('T', k))
    def w1_loads(p0, p1, tagp='W1'):
        for p in range(p0, p1):
            E(f"s_add_u32 s23, s29, {p}\ns_cmp_ge_u32 s23, 20\ns_cselect_b32 s38, 20, 0\ns_sub_u32 s23, s23, s38\ns_mul_i32 s23, s23, 3072\ns_add_u32 s23, s23, s39")
            for t in range(3):
                E.vmop(f"buffer_load_dwordx4 {vr(16+12*(p%12)+4*t)}, v1, s[8:11], s23 offen offset:{1024*t}", (tagp, p))
    def w2_loads(kk):
        E(f"s_add_u32 s23, s30, {kk}\ns_cmp_ge_u32 s23, 12\ns_cselect_b32 s38, 12, 0\ns_sub_u32 s23, s23, s38\ns_mul_i32 s23, s23, 5120\ns_add_u32 s23, s23, s44\ns_add_u32 s38, s23, 4096")
        for t in range(5):
            E.vmop(f"buffer_load_dwordx4 {ar(20*kk+4*t)}, v1, s[8:11], {'s23' if t < 4 else 's38'} offen offset:{1024*(t%4)}", 'W2')
    def gflag(val):
        E(f"""s_add_u32 s23, s46, {val}
        v_mov_b32 v15, s23
        v_mov_b32 v14, s45
        s_mov_b32 s23, {FLAGG}
        s_mov_b64 exec, 1
        buffer_store_dword v15, v14, s[8:11], s23 offen sc1
        s_mov_b64 exec, -1""")
    def spin(loads, n, val, t=252):
        l = lab('poll'); l2 = lab('pout')
        E(f"""s_mov_b32 s38, 0
        s_add_u32 s23, s46, {val}
        {l}:
        {loads}
        s_add_u32 s38, s38, 1
        s_cmp_gt_u32 s38, {SPIN}
        s_cbranch_scc1 {l2}
        s_waitcnt vmcnt(0)""")
        for i in range(n): E(f"v_subrev_u32 v{t+i}, s23, v{t+i}")
        if n > 1: E(f"v_max3_u32 v{t}, v{t}, v{t+1}, v{t+2}")
        if n == 4: E(f"v_max_u32 v{t}, v{t}, v{t+3}")
        E(f"v_cmp_lt_u32 vcc, 15, v{t}\ns_cbranch_vccnz {l}\n{l2}:")
    poll = lambda val: spin(f"buffer_load_dwordx4 v[252:255], v12, s[8:11], 0 offen offset:{FLAGC} sc1", 4, val)
    gpoll = lambda val: spin("buffer_load_dwordx3 v[252:254], v13, s[8:11], 0 offen sc1", 3, val)
    def publish(val):
        l = lab('pub'); l2 = lab('pubs')
        E(f"""s_add_u32 s23, s46, {val}
        v_mov_b32 v14, s45
        v_mov_b32 v15, s23
        s_cmp_lg_u32 s27, 0
        s_cbranch_scc1 {l2}
        s_mov_b64 exec, 1
        buffer_store_dword v15, v14, s[8:11], 0 offen offset:{FLAGC}
        s_mov_b64 exec, -1
        {l}:""")
        OOL.append(f"""{l2}:
        buffer_wbl2 sc1
        s_waitcnt vmcnt(0)
        s_mov_b64 exec, 1
        buffer_store_dword v15, v14, s[8:11], 0 offen offset:{FLAGC} sc1
        s_mov_b64 exec, -1
        s_branch {l}""")
    def acquire():
        l = lab('acq'); l2 = lab('acqs')
        E(f"s_cmp_lg_u32 s27, 0\ns_cbranch_scc1 {l2}\n{l}:")
        OOL.append(f"{l2}:\nbuffer_inv sc1\ns_waitcnt vmcnt(0)\ns_branch {l}")
    def idload(): E.vmop(f"buffer_load_dword v11, v12, s[8:11], 0 offen offset:{FLAGC+16} sc1", 'id')
    def idcheck():
        d = lab('idd'); l = lab('idv')
        E(f"""v_cmp_ne_u32 vcc, s26, v11
        s_mov_b32 s27, {0 if OPT['fast'] else 1}
        s_cbranch_vccnz {l}
        {d}:""")
        OOL.append(f"""{l}:
        s_mov_b32 s38, 0
        s_add_u32 s23, s46, 16
        {l}a:
        buffer_load_dword v11, v12, s[8:11], 0 offen offset:{FLAGC+16} sc1
        s_add_u32 s38, s38, 1
        s_cmp_gt_u32 s38, {SPIN}
        s_cbranch_scc1 {l}b
        s_waitcnt vmcnt(0)
        v_subrev_u32 v14, s23, v11
        v_cmp_lt_u32 vcc, 15, v14
        s_cbranch_vccnz {l}a
        {l}b:
        v_cmp_ne_u32 vcc, s26, v11
        s_nop 1
        s_cmp_lg_u64 vcc, 0
        s_cselect_b32 s27, 1, s27
        s_branch {d}""")
    def sync(val, tag, post012=None, name=''):
        l3 = lab('w3'); lb = lab('sb')
        E(f"s_cmp_eq_u32 s18, 3\ns_cbranch_scc1 {l3}")
        E.waitvm(tag); publish(val); E.stamp('pub'+name)
        if post012: post012()
        E(f"s_branch {lb}\n{l3}:\ns_waitcnt vmcnt(0)")
        publish(val); poll(val)
        E(f"{lb}:\ns_waitcnt lgkmcnt(0)\ns_barrier"); E.lg = []; acquire(); E.stamp('poll'+name)
    def touch():
        E(f"v_lshlrev_b32 v14, 7, v0")
        for (base, sb, ms, n) in ((LBASE+XTMID, 's24', 10240, 80), (LBASE+HH, 's28', 24576, 192), (XF2, 's24', 10240, 80)):
            E(f"s_mul_i32 s38, s17, {ms}\ns_add_u32 s23, {sb}, s38\ns_add_u32 s23, s23, {base}")
            for i in range(0, n, 64):
                if n - i < 64: E(f"s_mov_b64 exec, {hex((1 << (n-i)) - 1)}")
                E.vmop("buffer_load_dword v255, v14, s[8:11], s23 offen sc1", 'tch'); E("s_add_u32 s23, s23, 8192")
            E("s_mov_b64 exec, -1")
        E(f"s_mul_i32 s23, s16, 10240\ns_mul_i32 s38, s17, 1280\ns_add_u32 s23, s23, s38\ns_add_u32 s23, s23, {LBASE+SS}\ns_mov_b64 exec, 0x3ff")
        E.vmop("buffer_load_dword v255, v14, s[8:11], s23 offen sc1", 'tch')
        E(f"s_lshl_b32 s23, s16, 12\ns_lshl_b32 s38, s17, 9\ns_add_u32 s23, s23, s38\ns_add_u32 s23, s23, {S2B}\ns_mov_b64 exec, 0xf")
        E.vmop("buffer_load_dword v255, v14, s[8:11], s23 offen sc1", 'tch')
        E("s_mov_b64 exec, -1")
    def p2a(L):
        lb = LBASE + L*LSTR
        l = lab('nou')
        E(f"s_cmp_ge_u32 s18, s22\ns_cbranch_scc1 {l}")
        t_loads(L)
        E(f"v_add_u32 v14, {L_M2}, v1")
        for k in range(8): E.lgop(f"ds_read_b128 {vr(224+4*k)}, v14 offset:{1024*k}", ('M2', k))
        E(f"""s_cmp_eq_u32 s21, 9
        s_cselect_b32 s37, -1, 0
        s_mov_b32 s36, 0""")
        for k in range(8):
            E.waitvm(('T', k)); E.waitlg(('M2', k))
            if k == 0: E.stamp('T0')
            E(f"v_mfma_f32_32x32x16_bf16 {vr(208,16)}, {vr(160+4*k)}, {vr(224+4*k)}, {'0' if k == 0 else vr(208,16)}")
        if L == 0: idload()
        E.waitvm('res')
        LO, HI, D = 160, 176, 208
        for u in range(8):
            E(f"""v_lshlrev_b32 v{LO+2*u}, 16, v{192+u}
            v_and_b32 v{LO+2*u+1}, 0xffff0000, v{192+u}""")
            if L: E(f"v_lshlrev_b32 v{HI+2*u}, 16, v{200+u}\nv_and_b32 v{HI+2*u+1}, 0xffff0000, v{200+u}")
            else: E(f"v_and_b32 v{HI+2*u}, 0xffff0000, v{200+(u^3)}\nv_lshlrev_b32 v{HI+2*u+1}, 16, v{200+(u^3)}")
        if L == 0: E(f"v_lshlrev_b32 v8, 16, v8\nv_cndmask_b32 v{HI+15}, v{HI+15}, v8, s[36:37]")
        XS = 'sc1' if L == 0 and OPT['xsc'] else ''
        for u in range(8): E(f"v_pk_add_f32 {vr(LO+2*u,2)}, {vr(LO+2*u,2)}, {vr(D+2*u,2)}")
        E(f"v_cndmask_b32 v{D+15}, v{D+15}, 0, s[36:37]")
        for u in range(8): E(f"v_cvt_pk_bf16_f32 v{192+u}, v{LO+2*u}, v{LO+2*u+1}")
        E(f"s_add_u32 s34, s33, {lb+XTMID}\ns_add_u32 s35, s34, 40960")
        for rh in range(2): E.vmop(f"buffer_store_dwordx4 {vr(192+4*rh)}, v3, s[8:11], s34 offen offset:{512*rh} {XS}", 'st')
        for u in range(8): E(f"v_pk_add_f32 {vr(HI+2*u,2)}, {vr(HI+2*u,2)}, {vr(D+2*u,2)}")
        for u in range(8): E(f"v_cvt_pk_bf16_f32 v{200+u}, v{HI+2*u}, v{HI+2*u+1}")
        for rh in range(2): E.vmop(f"buffer_store_dwordx4 {vr(200+4*rh)}, v4, s[8:11], s35 offen offset:{512*rh} {XS}", 'st')
        for (X, o) in ((LO, 224), (HI, 228)):
            E(f"v_pk_mul_f32 {vr(o+2,2)}, {vr(X,2)}, {vr(X,2)}\nv_pk_add_f32 {vr(o,2)}, {vr(X,2)}, {vr(X+2,2)}\nv_pk_fma_f32 {vr(o+2,2)}, {vr(X+2,2)}, {vr(X+2,2)}, {vr(o+2,2)}")
            for u in range(2, 8):
                E(f"v_pk_add_f32 {vr(o,2)}, {vr(o,2)}, {vr(X+2*u,2)}\nv_pk_fma_f32 {vr(o+2,2)}, {vr(X+2*u,2)}, {vr(X+2*u,2)}, {vr(o+2,2)}")
        E(f"""v_add_f32 v224, v224, v225
        v_add_f32 v225, v226, v227
        v_add_f32 v228, v228, v229
        v_add_f32 v229, v230, v231
        s_mul_i32 s23, s16, 10240
        s_lshl_b32 s38, s21, 9
        v_permlane32_swap_b32 v224, v228
        v_permlane32_swap_b32 v225, v229
        s_add_u32 s23, s23, s38
        s_add_u32 s23, s23, {lb+SS}
        v_pk_add_f32 v[224:225], v[224:225], v[228:229]""")
        E.vmop("buffer_store_dwordx2 v[224:225], v5, s[8:11], s23 offen", 'st')
        if L == 0:
            OOL.append(f"{l}:\nbuffer_load_dword v11, v12, s[8:11], 0 offen offset:{FLAGC+16} sc1\ns_waitcnt vmcnt(0)\ns_branch {l}x")
            E(f"{l}x:")
        else: E(f"{l}:")

    def rot(dst, base, add, mod, mul, plus):
        return f"s_add_u32 {dst}, {base}, {add}\ns_cmp_ge_u32 {dst}, {mod}\ns_cselect_b32 s38, {mod}, 0\ns_sub_u32 {dst}, {dst}, s38\ns_mul_i32 {dst}, {dst}, {mul}\ns_add_u32 {dst}, {dst}, {plus}"
    w1s = lambda p: f"s{42+p}" if p >= 11 else ['s96','s97','s98','s99','s43','s46','s47','s62'][10-p]
    def ffn1_pre(L):
        lb = LBASE + L*LSTR
        E(f"s_add_u32 s41, s24, {lb+XTMID}\ns_add_u32 s42, s29, s18\ns_lshl_b32 s40, s18, 12")
        for cc in range(5): E(rot(f"s{48+cc}", 's42', 4*cc, 20, 4096, 's41'))
        for p in range(NS, 20): E(rot(w1s(p), 's29', p, 20, 3072, 's39'))
        if L == 0:
            for kk in range(NW2, KS): E(rot(f"s{31+kk-NW2}", 's30', kk, 12, 5120, 's44'))
        E(f"""s_mul_i32 s42, s18, 3072
        s_min_u32 s42, s42, 7168
        s_mul_i32 s63, s16, 10240
        s_add_u32 s63, s63, s42
        s_add_u32 s63, s63, {lb+SS}
        s_add_u32 s42, s42, {L_RED}
        s_add_u32 m0, s40, {L_X}""")
    def ffn1(L):
        lb = LBASE + L*LSTR
        ACC, BF, ONES = 160, 208, 240
        xld = lambda cc, tt: E.vmop(f"buffer_load_dwordx4 v1, s[8:11], s{48+cc} offen offset:{1024*tt} {DS} lds", ('X', cc))
        for tt in range(4): xld(0, tt)
        E("s_mov_b32 m0, s42\nv_add_u32 v15, 0x10000, v1")
        for i in range(3): E.vmop(f"buffer_load_dwordx4 v1, s[8:11], s63 offen offset:{1024*i} {DS} lds", ('X', 1))
        E(f"s_add_u32 m0, s40, {L_X + 16384}\nv_lshlrev_b32 v14, 3, v0")
        for tt in range(4): xld(1, tt)
        E(f"v_add_u32 v14, {L_RED}, v14\nv_add_u32 v10, 4096, v1")
        if L == 0:
            for u in range(4): E(f"v_mov_b32 v{ONES+u}, 0x3f803f80")
            E("s_nop 0")
            E.waitvm(('W1', NS-1)); E("s_nop 0")
            for p in range(NS):
                for t in range(3):
                    E(f"v_mfma_f32_16x16x32_bf16 {ar(240+4*t)}, {vr(16+12*p+4*t)}, {vr(ONES)}, {'0' if p == 0 else ar(240+4*t)}")
        rdB = lambda p, tt: E.lgop(f"ds_read_b128 {vr(BF+16*(p&1)+4*tt)}, {'v1' if p < 16 else 'v15'} offset:{L_X + (p%16)*4096 + tt*1024}", ('B', p, tt))
        Q = []
        w1one = lambda p, t: E.vmop(f"buffer_load_dwordx4 {vr(16+12*(p%12)+4*t)}, v1, s[8:11], {w1s(p)} offen offset:{1024*t}", ('W1', p))
        w2one = lambda kk, t: E.vmop(f"buffer_load_dwordx4 {ar(20*kk+4*t)}, {'v1' if t < 4 else 'v10'}, s[8:11], s{31+kk-NW2} offen offset:{1024*(t%4)}", 'W2')
        for it in list(range(NS, 8)) + [('X', 2)] + list(range(max(NS, 8), 12)) + [('X', 3), 12, 13, 14, 15, ('X', 4), 16, 17, 18, 19]:
            if isinstance(it, tuple): Q += [(0, (lambda c=it[1], t=t: xld(c, t)), (it[1] if t == 0 else None)) for t in range(4)]
            else: Q += [(max(it-11, 0), (lambda p=it, t=t: w1one(p, t)), None) for t in range(3)]
        if L == 0:
            for kk in range(NW2, KS): Q += [(0, (lambda k=kk, t=t: w2one(k, t)), None) for t in range(5)]
        E.waitvm(('X', 0)); E("s_barrier"); E.stamp('X0')
        for tt in range(4): rdB(0, tt)
        ST, SM = 244, 248
        for p in range(20):
            n = 0
            slots = (5, 7, 9) if p < OPT['p4s'] else (4, 6, 8, 10)
            for tt in range(4):
                for t in range(3):
                    if n == 0: E.waitvm(('W1', p))
                    if t == 0: E.waitlg(('B', p, tt))
                    a = ACC + 16*t + 4*tt
                    E(f"v_mfma_f32_16x16x32_bf16 {vr(a)}, {vr(16+12*(p%12)+4*t)}, {vr(BF+16*(p&1)+4*tt)}, {'0' if p == 0 else vr(a)}")
                    n += 1
                    if n == 1 and p < 19 and (p+1) % 4 == 0: E.waitvm(('X', (p+1)//4)); E("s_barrier")
                    if n in (2, 4, 6, 8) and p < 19: rdB(p+1, n//2-1)
                    if n+1 in slots and Q and Q[0][2] is not None: E(f"s_add_u32 m0, s40, {L_X + Q[0][2]*16384}")
                    if n in slots and Q and Q[0][0] <= p: Q.pop(0)[1]()
                    if 4 <= p <= 8:
                        if n in (1, 3): E.lgop(f"ds_read2st64_b64 {vr(SM+2*(n-1))}, v14 offset0:{4*(p-4)+n-1} offset1:{4*(p-4)+n}", ('S', p))
                        if n == 10:
                            E.waitlg(('S', p))
                            E(f"v_add_f32 v{SM}, v{SM}, v{SM+2}\nv_add_f32 v{SM+1}, v{SM+1}, v{SM+3}")
                        if n == 11: E(f"v_add_f32 v{SM+4}, v{SM+4}, v{SM+6}\nv_add_f32 v{SM+5}, v{SM+5}, v{SM+7}")
                        if n == 12:
                            if p == 4: E(f"v_add_f32 v{ST}, v{SM}, v{SM+4}\nv_add_f32 v{ST+1}, v{SM+1}, v{SM+5}")
                            else: E(f"v_add3_f32 v{ST}, v{SM}, v{SM+4}, v{ST}\nv_add3_f32 v{ST+1}, v{SM+1}, v{SM+5}, v{ST+1}".replace('v_add3_f32', 'v_xadd') if 0 else
                                    f"v_add_f32 v{ST}, v{ST}, v{SM}\nv_add_f32 v{ST+1}, v{ST+1}, v{SM+1}\nv_add_f32 v{ST}, v{ST}, v{SM+4}\nv_add_f32 v{ST+1}, v{ST+1}, v{SM+5}")
                    if p == 9:
                        seq = [f"v_mul_f32 v{ST}, {f2h(1/640)}, v{ST}", f"v_mul_f32 v{ST+1}, {f2h(1/640)}, v{ST+1}",
                               f"v_fma_f32 v{ST+1}, -v{ST}, v{ST}, v{ST+1}", f"v_max_f32 v{ST+1}, 0, v{ST+1}",
                               f"v_add_f32 v{ST+1}, {f2h(1e-5)}, v{ST+1}", f"v_rsq_f32 v{ST+1}, v{ST+1}",
                               f"v_and_b32 v{ST+2}, 15, v0", f"v_lshlrev_b32 v{ST+2}, 2, v{ST+2}", f"s_lshl_b32 s23, s18, 6",
                               f"v_add_u32 v{ST+3}, s23, v{ST+2}", f"v_sub_f32 v{ST}, 0, v{ST}", None]
                        if seq[n-1]: E(seq[n-1])
                    if p == 10 and n in (1, 3, 10, 11): tt2 = (1, 3, 10, 11).index(n); E.lgop(f"ds_bpermute_b32 v{SM+2*tt2}, v{ST+2}, v{ST} offset:{64*tt2}", 'm')
                    if p == 10 and n == 12: E.lgop(f"ds_bpermute_b32 v7, v{ST+3}, v{ST+1}", 'm')
            if L == 0 and p >= NS:
                for t in range(3):
                    E(f"v_mfma_f32_16x16x32_bf16 {ar(240+4*t)}, {vr(16+12*(p%12)+4*t)}, {vr(ONES)}, {ar(240+4*t)}")
        assert not Q, len(Q)
        E.stamp('f1end')
        CS = 128
        E("s_nop 5")
        for i in range(12): E(f"v_accvgpr_read_b32 v{CS+i}, a{240+i}")
        E.waitlg()
        E(f"s_mul_i32 s23, s17, 6\ns_add_u32 s38, s23, s18\ns_lshl_b32 s38, s38, 12\ns_add_u32 s38, s38, s28\ns_add_u32 s38, s38, {lb+HH}")
        E(f"s_lshr_b32 s35, s18, 1\ns_add_u32 s35, s35, s23\ns_add_u32 s35, s35, 4\ns_lshl_b32 s35, s35, 12\ns_add_u32 s35, s35, s28\ns_add_u32 s35, s35, {lb+HH}")
        O = 16
        for tt in range(4):
            for t in range(3):
                a = ACC + 16*t + 4*tt
                for u in range(2):
                    E(f"v_pk_fma_f32 {vr(a+2*u,2)}, {vr(CS+4*t+2*u,2)}, {vr(SM+2*tt,2)}, {vr(a+2*u,2)} op_sel_hi:[1,0,1]")
            for t in range(3):
                a = ACC + 16*t + 4*tt
                o = O + 4*tt + 2*t if t < 2 else O + 16 + 2*tt
                for u in range(2): E(f"v_cvt_pk_bf16_f32 v{o+u}, v{a+2*u}, v{a+2*u+1}")
            for t in range(3):
                o = O + 4*tt + 2*t if t < 2 else O + 16 + 2*tt
                for u in range(2): E(f"v_pk_max_i16 v{o+u}, v{o+u}, 0")
            E.vmop(f"buffer_store_dwordx4 {vr(O+4*tt)}, v1, s[8:11], s38 offen offset:{1024*tt}", 'st')
            if tt & 1:
                o = O + 16 + 2*(tt-1)
                E(f"s_nop 0\nv_permlane32_swap_b32 v{o}, v{o+2}\nv_permlane32_swap_b32 v{o+1}, v{o+3}")
                E.vmop(f"buffer_store_dwordx4 {vr(o)}, v6, s[8:11], s35 offen offset:{1024*(tt-1)}", 'st')

    def ffn2(L):
        lb = LBASE + L*LSTR
        HF, ACC = 16, (208, 228)
        E(f"s_mul_i32 s34, s18, {12*4096}\ns_add_u32 s34, s34, s28\ns_add_u32 s34, s34, {lb+HH}")
        for kk in range(12):
            E(f"s_add_u32 s23, s30, {kk}\ns_cmp_ge_u32 s23, 12\ns_cselect_b32 s38, 12, 0\ns_sub_u32 s23, s23, s38\ns_lshl_b32 s23, s23, 12\ns_add_u32 s{52+kk}, s23, s34")
        for b in range(4):
            E(f"s_add_u32 s23, s18, {b+1}\ns_and_b32 s23, s23, 3\ns_lshl_b32 s23, s23, 10\nv_add_u32 v{248+b}, s23, v1")
        HQ = [(b, kk) for b in range(4) for kk in range(12)]
        def hld():
            b, kk = HQ.pop(0)
            E.vmop(f"buffer_load_dwordx4 {vr(HF+48*b+4*kk)}, v{248+b}, s[8:11], s{52+kk} offen {DS}", ('h', b, kk))
        E(f"""v_lshrrev_b32 v14, 4, v0
        v_and_b32 v15, 15, v0
        s_mul_i32 s23, s17, 5
        v_add_u32 v8, s23, v14
        v_lshrrev_b32 v9, 2, v8
        v_lshlrev_b32 v9, 12, v9
        v_and_b32 v10, 3, v8
        v_lshl_add_u32 v9, v10, 8, v9
        v_lshlrev_b32 v10, 9, v8
        s_lshl_b32 s38, s18, 10
        v_lshl_add_u32 v11, v15, 4, s38
        v_add_u32 v8, v9, v11
        s_add_u32 s23, s23, 4
        s_lshr_b32 s35, s23, 2
        s_lshl_b32 s35, s35, 12
        s_and_b32 s36, s23, 3
        s_lshl_b32 s36, s36, 8
        s_add_u32 s35, s35, s36
        v_lshl_add_u32 v9, v14, 2, v11
        v_add_u32 v9, s35, v9
        s_lshr_b32 s35, s18, 1
        s_mul_i32 s35, s35, 40960
        s_and_b32 s36, s18, 1
        s_lshl_b32 s36, s36, 8
        s_add_u32 s35, s35, s36
        v_lshl_add_u32 v11, v15, 4, s35
        v_add_u32 v10, v10, v11
        s_lshl_b32 s23, s23, 9
        v_lshl_add_u32 v11, v14, 2, v11
        v_add_u32 v11, s23, v11""")
        RES, PART = 16, 64
        sync(4*L+2, 'st', post012=(lambda: [w2_loads(kk) for kk in range(KS, 12)]) if L == 0 else None, name='h')
        for i in range(OPT['hpre']): hld()
        E.waitvm('W2')
        for b in range(4):
            A = ACC[b & 1]; P = ACC[(b+1) & 1]
            n = 0
            for kk in range(12):
                E.waitvm(('h', b, kk))
                if b == 0 and kk == 0: E.stamp('h0')
                for t in range(5):
                    E(f"v_mfma_f32_16x16x32_bf16 {vr(A+4*t)}, {ar(20*kk+4*t)}, {vr(HF+48*b+4*kk)}, {'0' if kk == 0 else vr(A+4*t)}")
                    n += 1
                    if t == 1 and HQ: hld()
                    if b >= 1 and n == 9:
                        E(f"s_add_u32 s23, s18, {b}\ns_and_b32 s23, s23, 3\ns_mul_i32 s23, s23, {3*5120}\ns_add_u32 s23, s23, {L_RED + (b-1)*5120}\nv_add_u32 v14, s23, v1")
                    if b >= 1 and 11 <= n <= 19 and n % 2 == 1:
                        t2 = (n-11)//2
                        E.lgop(f"ds_write_b128 v14, {vr(P+4*t2)} offset:{1024*t2}", 'red')
                    if b == 1 and n == 25:
                        E(f"s_add_u32 s34, s24, {lb+XTMID}\ns_add_u32 s35, s34, 40960")
                        E.vmop(f"buffer_load_dwordx4 {vr(RES)}, v8, s[8:11], s34 offen {DS}", 'res')
                        E.vmop(f"buffer_load_dwordx4 {vr(RES+4)}, v8, s[8:11], s35 offen {DS}", 'res')
                        E.vmop(f"buffer_load_dword v{RES+8}, v9, s[8:11], s34 offen {DS}", 'res')
                        E.vmop(f"buffer_load_dword v{RES+9}, v9, s[8:11], s35 offen {DS}", 'res')
                    if b == 3 and n == 30:
                        E.waitlg(); E(f"s_barrier\ns_mul_i32 s23, s18, {3*5120}\ns_add_u32 s23, s23, {L_RED}\nv_add_u32 v14, s23, v1")
                    if b == 3 and 32 <= n < 47:
                        i = n - 32
                        E.lgop(f"ds_read_b128 {vr(PART+4*i)}, v14 offset:{1024*i}", 'part')
        E.stamp('f2end')
        A = ACC[1]
        X = 32
        E.waitvm('res')
        pr = lambda u: (8*(u >> 2) + (u & 3), 8*(u >> 2) + (u & 3) + 4) if u < 8 else (2*u, 2*u+1)
        for u in range(10): E(f"v_lshlrev_b32 v{X+pr(u)[0]}, 16, v{RES+u}\nv_and_b32 v{X+pr(u)[1]}, 0xffff0000, v{RES+u}")
        E.waitlg()
        for u in range(10):
            E(f"v_pk_add_f32 {vr(PART+2*u,2)}, {vr(PART+2*u,2)}, {vr(PART+20+2*u,2)}\nv_pk_add_f32 {vr(A+2*u,2)}, {vr(A+2*u,2)}, {vr(PART+40+2*u,2)}")
        for u in range(10):
            E(f"v_pk_add_f32 {vr(A+2*u,2)}, {vr(A+2*u,2)}, {vr(PART+2*u,2)}")
        E("v_mov_b32 v14, v7")
        for u in range(10):
            E(f"v_pk_fma_f32 {vr(X+2*u,2)}, {vr(A+2*u,2)}, v[14:15], {vr(X+2*u,2)} op_sel_hi:[1,0,1]")
        O = 64
        if L == 0:
            nb = LBASE + LSTR
            for u in range(10): E(f"v_cvt_pk_bf16_f32 v{O+u}, v{X+pr(u)[0]}, v{X+pr(u)[1]}")
            EE, OO = 80, 92
            for u in range(4):
                E(f"v_pk_add_f32 {vr(EE+2*u,2)}, {vr(X+2*u,2)}, {vr(X+8+2*u,2)}\nv_pk_add_f32 {vr(OO+2*u,2)}, {vr(X+2*u,2)}, {vr(X+8+2*u,2)} neg_lo:[0,1] neg_hi:[0,1]")
            E(f"""v_pk_add_f32 {vr(EE+8,2)}, {vr(X+16,2)}, {vr(X+18,2)}
            v_pk_add_f32 {vr(OO+8,2)}, {vr(X+16,2)}, {vr(X+18,2)} neg_lo:[0,1] neg_hi:[0,1]
            s_cmp_eq_u32 s17, 7
            s_cselect_b32 s37, 0xffff0000, 0
            s_mov_b32 s36, 0
            s_add_u32 s34, s24, {XF2}
            s_add_u32 s35, s34, 20480
            v_cndmask_b32 v{EE+9}, v{EE+9}, v{X+17}, s[36:37]
            v_cndmask_b32 v{OO+9}, v{OO+9}, v{X+19}, s[36:37]""")
            for u in range(5):
                a, b = (u, u+4) if u < 4 else (8, 9)
                E(f"v_cvt_pk_bf16_f32 v{EE+u}, v{EE+a}, v{EE+b}\nv_cvt_pk_bf16_f32 v{OO+u}, v{OO+a}, v{OO+b}")
            E.vmop(f"buffer_store_dwordx4 {vr(EE)}, v10, s[8:11], s34 offen", 'st')
            E.vmop(f"buffer_store_dwordx4 {vr(OO)}, v10, s[8:11], s35 offen", 'st')
            E.vmop(f"buffer_store_dword v{EE+4}, v11, s[8:11], s34 offen", 'st')
            E.vmop(f"buffer_store_dword v{OO+4}, v11, s[8:11], s35 offen", 'st')
            E(f"v_pk_mul_f32 v[106:107], {vr(X,2)}, {vr(X,2)}\nv_pk_add_f32 v[104:105], {vr(X,2)}, {vr(X+2,2)}\nv_pk_fma_f32 v[106:107], {vr(X+2,2)}, {vr(X+2,2)}, v[106:107]")
            for u in range(2, 10): E(f"v_pk_add_f32 v[104:105], v[104:105], {vr(X+2*u,2)}\nv_pk_fma_f32 v[106:107], {vr(X+2*u,2)}, {vr(X+2*u,2)}, v[106:107]")
            E(f"""v_add_f32 v104, v104, v105
            v_add_f32 v105, v106, v107
            s_lshl_b32 s23, s16, 12
            s_lshl_b32 s38, s17, 9
            s_add_u32 s23, s23, s38
            v_permlane32_swap_b32 v104, v105
            s_lshl_b32 s38, s18, 7
            s_add_u32 s23, s23, s38
            v_add_f32 v104, v104, v105
            s_add_u32 s23, s23, {S2B}
            v_mov_b32 v105, v104
            v_and_b32 v106, 15, v0
            v_lshrrev_b32 v107, 5, v0
            v_permlane16_swap_b32 v104, v105
            v_lshlrev_b32 v106, 3, v106
            v_lshl_add_u32 v106, v107, 2, v106
            v_add_f32 v104, v104, v105""")
            E.vmop("buffer_store_dword v104, v106, s[8:11], s23 offen", 'st')
            E(f"s_add_u32 s34, s24, {nb+XTIN}\ns_add_u32 s35, s34, 40960")
            E.vmop(f"buffer_store_dwordx4 {vr(O)}, v8, s[8:11], s34 offen", 'st')
            E.vmop(f"buffer_store_dwordx4 {vr(O+4)}, v8, s[8:11], s35 offen", 'st')
            E.vmop(f"buffer_store_dword v{O+8}, v9, s[8:11], s34 offen", 'st')
            E.vmop(f"buffer_store_dword v{O+9}, v9, s[8:11], s35 offen", 'st')
        else:
            for u in range(4): E(f"v_cvt_pk_bf16_f32 v{O+u}, v{X+u}, v{X+4+u}\nv_cvt_pk_bf16_f32 v{O+4+u}, v{X+15-u}, v{X+11-u}")
            E(f"""v_cvt_pk_bf16_f32 v{O+8}, v{X+16}, v{X+17}
            v_cvt_pk_bf16_f32 v{O+9}, v{X+18}, v{X+19}
            s_sub_u32 s23, 64, s16
            s_cmp_eq_u32 s16, 0
            s_cselect_b32 s23, 32, s23
            s_cmp_lt_u32 s18, 2
            s_cselect_b32 s23, s16, s23
            s_and_b32 s38, s18, 1
            s_lshl_b32 s38, s38, 10
            s_add_u32 s23, s23, s38
            v_and_b32 v80, 15, v0
            v_lshl_add_u32 v80, v80, 6, s23
            v_mul_u32_u24 v80, 1280, v80
            v_lshrrev_b32 v81, 4, v0
            s_mul_i32 s23, s17, 80
            s_add_u32 s38, s23, 2
            v_lshl_add_u32 v82, v81, 4, s38
            v_add_u32 v82, v82, v80
            buffer_store_dwordx4 {vr(O)}, v82, s[12:15], 0 offen {'sc1' if OPT['outsc'] else ''}
            s_sub_u32 s38, 1264, s23
            v_lshlrev_b32 v83, 4, v81
            v_sub_u32 v83, s38, v83
            v_add_u32 v83, v83, v80
            buffer_store_dwordx4 {vr(O+4)}, v83, s[12:15], 0 offen {'sc1' if OPT['outsc'] else ''}
            s_add_u32 s38, s23, 66
            v_lshl_add_u32 v84, v81, 2, s38
            v_add_u32 v84, v84, v80
            buffer_store_dword v{O+8}, v84, s[12:15], 0 offen {'sc1' if OPT['outsc'] else ''}
            s_sub_u32 s38, 1214, s23
            v_lshlrev_b32 v85, 2, v81
            v_sub_u32 v85, s38, v85
            v_add_u32 v86, -2, v85
            v_cmp_eq_u32 vcc, 640, v86
            v_add_u32 v85, v85, v80
            buffer_store_short v{O+9}, v85, s[12:15], 0 offen {'sc1' if OPT['outsc'] else ''}
            v_cndmask_b32 v86, v86, 0, vcc
            v_add_u32 v86, v86, v80
            buffer_store_short_d16_hi v{O+9}, v86, s[12:15], 0 offen {'sc1' if OPT['outsc'] else ''}""")

    def p4():
        def g():
            l = lab('nog')
            E(f"s_cmp_ge_u32 s18, s22\ns_cbranch_scc1 {l}")
            gen_G(E, 's21')
            E(f"{l}:"); E.stamp('gen')
        sync(3, None, post012=g, name='xf')
        E(f"""s_mul_i32 s23, s19, 40960
        s_add_u32 s23, s23, s24
        s_mul_i32 s38, s18, 10240
        s_add_u32 s23, s23, s38
        s_add_u32 s23, s23, {XF2}""")
        for i in range(10):
            if i % 4 == 0: E(f"s_add_u32 m0, s38, {L_X + 1024*i}\ns_add_u32 s34, s23, {1024*i}")
            E.vmop(f"buffer_load_dwordx4 v1, s[8:11], s34 offen offset:{1024*(i%4)} {DS} lds", 'XF')
        E(f"""v_and_b32 v14, 31, v0
        v_lshlrev_b32 v14, 3, v14
        s_lshl_b32 s23, s16, 12
        s_lshl_b32 s38, s19, 8
        s_add_u32 s23, s23, s38
        s_add_u32 s23, s23, {S2B}""")
        for m in range(8): E.vmop(f"buffer_load_dwordx2 {vr(224+2*m,2)}, v14, s[8:11], s23 offen offset:{512*m} {DS}", 'S')
        E.waitvm('S')
        for m in range(1, 8): E(f"v_pk_add_f32 v[224:225], v[224:225], {vr(224+2*m,2)}")
        E(f"""v_mul_f32 v224, {f2h(1/640)}, v224
        v_mul_f32 v225, {f2h(1/640)}, v225
        v_fma_f32 v225, -v224, v224, v225
        v_max_f32 v225, 0, v225
        v_add_f32 v225, {f2h(1e-5)}, v225
        v_rsq_f32 v225, v225
        s_lshl_b32 s23, s18, 8
        s_add_u32 s23, s23, {L_R}
        v_lshl_add_u32 v14, v0, 2, s23
        ds_write_b32 v14, v225
        v_lshrrev_b32 v9, 5, v0
        v_lshl_add_u32 v9, v9, 4, s23
        s_waitcnt lgkmcnt(0)
        s_barrier""")
        E.stamp('xf')
        l = lab('nou')
        E(f"""s_cmp_ge_u32 s18, s22
        s_cbranch_scc1 {l}
        v_mov_b32 v10, v13
        s_mul_i32 s32, s21, 8192
        s_lshl_b32 s33, s20, 7
        s_add_u32 s32, s32, s33
        s_add_u32 s32, s32, {LBASE + TSTR + TT}""")
        dft_unit(E, L_X, 512, L_M1, 'v9', 's32', 'sc1')
        E(f"v_mov_b32 v13, v10\n{l}:")

    NA, NB = OPT['na'], OPT['nb']
    E(f"""s_cmp_eq_u32 s18, 3
    s_cbranch_scc1 k2_w3a
    s_cmp_ge_u32 s18, s22
    s_cbranch_scc1 k2_nou0
    s_mul_i32 s32, s21, 8192
    s_lshl_b32 s33, s20, 7
    s_add_u32 s32, s32, s33
    s_add_u32 s32, s32, {LBASE + TT}""")
    dft_unit(E, L_X, XFS, L_M1, 'v9', 's32', 'sc1')
    E("k2_nou0:"); E.stamp('dft')
    E.waitvm(); gflag(1); E.stamp('gpub0')
    setup(); res_loads(0); gen_M2()
    E("s_barrier"); E.stamp('B1')
    w1_loads(0, NA)
    sv = list(E.vm)
    E("s_branch k2_B2\nk2_w3a:")
    gflag(1); setup()
    E(f"v_mov_b32 v14, s45\nv_mov_b32 v15, s26\ns_mov_b64 exec, 1\nbuffer_store_dword v15, v14, s[8:11], 0 offen offset:{FLAGC+4} sc1\ns_mov_b64 exec, -1")
    if OPT['touch'] == 1: touch()
    gen_M2()
    E(f"v_min_u32 v10, 26, v0\ns_mul_i32 s23, s17, 27\nv_add_u32 v10, s23, v10\nv_lshlrev_b32 v10, 7, v10\nv_add_u32 v10, {FLAGG+12}, v10")
    spin("buffer_load_dword v252, v10, s[8:11], 0 offen sc1", 1, 1)
    E.stamp('pkpoll')
    w1_loads(0, NS)
    E("s_barrier")
    for kk in list(range(NW2)) + list(range(KS, 12)): w2_loads(kk)
    if OPT['touch'] == 2: touch()
    gpoll(1)
    E("k2_B2:\ns_waitcnt lgkmcnt(0)\ns_barrier"); E.lg = []; E.stamp('gpoll0')
    E.vm = sv
    E.pre = 'k2_a_'
    E("s_cmp_eq_u32 s18, 3\ns_cbranch_scc1 k2_w3b")
    p2a(0)
    E.stamp('p2a')
    E.waitvm(); idcheck(); publish(1); E.stamp('pub1')
    w1_loads(NA, NS)
    for kk in range(NW2): w2_loads(kk)
    ffn1_pre(0)
    sv = list(E.vm)
    E("s_branch k2_sb1\nk2_w3b:")
    if OPT['touch'] == 3: touch()
    ffn1_pre(0)
    idload(); E.waitvm(); idcheck(); publish(1); poll(1)
    E("k2_sb1:\ns_barrier"); acquire(); E.stamp('poll1')
    E.vm = sv
    ffn1(0)
    ffn2(0)
    p4()
    E("s_cmp_eq_u32 s18, 3\ns_cbranch_scc1 k2_gpoll")
    E.waitvm(); gflag(2); E.stamp('gpub')
    res_loads(1)
    w1_loads(0, NB)
    sv = list(E.vm)
    E("s_branch k2_gdone\nk2_gpoll:")
    w1_loads(0, NS)
    gpoll(2)
    E("k2_gdone:\ns_barrier")
    E.vm = sv
    E.stamp('gpoll')
    E.pre = 'k2_b_'
    p2a(1)
    E.stamp('p2a')
    ffn1_pre(1)
    sync(5, None, post012=lambda: w1_loads(NB, NS), name='1')
    ffn1(1)
    ffn2(1)
    if OPT['stamps']: E("s_waitcnt vmcnt(0)"); E.stamp('end')
    E.dump_stamps('s18'); E.dump_dbg()
    E("k2_done:\ns_endpgm")
    for o in OOL: E(o)
    E("k2_end:")
    return head(KN) + E.text()

src = f"""; FNet (folded hidden DFT + 2-stage sequence DFT on MFMA) + ReLU FFN, two layers, one persistent kernel.  Generated by hand-written generator scripts.
; @launch grid=(256,1,1) block=(256,1,1) lds={LDS2}
.amdgcn_target "amdgcn-amd-amdhsa--gfx950"
.text
""" + kern() + '.section .rodata,"a"\n.p2align 6\n' + desc(KN, 512, 256)
print(src + '\n'.join(NAMES))
```

```python
import sys, struct
import re
OPT = dict(stamps='', fast=1, pf=1, reuse=1, dbg=0, ns=11, na=8, nb=8, touch=0, p4s=11, nw2a=2, ks=8, dsc=1, outsc=0, hpre=10, xsc=0, wso=0, daf=3, hw=0, c1=1, cw=0, pr=2, xp=1, pk=1, fst=2176, rep=1)
for a in sys.argv[1:]:
    k, v = a.split('='); OPT[k] = v if k == 'stamps' else int(v)
NAMES = []
f2h = lambda x: hex(struct.unpack('<I', struct.pack('<f', x))[0])
KB = 1024
FLAGC = 0
FLAGG = 32*KB
FLAGT = 384*KB
FST = OPT['fst']
FLAGP = FLAGT + 32*FST
STAMP = 64*KB
S2B   = 256*KB
W1P   = 512*KB
W2P   = W1P + 1920*KB
XF2   = W2P + 1920*KB
LBASE = XF2 + 2560*KB
XTIN, XTMID, TT, HH, SS = 0, 2560*KB, 5120*KB, 7680*KB, 13824*KB
LSTR  = 14336*KB
TSTR = LSTR
if OPT['reuse']:
    XTIN, XTMID, TT, HH, SS, LSTR, TSTR = 0, 0, 2560*KB, 7680*KB, 13824*KB, 0, 2560*KB
WS_BYTES = 268435456
REP = OPT['rep']; RST = 32*KB + 128
if REP > 1: FLAGG = LBASE + 2*14336*KB
L_X = 0
L_RED = 80*KB
L_M1 = 140*KB
L_M2 = 148*KB
L_R = 156*KB
LDS2 = 157*KB
XFS = 528
L1_XF = 0
L1_M1 = 44*KB
L1_R = 52*KB
LDS1 = 53*KB

class Asm:
    def __init__(s, kn): s.l = []; s.vm = []; s.lg = []; s.nst = 0; s.kn = kn; s.pre = kn + '_'
    def __call__(s, t):
        for x in [y for y in t.split('\n') if y.strip()]: s.l.append('    ' + x.strip() if not x.strip().endswith(':') else x.strip())
    def vmop(s, t, tag): s(t); s.vm.append(tag)
    def lgop(s, t, tag): s(t); s.lg.append(tag)
    def waitvm(s, tag=None):
        n = 0
        if tag is not None:
            if tag not in s.vm: return
            idx = max(i for i, t in enumerate(s.vm) if t == tag); n = len(s.vm) - 1 - idx
        n = min(n, 63); s(f's_waitcnt vmcnt({n})'); s.vm = s.vm[len(s.vm)-n:] if n else []
    def waitlg(s, tag=None):
        n = 0
        if tag is not None:
            if tag not in s.lg: return
            idx = max(i for i, t in enumerate(s.lg) if t == tag); n = len(s.lg) - 1 - idx
        n = min(n, 15); s(f's_waitcnt lgkmcnt({n})'); s.lg = s.lg[len(s.lg)-n:] if n else []
    def stamp(s, name):
        name = s.pre + name
        if OPT['stamps'] and re.search(OPT['stamps'], name):
            s(f's_memrealtime s[{64+2*s.nst}:{65+2*s.nst}]'); NAMES.append(f'; @stamp {s.kn} {s.nst} {name}'); s.nst += 1; assert s.nst <= 16, name
    def note(s, name, reg):
        name = s.pre + name
        if OPT['stamps'] and re.search(OPT['stamps'], name):
            s(f's_mov_b32 s{64+2*s.nst}, {reg}'); NAMES.append(f'; @stamp {s.kn} {s.nst} {name}'); s.nst += 1; assert s.nst <= 16, name
    def dump_stamps(s, wsreg):
        if OPT['stamps']:
            s('s_waitcnt lgkmcnt(0)')
            s(f's_lshl_b32 s40, s2, 9\ns_lshl_b32 s41, {wsreg}, 6\ns_add_u32 s40, s40, s41\ns_add_u32 s40, s40, {STAMP + s.stamp_off}\nv_mov_b32 v14, s40')
            for i in range(s.nst):
                s(f'v_mov_b32 v15, s{64+2*i}\nbuffer_store_dword v15, v14, s[8:11], 0 offen offset:{4*i}')
    def dump_dbg(s):
        if OPT['dbg'] and s.kn == 'k2':
            s(f"""s_cmp_lg_u32 s2, 37
            s_cbranch_scc1 k2_nodbg
            s_cmp_lg_u32 s18, 0
            s_cbranch_scc1 k2_nodbg
            s_load_dwordx2 s[40:41], s[0:1], 72
            s_mov_b32 s44, s64
            s_mov_b32 s42, 256
            s_mov_b32 s43, 0x20000
            v_mov_b32 v14, 0
            s_waitcnt lgkmcnt(0)""")
            for i in range(1, s.nst):
                s(f's_sub_u32 s45, s{64+2*i}, s44\nv_mov_b32 v15, s45\nbuffer_store_dword v15, v14, s[40:43], 0 offen offset:{4*i}')
            s('k2_nodbg:')
    def text(s): return '\n'.join(s.l) + '\n'
vr = lambda a, n=4: f'v[{a}:{a+n-1}]'
ar = lambda a, n=4: f'a[{a}:{a+n-1}]'

def head(name): return f".globl {name}\n.p2align 8\n.type {name},@function\n{name}:\n"
def desc(name, nfv, acc):
    return f""".amdhsa_kernel {name}
  .amdhsa_next_free_vgpr {nfv}
  .amdhsa_next_free_sgpr 100
  .amdhsa_accum_offset {acc}
  .amdhsa_group_segment_fixed_size 0
  .amdhsa_kernarg_size 88
  .amdhsa_user_sgpr_count 2
  .amdhsa_user_sgpr_kernarg_segment_ptr 1
  .amdhsa_system_sgpr_workgroup_id_x 1
.end_amdhsa_kernel
"""
def ids(E):
    E("""s_and_b32 s16, s2, 7
    s_lshr_b32 s23, s2, 6
    s_lshl_b32 s23, s23, 3
    s_or_b32 s16, s16, s23
    s_lshr_b32 s17, s2, 3
    s_and_b32 s17, s17, 7
    s_lshr_b32 s19, s17, 2
    s_sub_u32 s20, 64, s16
    s_cmp_eq_u32 s16, 0
    s_cselect_b32 s20, 32, s20
    s_cmp_eq_u32 s19, 0
    s_cselect_b32 s20, s16, s20
    s_and_b32 s23, s17, 3
    s_mul_i32 s21, s23, 5
    s_add_u32 s21, s21, 1
    s_lshr_b32 s21, s21, 1
    s_and_b32 s23, s23, 1
    s_sub_u32 s22, 3, s23""")

def gen_G(E, sE):
    A, B, K2, F, PH = 176, 192, 208, 210, 211
    E(f"""s_lshl_b32 s23, {sE}, 5
    s_add_u32 s23, s23, 1
    v_and_b32 v{F}, 31, v0
    v_add_u32 v{F}, s23, v{F}
    v_cvt_f32_u32 v{F}, v{F}
    v_mul_f32 v{F}, {f2h(1/640)}, v{F}
    v_lshrrev_b32 v{PH}, 5, v0
    v_lshlrev_b32 v{PH}, 3, v{PH}
    v_add_u32 v{PH}, 1, v{PH}
    v_cvt_f32_u32 v{PH}, v{PH}
    v_mul_f32 v{PH}, v{PH}, v{F}
    v_mul_f32 v{PH+1}, {f2h(16.0)}, v{F}
    v_cos_f32 v{K2}, v{PH+1}
    v_add_f32 v{PH+2}, v{PH}, v{PH+1}
    v_add_f32 v{K2}, v{K2}, v{K2}""")
    for s in range(8):
        E(f"""v_cos_f32 v{A+2*s}, v{PH}
        v_sin_f32 v{A+2*s+1}, v{PH}
        v_cos_f32 v{B+2*s}, v{PH+2}
        v_sin_f32 v{B+2*s+1}, v{PH+2}""")
        if s < 7: E(f"v_add_f32 v{PH}, v{PH}, v{F}\nv_add_f32 v{PH+2}, v{PH+2}, v{F}")
    E(f"v_mov_b32 v{K2+1}, v{K2}")
    def pack(k, S):
        for u in range(4):
            E(f"v_cvt_pk_bf16_f32 v{16+8*k+u}, v{S+4*u}, v{S+4*u+2}\nv_cvt_pk_bf16_f32 v{20+8*k+u}, v{S+4*u+1}, v{S+4*u+3}")
    pack(0, A); pack(1, B)
    for k in range(2, 20):
        for s in range(8):
            E(f"v_pk_fma_f32 v[{A+2*s}:{A+2*s+1}], v[{B+2*s}:{B+2*s+1}], v[{K2}:{K2+1}], v[{A+2*s}:{A+2*s+1}] neg_lo:[0,0,1] neg_hi:[0,0,1]")
        pack(k, A); A, B = B, A

def gen_M1(E, sw, lbase, t0):
    E(f"""v_and_b32 v{t0+1}, 15, v0
    v_bfe_u32 v{t0}, v0, 4, 1
    s_lshr_b32 s23, {sw}, 1
    v_add_u32 v{t0}, s23, v{t0}
    v_lshlrev_b32 v{t0}, 3, v{t0}
    v_lshrrev_b32 v{t0+2}, 5, v0
    v_lshlrev_b32 v{t0+2}, 2, v{t0+2}
    s_and_b32 s23, {sw}, 1
    s_lshl_b32 s23, s23, 4
    v_add_u32 v{t0+2}, s23, v{t0+2}
    s_lshl_b32 s23, {sw}, 10
    s_add_u32 s23, s23, {lbase}
    v_lshl_add_u32 v{t0+3}, v0, 4, s23""")
    for mt in range(2):
        for s in range(8):
            E(f"""v_add_u32 v{t0+4}, {8*(s>>2)+(s&3)}, v{t0+2}
            v_mad_u32_u24 v{t0+4}, v{t0+4}, v{t0+1}, v{t0}
            v_and_b32 v{t0+4}, 31, v{t0+4}
            v_cvt_f32_u32 v{t0+4}, v{t0+4}
            v_mul_f32 v{t0+4}, {f2h(1/32)}, v{t0+4}
            v_cos_f32 v{t0+8+s}, v{t0+4}""")
        E("s_nop 0")
        for u in range(4): E(f"v_cvt_pk_bf16_f32 v{t0+8+u}, v{t0+8+2*u}, v{t0+9+2*u}")
        E(f"ds_write_b128 v{t0+3}, {vr(t0+8)} offset:{mt*4096}")
        if mt == 0: E(f"v_add_u32 v{t0+1}, 16, v{t0+1}\ns_nop 0")

def dft_unit(E, lx, ps, lm1, vR, sT, stf, mid=None, chunk=None):
    AC, AS, AB, R, Z = 176, 192, 208, 224, 240
    E(f"""v_and_b32 v14, 31, v0
    v_lshlrev_b32 v14, 4, v14
    v_lshrrev_b32 v15, 5, v0
    v_mul_u32_u24 v13, {ps}, v15
    v_add_u32 v14, v14, v13""")
    def rd(k):
        b = AB + 8*(k & 1)
        E.lgop(f"ds_read_b128 {vr(b)}, v14 offset:{lx + 2*k*ps}", ('A', k))
        E.lgop(f"ds_read_b128 {vr(b+4)}, v14 offset:{lx + (40+2*k)*ps}", ('A', k))
    if chunk: chunk(0)
    rd(0); rd(1)
    E(f"""v_mov_b32 v{Z}, 0
    v_mov_b32 v{Z+1}, 0
    v_mov_b32 v{Z+2}, 0
    v_mul_u32_u24 v{Z+3}, 0x3f8000, v15
    v_lshlrev_b32 v{Z+3}, 8, v{Z+3}""")
    for k in range(20):
        b = AB + 8*(k & 1)
        E.waitlg(('A', k))
        c0 = '0' if k == 0 else vr(AC, 16); c1 = '0' if k == 0 else vr(AS, 16)
        E(f"v_mfma_f32_32x32x16_bf16 {vr(AC,16)}, {vr(b)}, {vr(16+8*k)}, {c0}")
        E(f"v_mfma_f32_32x32x16_bf16 {vr(AS,16)}, {vr(b+4)}, {vr(20+8*k)}, {c1}")
        if k == 19: E(f"v_mfma_f32_32x32x16_bf16 {vr(AC,16)}, {vr(b+4)}, {vr(Z)}, {vr(AC,16)}")
        if chunk and k + 2 < 20 and (k+2) % 4 == 0: chunk((k+2)//4)
        if k + 2 < 20: rd(k+2)
        if k == 17:
            for g4 in range(4): E.lgop(f"ds_read_b128 {vr(R+4*g4)}, {vR} offset:{32*g4}", 'R')
    m1reg = lambda i: (160 + 4*i) if i < 4 else (208 + 4*(i-4))
    E(f"v_lshlrev_b32 v13, 4, v0\nv_add_u32 v13, {lm1}, v13")
    for i in range(4): E.lgop(f"ds_read_b128 {vr(m1reg(i))}, v13 offset:{1024*i}", 'M1')
    if mid: mid()
    E("s_nop 7")
    for i in range(4, 8): E.lgop(f"ds_read_b128 {vr(m1reg(i))}, v13 offset:{1024*i}", 'M1')
    E.waitlg('R')
    for p in range(8): E(f"v_pk_mul_f32 {vr(AS+2*p,2)}, {vr(AS+2*p,2)}, {vr(R+2*p,2)}")
    for p in range(8): E(f"v_cvt_pk_bf16_f32 v{Z+8+p}, v{AS+2*p}, v{AS+2*p+1}")
    for p in range(8): E(f"v_pk_mul_f32 {vr(AC+2*p,2)}, {vr(AC+2*p,2)}, {vr(R+2*p,2)}")
    for p in range(8): E(f"v_cvt_pk_bf16_f32 v{Z+p}, v{AC+2*p}, v{AC+2*p+1}")
    E.waitlg()
    E(f"""v_and_b32 v14, 15, v0
    v_mul_u32_u24 v14, 81920, v14
    v_bfe_u32 v13, v0, 4, 1
    v_lshl_add_u32 v14, v13, 5, v14
    v_lshl_add_u32 v14, v15, 4, v14""")
    for mt in range(2):
        D = AS if mt == 0 else AC
        for ks in range(4):
            E(f"v_mfma_f32_32x32x16_bf16 {vr(D,16)}, {vr(Z+4*ks)}, {vr(m1reg(4*mt+ks))}, {'0' if ks == 0 else vr(D,16)}")
    E(f"s_add_u32 s23, {sT}, {16*81920}")
    for mt in range(2):
        D = AS if mt == 0 else AC
        E("s_nop 6" if mt == 0 else "s_nop 0")
        for r in range(8): E(f"v_permlane16_swap_b32 v{D+r}, v{D+8+r}")
        for r in range(8):
            E(f"v_cvt_pk_bf16_f32 v{R+8*mt+r}, v{D+r}, v{D+8+r}")
            if r & 3 == 3: E.vmop(f"buffer_store_dwordx4 {vr(R+8*mt+r-3)}, v14, s[8:11], {sT if mt == 0 else 's23'} offen offset:{16*(r-3)} {stf}", 'Tst')

def w2job_loads(E):
    E(f"""s_mul_i32 s33, s57, 43
    s_lshr_b32 s33, s33, 8
    s_mul_i32 s32, s33, 6
    s_sub_u32 s32, s57, s32
    s_mul_i32 s33, s33, 12
    s_mul_i32 s34, s32, 3
    s_add_u32 s34, s34, s33
    s_mul_i32 s35, s32, 6
    s_add_u32 s35, s35, s33
    s_sub_u32 s35, s35, 22
    v_lshrrev_b32 v4, 1, v2
    v_mul_u32_u24 v4, 3, v4
    v_add_u32 v4, s35, v4
    v_and_b32 v5, 1, v2
    s_and_b32 s36, s34, 3
    s_cmp_eq_u32 s36, 3
    s_cselect_b32 s36, 61, 1
    s_cmp_ge_u32 s32, 4
    s_cselect_b32 s36, 32, s36
    s_cselect_b64 vcc, -1, 0
    v_mov_b32 v7, s34
    v_cndmask_b32 v4, v7, v4, vcc
    v_cndmask_b32 v5, v2, v5, vcc
    v_lshrrev_b32 v7, 2, v4
    v_and_b32 v4, 3, v4
    v_lshl_add_u32 v4, v7, 6, v4
    v_lshl_add_u32 v4, v5, 4, v4
    v_mul_u32_u24 v4, 1280, v4
    s_mul_i32 s36, s36, 1280
    s_mul_i32 s33, s58, 80
    s_add_u32 s34, s33, 2
    v_lshl_add_u32 v5, v1, 2, s34
    v_add_u32 v5, v5, v4
    s_sub_u32 s34, 1276, s33
    v_lshlrev_b32 v7, 2, v1
    v_sub_u32 v7, s34, v7
    v_add_u32 v7, v7, v4
    v_lshrrev_b32 v9, 2, v1
    v_and_b32 v13, 1, v1
    v_lshl_add_u32 v9, v9, 1, v13
    s_mul_i32 s33, s58, 40
    s_add_u32 s33, s33, 32
    v_add_u32 v9, s33, v9
    v_add_u32 v13, 1, v9
    v_cmp_eq_u32 vcc, 319, v9
    v_sub_u32 v9, 639, v9
    v_and_b32 v14, 2, v1
    v_cndmask_b32 v9, v9, 0, vcc
    v_cmp_eq_u32 vcc, 0, v14
    s_nop 1
    v_cndmask_b32 v9, v9, v13, vcc
    v_lshl_add_u32 v9, v9, 1, v4""")
    for s in range(8):
        E(f"""s_mul_i32 s37, s36, {s>>2}
            s_add_u32 s37, s37, {(s&3)*4*1280}
            buffer_load_dword a{s}, v5, s[48:51], s37 offen
            buffer_load_dword a{8+s}, v7, s[48:51], s37 offen
            buffer_load_ushort a{16+s}, v9, s[48:51], s37 offen""")

SPIN = 60000
KN = "interleave_layers__spectral_fnet__dense_activation_relu__prompt_kernel"
def kern():
    DS = 'sc1' if OPT['dsc'] else ''
    OOL = []
    E = Asm('k2'); E.stamp_off = 0
    uid = [0]
    def lab(p): uid[0] += 1; return f"k2_{p}{uid[0]}"
    NS = OPT['ns']; NW2 = OPT['nw2a']; KS = OPT['ks']; assert KS - NW2 <= 7
    E("""s_cmp_ge_u32 s2, 256
    s_cbranch_scc1 k2_done""")
    E.stamp('start')
    if OPT['pf']:
        E(f"""s_getpc_b64 s[40:41]
        k2_pc:
        s_sub_u32 s40, s40, k2_pc-{KN}
        s_subb_u32 s41, s41, 0
        s_mov_b32 s42, k2_end-{KN}
        s_mov_b32 s43, 0x20000
        s_lshr_b32 s23, s2, 3
        s_lshl_b32 s23, s23, 10
        v_lshl_add_u32 v14, v0, 2, s23
        v_add_u32 v15, 0x8000, v14
        buffer_load_dword v16, v14, s[40:43], 0 offen
        buffer_load_dword v16, v15, s[40:43], 0 offen""")
    E(f"""s_load_dwordx2 s[4:5], s[0:1], 0
    s_load_dwordx4 s[60:63], s[0:1], 48
    s_load_dwordx2 s[12:13], s[0:1], 64
    s_load_dwordx2 s[52:53], s[0:1], 72
    s_load_dwordx2 s[8:9], s[0:1], 80
    s_memrealtime s[46:47]
    v_lshrrev_b32 v1, 6, v0
    s_mov_b32 s6, {2048*1280}
    s_mov_b32 s7, 0x20000
    v_readfirstlane_b32 s18, v1
    s_mov_b32 s10, {WS_BYTES - OPT['wso']*KB*KB}
    s_mov_b32 s11, 0x20000
    s_mov_b32 s14, {2048*1280}
    s_mov_b32 s15, 0x20000
    s_mov_b32 s54, 256
    s_mov_b32 s55, 0x20000""")
    ids(E)
    E(f"""v_lshrrev_b32 v1, 3, v0
    v_and_b32 v2, 7, v0
    v_lshlrev_b32 v3, 6, v1
    v_add_u32 v3, s20, v3
    v_mul_u32_u24 v3, 1280, v3
    v_lshl_add_u32 v4, v2, 4, v3
    v_add_u32 v4, 2, v4
    v_lshlrev_b32 v5, 4, v2
    v_sub_u32 v5, v3, v5
    v_add_u32 v5, {1264-512}, v5
    v_mov_b32 v10, 0
    s_waitcnt lgkmcnt(0)""")
    if OPT['wso']: E(f"s_add_u32 s8, s8, {OPT['wso']*KB*KB}\ns_addc_u32 s9, s9, 0")
    LD = 216
    for k in range(5):
        E.vmop(f"buffer_load_dwordx4 {vr(LD+8*k)}, v4, s[4:7], 0 offen offset:{128*k}", ('x', k))
        E.vmop(f"buffer_load_dwordx4 {vr(LD+8*k+4)}, v5, s[4:7], 0 offen offset:{128*(4-k)}", ('x', k))
    E.vmop("buffer_load_ushort v12, v3, s[4:7], 0 offen", ('x', 4))
    E.stamp('xiss')
    if OPT['stamps']: E("s_mov_b32 s97, 0")
    E(f"""s_lshl_b32 s56, s2, 2
    s_add_u32 s56, s56, s18
    s_cmp_lg_u32 s56, 0
    s_cbranch_scc1 k2_non
    s_or_b32 s46, s46, 1
    v_mov_b32 v11, s46
    s_mov_b64 exec, 1
    buffer_store_dword v11, v10, s[52:55], 0 offen sc1
    s_mov_b64 exec, -1
    k2_non:
    v_mul_u32_u24 v6, {XFS}, v2
    v_lshl_add_u32 v6, v1, 4, v6
    v_cmp_eq_u32 s[30:31], 7, v2
    v_lshlrev_b32 v8, 2, v1
    v_and_b32 v0, 63, v0
    s_add_u32 s21, s21, s18
    v_and_b32 v1, 15, v0
    v_lshrrev_b32 v2, 4, v0
    v_lshlrev_b32 v3, 4, v0
    s_mov_b32 s51, 0x20000
    s_mul_i32 s59, s2, 2428
    s_lshr_b32 s59, s59, 16
    s_mul_i32 s23, s59, 108
    s_sub_u32 s56, s56, s23
    s_cmp_ge_u32 s2, 216
    s_cselect_b32 s56, 108, s56
    s_cmp_ge_u32 s56, 60
    s_cbranch_scc1 k2_pk2""")
    E(f"""s_mov_b32 s48, s60
    s_mov_b32 s49, s61
    s_mov_b32 s50, {640*3072}
    s_mul_i32 s57, s56, 171
    s_lshr_b32 s57, s57, 9
    s_sub_u32 s58, s59, s57
    s_mul_i32 s58, s58, 3
    s_add_u32 s58, s58, s56
    s_cmp_ge_u32 s57, 10
    s_cselect_b32 s33, 10, 0
    s_sub_u32 s33, s57, s33
    s_lshl_b32 s33, s33, 5
    v_lshl_add_u32 v4, v2, 3, s33
    v_add_u32 v5, 1, v4
    v_sub_u32 v7, 632, v4
    s_cmp_ge_u32 s57, 10
    s_cselect_b64 s[34:35], -1, 0
    s_cselect_b32 s36, 7, 0
    v_cndmask_b32 v5, v5, v7, s[34:35]
    v_mul_u32_u24 v5, 3072, v5
    s_lshl_b32 s33, s58, 7
    v_lshl_add_u32 v7, v1, 3, s33
    v_add_u32 v5, v5, v7
    v_cmp_eq_u32 vcc, 312, v4
    s_and_b64 vcc, vcc, s[34:35]
    s_nop 1
    v_cndmask_b32 v7, v5, v7, vcc""")
    for s in range(8):
        E(f"s_xor_b32 s37, s36, {s}\ns_mul_i32 s37, s37, 3072\nbuffer_load_dwordx2 {ar(2*s,2)}, {'v7' if s == 7 else 'v5'}, s[48:51], s37 offen")
    E(f"""s_branch k2_pkm
    k2_pk2:
    s_cmp_ge_u32 s56, 108
    s_cbranch_scc1 k2_pkm
    s_mov_b32 s48, s62
    s_mov_b32 s49, s63
    s_mov_b32 s50, {1536*1280}
    s_sub_u32 s57, s56, 60
    s_mov_b32 s58, s59""")
    w2job_loads(E)
    E("k2_pkm:"); E.stamp('piss')
    PKC, PKG = OPT['pk'] & 1, OPT['pk'] & 2
    IDO = 128 if PKC else 16
    E("s_lshl_b32 s23, s18, 2")
    if PKC: E("s_lshl_b32 s45, s16, 8\ns_lshl_b32 s38, s17, 4\ns_add_u32 s45, s45, s38\ns_add_u32 s45, s45, s23")
    else: E("s_lshl_b32 s45, s2, 7\ns_add_u32 s45, s45, s23")
    if PKG: E(f"""s_and_b32 s98, s17, 3
    s_lshl_b32 s98, s98, 3
    s_lshr_b32 s38, s20, 3
    s_add_u32 s98, s98, s38
    s_mul_i32 s98, s98, {FST}
    s_and_b32 s38, s20, 7
    s_lshl_b32 s38, s38, 4
    s_add_u32 s98, s98, s38
    s_add_u32 s98, s98, s23
    s_add_u32 s98, s98, {FLAGT}
    s_mul_i32 s38, s59, {FST - 27*4}
    s_lshl_b32 s23, s2, 2
    s_add_u32 s38, s38, s23
    s_add_u32 s38, s38, {FLAGP}
    s_cmp_eq_u32 s18, 3
    s_cselect_b32 s98, s38, s98""")
    else: E(f"s_lshl_b32 s98, s2, 7\ns_add_u32 s98, s98, s23\ns_add_u32 s98, s98, {FLAGG}")
    E(f"""s_mov_b64 exec, 1
    buffer_store_dword v10, v10, s[8:11], s45 offen offset:{FLAGC}
    s_mov_b64 exec, {(1 << REP) - 1}
    v_mul_u32_u24 v13, {RST}, v0
    buffer_store_dword v10, v13, s[8:11], s98 offen sc1
    s_mov_b64 exec, -1
    buffer_load_dword v11, v10, s[52:55], 0 offen sc1
    s_cmp_lg_u32 s18, 3
    s_cbranch_scc1 k2_nw3""")
    E("s_mov_b32 s38, 0\nk2_m1l:")
    gen_M1(E, 's38', L_M1, 176)
    E("s_add_u32 s38, s38, 1\ns_cmp_lt_u32 s38, 4\ns_cbranch_scc1 k2_m1l\nk2_nw3:\ns_cmp_ge_u32 s18, s22\ns_cbranch_scc1 k2_nog")
    gen_G(E, 's21')
    E("k2_nog:"); E.stamp('gen')
    E(f"""s_waitcnt vmcnt(0)
    v_readfirstlane_b32 s46, v11
    s_mov_b32 s32, 0x05040100
    s_mov_b32 s33, 0x07060302
    s_cmp_eq_u32 s46, 0
    s_cbranch_scc1 k2_nonw
    k2_nonb:""")
    E.vm = []
    OOL.append(f"""k2_nonw:
    s_mov_b32 s38, 0
    k2_nonl:
    buffer_load_dword v11, v10, s[52:55], 0 offen sc1
    s_add_u32 s38, s38, 1
    s_cmp_gt_u32 s38, {SPIN}
    s_cbranch_scc1 k2_nonb
    s_waitcnt vmcnt(0)
    v_readfirstlane_b32 s46, v11
    s_nop 0
    s_cmp_eq_u32 s46, 0
    s_cbranch_scc1 k2_nonl
    s_branch k2_nonb""")
    E.stamp('x0')
    E("s_cmp_ge_u32 s56, 108\ns_cbranch_scc1 k2_pkd")
    A0, P0 = 176, 200
    for i in range(16): E(f"v_accvgpr_read_b32 v{A0+i}, a{i}")
    E("s_cmp_ge_u32 s56, 60\ns_cbranch_scc1 k2_st2")
    for u in range(4):
        for v in range(4): E(f"v_perm_b32 v{P0+4*u+v}, v{A0+4*v+2+(u>>1)}, v{A0+4*v+(u>>1)}, s{32+(u&1)}")
        E(f"""s_lshl_b32 s34, s58, 2
        s_add_u32 s34, s34, {u}
        s_mul_i32 s35, s34, 171
        s_lshr_b32 s35, s35, 9
        s_mul_i32 s36, s35, 57
        s_add_u32 s36, s36, s34
        s_mul_i32 s37, s57, 3
        s_add_u32 s36, s36, s37
        s_lshl_b32 s36, s36, 10
        s_add_u32 s36, s36, {W1P}
        buffer_store_dwordx4 {vr(P0+4*u)}, v3, s[8:11], s36 offen sc1""")
    E("s_nop 0\ns_branch k2_pkd\nk2_st2:")
    E(f"""s_mul_i32 s34, s58, 48
    s_add_u32 s34, s34, s57
    s_mul_i32 s34, s34, 5120
    s_add_u32 s34, s34, {W2P}
    s_add_u32 s35, s34, 4096""")
    for i in range(16, 24): E(f"v_accvgpr_read_b32 v{A0+i}, a{i}")
    for t in range(4):
        for v in range(4): E(f"v_perm_b32 v{P0+4*t+v}, v{A0+8*(t>>1)+2*v+1}, v{A0+8*(t>>1)+2*v}, s{32+((t&1)^(t>>1))}")
        E(f"buffer_store_dwordx4 {vr(P0+4*t)}, v3, s[8:11], s34 offen offset:{1024*t} sc1")
    for v in range(4): E(f"v_perm_b32 v{A0+v}, v{A0+16+2*v+1}, v{A0+16+2*v}, s32")
    E(f"buffer_store_dwordx4 {vr(A0)}, v3, s[8:11], s35 offen sc1")
    E("s_nop 0\nk2_pkd:")
    E.stamp('pkst')
    LO, HI, EE, OO, SM, SQ = 180, 188, 196, 204, 212, 214
    E(f"v_mov_b32 v{SM}, 0\nv_mov_b32 v{SM+1}, 0\nv_mov_b32 v{SQ}, 0\nv_mov_b32 v{SQ+1}, 0")
    for k in range(5):
        lo, hi = LD+8*k, LD+8*k+4
        for u in range(4):
            E(f"""v_lshlrev_b32 v{LO+2*u}, 16, v{lo+u}
            v_and_b32 v{LO+2*u+1}, 0xffff0000, v{lo+u}
            v_and_b32 v{HI+2*u}, 0xffff0000, v{hi+3-u}
            v_lshlrev_b32 v{HI+2*u+1}, 16, v{hi+3-u}""")
        if k == 4:
            E(f"v_lshlrev_b32 v12, 16, v12\nv_cndmask_b32 v{HI+7}, v{HI+7}, v12, s[30:31]")
        for u in range(4):
            E(f"""v_pk_add_f32 {vr(EE+2*u,2)}, {vr(LO+2*u,2)}, {vr(HI+2*u,2)}
            v_pk_add_f32 {vr(OO+2*u,2)}, {vr(LO+2*u,2)}, {vr(HI+2*u,2)} neg_lo:[0,1] neg_hi:[0,1]
            v_pk_fma_f32 {vr(SQ,2)}, {vr(LO+2*u,2)}, {vr(LO+2*u,2)}, {vr(SQ,2)}
            v_pk_add_f32 {vr(SM,2)}, {vr(SM,2)}, {vr(EE+2*u,2)}
            v_pk_fma_f32 {vr(SQ,2)}, {vr(HI+2*u,2)}, {vr(HI+2*u,2)}, {vr(SQ,2)}""")
        if k == 4:
            E(f"v_cndmask_b32 v{EE+7}, v{EE+7}, v{LO+7}, s[30:31]\nv_cndmask_b32 v{OO+7}, v{OO+7}, v{HI+7}, s[30:31]")
        for u in range(4): E(f"v_cvt_pk_bf16_f32 v{EE+u}, v{EE+2*u}, v{EE+2*u+1}")
        for u in range(4): E(f"v_cvt_pk_bf16_f32 v{OO+u}, v{OO+2*u}, v{OO+2*u+1}")
        E(f"ds_write_b128 v6, {vr(EE)} offset:{L_X + 8*k*XFS}\nds_write_b128 v6, {vr(OO)} offset:{L_X + (40+8*k)*XFS}")
    E(f"""v_add_f32 v{SM}, v{SM}, v{SM+1}
    v_add_f32 v{SQ}, v{SQ}, v{SQ+1}
    v_add_u32 v8, {L_R}, v8
    s_nop 0""")
    for d in ["quad_perm:[1,0,3,2]", "quad_perm:[2,3,0,1]", "row_half_mirror"]:
        E(f"""v_add_f32_dpp v{SM}, v{SM}, v{SM} {d} row_mask:0xf bank_mask:0xf
        v_add_f32_dpp v{SQ}, v{SQ}, v{SQ} {d} row_mask:0xf bank_mask:0xf
        s_nop 1""")
    E(f"""v_mul_f32 v{SM}, {f2h(1/640)}, v{SM}
    v_mul_f32 v{SQ}, {f2h(1/640)}, v{SQ}
    v_fma_f32 v{SQ}, -v{SM}, v{SM}, v{SQ}
    v_max_f32 v{SQ}, 0, v{SQ}
    v_add_f32 v{SQ}, {f2h(1e-5)}, v{SQ}
    v_rsq_f32 v{SQ}, v{SQ}
    v_lshrrev_b32 v9, 5, v0
    ds_write_b32 v8, v{SQ}
    v_lshlrev_b32 v9, 4, v9
    v_add_u32 v9, {L_R}, v9""")
    E.stamp('ln')
    E("s_waitcnt vmcnt(0) lgkmcnt(0)\ns_barrier")
    E.stamp('bar')

    def setup():
        E(f"""s_mul_i32 s24, s16, 81920
        s_and_b32 s25, s20, 31
        s_mul_i32 s25, s25, 10
        s_add_u32 s25, s25, s21
        s_lshl_b32 s25, s25, 13
        s_getreg_b32 s26, hwreg(HW_REG_XCC_ID)
        s_and_b32 s26, s26, 15
        s_add_u32 s26, s26, 16
        s_add_u32 s26, s26, s46
        s_mul_i32 s28, s16, 196608
        s_mul_i32 s29, s17, 5
        s_lshr_b32 s29, s29, 1
        s_mul_i32 s30, s17, 3
        s_lshr_b32 s30, s30, 1
        s_lshl_b32 s39, s17, 2
        s_add_u32 s39, s39, s18
        s_mul_i32 s44, s39, {60*KB}
        s_add_u32 s39, s44, {W1P}
        s_add_u32 s44, s44, {W2P}
        v_lshlrev_b32 v1, 4, v0
        v_and_b32 v14, 31, v0
        v_lshrrev_b32 v15, 5, v0
        v_and_b32 v2, 3, v14
        v_bfe_u32 v3, v14, 2, 1
        v_lshl_add_u32 v2, v3, 4, v2
        v_bfe_u32 v3, v14, 3, 2
        v_lshl_add_u32 v2, v3, 2, v2
        v_lshlrev_b32 v2, 2, v2
        v_lshl_add_u32 v2, v15, 9, v2
        s_lshl_b32 s23, s19, 5
        v_add_u32 v5, s23, v14
        v_sub_u32 v6, 63, v5
        v_sub_u32 v7, 32, v14
        v_and_b32 v7, 31, v7
        v_sub_u32 v8, 95, v5
        s_cmp_eq_u32 s19, 0
        s_cselect_b64 s[36:37], -1, 0
        v_cndmask_b32 v7, v8, v7, s[36:37]
        s_cmp_eq_u32 s16, 0
        s_cselect_b64 s[36:37], -1, 0
        v_cndmask_b32 v6, v6, v7, s[36:37]
        v_lshrrev_b32 v3, 4, v5
        v_lshlrev_b32 v3, 10, v3
        v_and_b32 v7, 15, v5
        v_lshl_add_u32 v3, v7, 4, v3
        v_lshl_add_u32 v3, v15, 8, v3
        v_lshrrev_b32 v4, 4, v6
        v_lshlrev_b32 v4, 10, v4
        v_and_b32 v7, 15, v6
        v_lshl_add_u32 v4, v7, 4, v4
        v_lshl_add_u32 v4, v15, 8, v4
        v_mov_b32 v9, v6
        v_add_u32 v6, 640, v6
        v_cmp_eq_u32 vcc, 0, v15
        s_and_b32 s23, s2, 0xc7
        v_and_b32 v12, 7, v0
        v_cndmask_b32 v5, v6, v5, vcc
        v_lshlrev_b32 v5, 3, v5
        """)
        if PKC: E("s_lshl_b32 s23, s16, 8\nv_lshl_add_u32 v12, v12, 4, s23")
        else: E("v_lshl_add_u32 v12, v12, 3, s23\nv_lshlrev_b32 v12, 7, v12")
        if PKG: E(f"""s_and_b32 s23, s17, 3
        s_mul_i32 s23, s23, {8*FST}
        s_add_u32 s23, s23, {FLAGT}
        v_lshrrev_b32 v7, 3, v0
        v_mul_u32_u24 v7, {FST}, v7
        v_and_b32 v13, 7, v0
        v_lshl_add_u32 v13, v13, 4, s23
        v_add_u32 v13, v13, v7""")
        else: E(f"""v_and_b32 v13, 7, v14
        v_lshrrev_b32 v7, 3, v14
        v_lshl_add_u32 v13, v7, 6, v13
        v_lshl_add_u32 v13, v15, 5, v13
        s_and_b32 s23, s17, 3
        s_lshl_b32 s23, s23, 3
        v_add_u32 v13, s23, v13
        v_lshlrev_b32 v13, 7, v13
        s_and_b32 s23, s16, {REP-1}
        s_mul_i32 s23, s23, {RST}
        s_add_u32 s23, s23, {FLAGG}
        v_add_u32 v13, s23, v13""")
        E(f"""
        v_lshrrev_b32 v7, 4, v0
        v_and_b32 v8, 15, v0
        v_and_b32 v6, 1, v7
        s_and_b32 s23, s18, 1
        s_lshl_b32 s23, s23, 1
        v_add_u32 v6, s23, v6
        v_lshlrev_b32 v6, 8, v6
        v_lshl_add_u32 v6, v8, 4, v6
        v_lshl_add_u32 v6, v15, 10, v6""")
    def gen_M2():
        E(f"""v_and_b32 v224, 31, v0
        v_lshlrev_b32 v224, 6, v224
        v_add_u32 v224, s20, v224
        s_lshl_b32 s23, s18, 4
        v_lshrrev_b32 v225, 5, v0
        v_lshl_add_u32 v225, v225, 2, s23
        v_mul_u32_u24 v225, v225, v224
        s_lshl_b32 s23, s18, 11
        s_add_u32 s23, s23, {L_M2}
        v_add_u32 v226, s23, v1""")
        for kk in range(2):
            for u in range(4):
                E(f"""v_and_b32 v227, 2047, v225
                v_cvt_f32_u32 v227, v227
                v_mul_f32 v227, {f2h(1/2048)}, v227
                v_cos_f32 v228, v227
                v_sin_f32 v229, v227
                v_add_u32 v225, v225, v224
                v_cvt_pk_bf16_f32 v{232+4*kk+u}, v228, v229""")
            if kk == 0: E("v_lshl_add_u32 v225, v224, 2, v225")
            E(f"ds_write_b128 v226, {vr(232+4*kk)} offset:{1024*kk}")
    def res_loads(L):
        l = lab('nor'); E(f"s_cmp_ge_u32 s18, s22\ns_cbranch_scc1 {l}")
        E("s_lshl_b32 s33, s21, 12\ns_add_u32 s33, s33, s24")
        if L == 0:
            E(f"""s_sub_u32 s23, 64, s16
            s_cmp_eq_u32 s16, 0
            s_cselect_b32 s23, 32, s23
            v_mov_b32 v7, s23
            v_mov_b32 v8, s16
            v_cmp_gt_u32 vcc, 32, v9
            v_and_b32 v9, 31, v9
            v_and_b32 v10, 31, v0
            v_cndmask_b32 v7, v7, v8, vcc
            v_lshl_add_u32 v9, v9, 6, v7
            v_mul_u32_u24 v9, 1280, v9
            v_lshl_add_u32 v10, v10, 6, s20
            v_mul_u32_u24 v10, 1280, v10
            v_lshrrev_b32 v7, 5, v0
            v_lshlrev_b32 v7, 4, v7
            s_lshl_b32 s23, s21, 6
            s_add_u32 s38, s23, 2
            v_add3_u32 v10, v10, v7, s38
            s_sub_u32 s38, 1232, s23
            v_sub_u32 v7, s38, v7
            v_add_u32 v7, v7, v9""")
            for rh in range(2): E.vmop(f"buffer_load_dwordx4 {vr(192+4*rh)}, v10, s[4:7], 0 offen offset:{32*rh}", 'res')
            for rh in range(2): E.vmop(f"buffer_load_dwordx4 {vr(200+4*rh)}, v7, s[4:7], 0 offen offset:{32*(1-rh)}", 'res')
            E.vmop("buffer_load_ushort v8, v9, s[4:7], 0 offen", 'res')
            if OPT['pr'] & 1:
                E(f"s_add_u32 s34, s33, {LBASE+XTMID}\ns_add_u32 s35, s34, 40960\ns_mul_i32 s23, s16, 10240\ns_lshl_b32 s38, s21, 9\ns_add_u32 s23, s23, s38\ns_add_u32 s23, s23, {LBASE+SS}")
                for rh in range(2): E.vmop(f"buffer_store_dwordx4 v[0:3], v3, s[8:11], s34 offen offset:{512*rh}", 'pr')
                for rh in range(2): E.vmop(f"buffer_store_dwordx4 v[0:3], v4, s[8:11], s35 offen offset:{512*rh}", 'pr')
                E.vmop("buffer_store_dwordx2 v[0:1], v5, s[8:11], s23 offen", 'pr')
        else:
            E(f"s_add_u32 s34, s33, {LBASE+LSTR+XTIN}\ns_add_u32 s35, s34, 40960")
            for rh in range(2): E.vmop(f"buffer_load_dwordx4 {vr(192+4*rh)}, v3, s[8:11], s34 offen offset:{512*rh} {DS}", 'res')
            for rh in range(2): E.vmop(f"buffer_load_dwordx4 {vr(200+4*rh)}, v4, s[8:11], s35 offen offset:{512*rh} {DS}", 'res')
        E(f"{l}:")
    def t_loads(L):
        E(f"s_add_u32 s31, s25, {LBASE+TT+L*TSTR}\ns_add_u32 s32, s31, 4096")
        for k in range(8):
            for u in range(4):
                E.vmop(f"buffer_load_dword v{160+4*k+u}, v2, s[8:11], s{31 if k < 4 else 32} offen offset:{(k%4)*1024+u*128} sc1", ('T', k))
    def w1_loads(p0, p1, tagp='W1'):
        for p in range(p0, p1):
            E(f"s_add_u32 s23, s29, {p}\ns_cmp_ge_u32 s23, 20\ns_cselect_b32 s38, 20, 0\ns_sub_u32 s23, s23, s38\ns_mul_i32 s23, s23, 3072\ns_add_u32 s23, s23, s39")
            for t in range(3):
                E.vmop(f"buffer_load_dwordx4 {vr(16+12*(p%12)+4*t)}, v1, s[8:11], s23 offen offset:{1024*t}", (tagp, p))
    def w2_loads(kk):
        E(f"s_add_u32 s23, s30, {kk}\ns_cmp_ge_u32 s23, 12\ns_cselect_b32 s38, 12, 0\ns_sub_u32 s23, s23, s38\ns_mul_i32 s23, s23, 5120\ns_add_u32 s23, s23, s44\ns_add_u32 s38, s23, 4096")
        for t in range(5):
            E.vmop(f"buffer_load_dwordx4 {ar(20*kk+4*t)}, v1, s[8:11], {'s23' if t < 4 else 's38'} offen offset:{1024*(t%4)}", 'W2')
    def gflag(val):
        E(f"""s_add_u32 s23, s46, {val}
        v_mov_b32 v15, s23
        v_mul_u32_u24 v14, {RST}, v0
        s_mov_b64 exec, {(1 << REP) - 1}
        buffer_store_dword v15, v14, s[8:11], s98 offen sc1
        s_mov_b64 exec, -1""")
    def spin(loads, n, val, t=252):
        l = lab('poll'); l2 = lab('pout')
        E(f"""s_mov_b32 s38, 0
        s_add_u32 s23, s46, {val}
        {l}:
        {loads}
        s_add_u32 s38, s38, 1
        s_cmp_gt_u32 s38, {SPIN}
        s_cbranch_scc1 {l2}
        s_waitcnt vmcnt(0)""")
        for i in range(n): E(f"v_subrev_u32 v{t+i}, s23, v{t+i}")
        if n > 1: E(f"v_max3_u32 v{t}, v{t}, v{t+1}, v{t+2}")
        if n == 4: E(f"v_max_u32 v{t}, v{t}, v{t+3}")
        E(f"v_cmp_lt_u32 vcc, 15, v{t}\ns_cbranch_vccnz {l}\n{l2}:")
    poll = lambda val: spin(f"buffer_load_dwordx4 v[252:255], v12, s[8:11], 0 offen offset:{FLAGC} sc1", 4, val)
    gpoll = lambda val: spin("buffer_load_dwordx3 v[252:254], v13, s[8:11], 0 offen sc1", 3, val)
    def publish(val):
        l = lab('pub'); l2 = lab('pubs')
        E(f"""s_add_u32 s23, s46, {val}
        v_mov_b32 v14, s45
        v_mov_b32 v15, s23
        s_cmp_lg_u32 s27, 0
        s_cbranch_scc1 {l2}
        s_mov_b64 exec, 1
        buffer_store_dword v15, v14, s[8:11], 0 offen offset:{FLAGC}
        s_mov_b64 exec, -1
        {l}:""")
        OOL.append(f"""{l2}:
        buffer_wbl2 sc1
        s_waitcnt vmcnt(0)
        s_mov_b64 exec, 1
        buffer_store_dword v15, v14, s[8:11], 0 offen offset:{FLAGC} sc1
        s_mov_b64 exec, -1
        s_branch {l}""")
    def acquire():
        l = lab('acq'); l2 = lab('acqs')
        E(f"s_cmp_lg_u32 s27, 0\ns_cbranch_scc1 {l2}\n{l}:")
        OOL.append(f"{l2}:\nbuffer_inv sc1\ns_waitcnt vmcnt(0)\ns_branch {l}")
    def idload(): E.vmop(f"buffer_load_dword v11, v12, s[8:11], 0 offen offset:{FLAGC+IDO} sc1", 'id')
    def idcheck():
        d = lab('idd'); l = lab('idv')
        E(f"""v_cmp_ne_u32 vcc, s26, v11
        s_mov_b32 s27, {0 if OPT['fast'] else 1}
        s_cbranch_vccnz {l}
        {d}:""")
        OOL.append(f"""{l}:
        s_mov_b32 s38, 0
        s_add_u32 s23, s46, 16
        {l}a:
        buffer_load_dword v11, v12, s[8:11], 0 offen offset:{FLAGC+IDO} sc1
        s_add_u32 s38, s38, 1
        s_cmp_gt_u32 s38, {SPIN}
        s_cbranch_scc1 {l}b
        s_waitcnt vmcnt(0)
        v_subrev_u32 v14, s23, v11
        v_cmp_lt_u32 vcc, 15, v14
        s_cbranch_vccnz {l}a
        {l}b:
        v_cmp_ne_u32 vcc, s26, v11
        s_nop 1
        s_cmp_lg_u64 vcc, 0
        s_cselect_b32 s27, 1, s27
        s_branch {d}""")
    def sync(val, tag, post012=None, name=''):
        l3 = lab('w3'); lb = lab('sb')
        E(f"s_cmp_eq_u32 s18, 3\ns_cbranch_scc1 {l3}")
        E.waitvm(tag); publish(val); E.stamp('pub'+name)
        if post012: post012()
        E(f"s_branch {lb}\n{l3}:\ns_waitcnt vmcnt(0)")
        publish(val); poll(val)
        E(f"{lb}:\ns_waitcnt lgkmcnt(0)\ns_barrier"); E.lg = []; acquire(); E.stamp('poll'+name)
    def wpoll(val):
        if PKG: E(f"v_min_u32 v10, 26, v0\ns_mul_i32 s23, s17, {FST}\ns_add_u32 s23, s23, {FLAGP}\nv_lshl_add_u32 v10, v10, 2, s23")
        else: E(f"v_min_u32 v10, 26, v0\ns_mul_i32 s23, s17, 27\nv_add_u32 v10, s23, v10\nv_lshlrev_b32 v10, 7, v10\ns_and_b32 s23, s16, {REP-1}\ns_mul_i32 s23, s23, {RST}\ns_add_u32 s23, s23, {FLAGG+12}\nv_add_u32 v10, s23, v10")
        spin("buffer_load_dword v252, v10, s[8:11], 0 offen sc1", 1, val)
    def touch():
        E(f"v_lshlrev_b32 v14, 7, v0")
        for (base, sb, ms, n) in ((LBASE+XTMID, 's24', 10240, 80), (LBASE+HH, 's28', 24576, 192), (XF2, 's24', 10240, 80)):
            E(f"s_mul_i32 s38, s17, {ms}\ns_add_u32 s23, {sb}, s38\ns_add_u32 s23, s23, {base}")
            for i in range(0, n, 64):
                if n - i < 64: E(f"s_mov_b64 exec, {hex((1 << (n-i)) - 1)}")
                E.vmop("buffer_load_dword v255, v14, s[8:11], s23 offen sc1", 'tch'); E("s_add_u32 s23, s23, 8192")
            E("s_mov_b64 exec, -1")
        E(f"s_mul_i32 s23, s16, 10240\ns_mul_i32 s38, s17, 1280\ns_add_u32 s23, s23, s38\ns_add_u32 s23, s23, {LBASE+SS}\ns_mov_b64 exec, 0x3ff")
        E.vmop("buffer_load_dword v255, v14, s[8:11], s23 offen sc1", 'tch')
        E(f"s_lshl_b32 s23, s16, 12\ns_lshl_b32 s38, s17, 9\ns_add_u32 s23, s23, s38\ns_add_u32 s23, s23, {S2B}\ns_mov_b64 exec, 0xf")
        E.vmop("buffer_load_dword v255, v14, s[8:11], s23 offen sc1", 'tch')
        E("s_mov_b64 exec, -1")
    def hpoison(L):
        E(f"s_mul_i32 s23, s17, 24576\ns_mul_i32 s38, s18, 6144\ns_add_u32 s23, s23, s38\ns_add_u32 s23, s23, s28\ns_add_u32 s23, s23, {LBASE+L*LSTR+HH}\ns_add_u32 s38, s23, 4096")
        for u in range(4): E(f"v_mov_b32 v{248+u}, -1")
        for i in range(6): E.vmop(f"buffer_store_dwordx4 v[248:251], v1, s[8:11], {'s23' if i < 4 else 's38'} offen offset:{1024*(i%4)}", 'psn')
        E("s_nop 1")
    def tpoison(L, P=248):
        l = lab('tp')
        E(f"""s_cmp_ge_u32 s18, s22
        s_cbranch_scc1 {l}
        s_mul_i32 s32, s21, 8192
        s_lshl_b32 s33, s20, 7
        s_add_u32 s32, s32, s33
        s_add_u32 s32, s32, {LBASE + L*TSTR + TT}
        s_add_u32 s33, s32, {8*81920}
        s_add_u32 s34, s32, {16*81920}
        s_add_u32 s35, s32, {24*81920}
        v_lshrrev_b32 v14, 3, v0
        v_mul_u32_u24 v14, 81920, v14
        v_and_b32 v15, 7, v0
        v_lshl_add_u32 v14, v15, 4, v14""")
        for u in range(4): E(f"v_mov_b32 v{P+u}, -1")
        for i in range(4): E(f"buffer_store_dwordx4 {vr(P)}, v14, s[8:11], s{32+i} offen sc1")
        E(f"s_nop 1\n{l}:")
    def ool(fn):
        sl, sv, sg = E.l, list(E.vm), list(E.lg); E.l = []
        fn(); OOL.append('\n'.join(E.l)); E.l, E.vm, E.lg = sl, sv, sg
    def p2a(L):
        lb = LBASE + L*LSTR
        l = lab('nou')
        E(f"s_cmp_ge_u32 s18, s22\ns_cbranch_scc1 {l}")
        TV = OPT['daf'] & (4 if L == 0 else 2)
        lr = lab('tr')
        if TV: E(f"s_mov_b32 s47, 0\n{lr}:")
        t_loads(L)
        E(f"v_add_u32 v14, {L_M2}, v1")
        for k in range(8): E.lgop(f"ds_read_b128 {vr(224+4*k)}, v14 offset:{1024*k}", ('M2', k))
        E(f"""s_cmp_eq_u32 s21, 9
        s_cselect_b32 s37, -1, 0
        s_mov_b32 s36, 0""")
        for k in range(8):
            E.waitvm(('T', k)); E.waitlg(('M2', k))
            if k == 0: E.stamp('T0')
            E(f"v_mfma_f32_32x32x16_bf16 {vr(208,16)}, {vr(160+4*k)}, {vr(224+4*k)}, {'0' if k == 0 else vr(208,16)}")
            if TV: E((f"v_max_u32 v15, v160, v161" if k == 0 else f"v_max3_u32 v15, v15, v{160+4*k}, v{161+4*k}") + f"\nv_max3_u32 v15, v15, v{162+4*k}, v{163+4*k}")
        if TV:
            E(f"v_cmp_eq_u32 vcc, -1, v15\ns_cbranch_vccnz {lr}a\n{lr}b:")
            OOL.append(f"{lr}a:\ns_add_u32 s47, s47, 1\n" + ("s_add_u32 s97, s97, 1\n" if OPT['stamps'] else '') + f"s_cmp_gt_u32 s47, {SPIN}\ns_cbranch_scc1 {lr}b\ns_branch {lr}")
        if L == 0: idload()
        E.waitvm('res')
        LO, HI, D = 160, 176, 208
        for u in range(8):
            E(f"""v_lshlrev_b32 v{LO+2*u}, 16, v{192+u}
            v_and_b32 v{LO+2*u+1}, 0xffff0000, v{192+u}""")
            if L: E(f"v_lshlrev_b32 v{HI+2*u}, 16, v{200+u}\nv_and_b32 v{HI+2*u+1}, 0xffff0000, v{200+u}")
            else: E(f"v_and_b32 v{HI+2*u}, 0xffff0000, v{200+(u^3)}\nv_lshlrev_b32 v{HI+2*u+1}, 16, v{200+(u^3)}")
        if L == 0: E(f"v_lshlrev_b32 v8, 16, v8\nv_cndmask_b32 v{HI+15}, v{HI+15}, v8, s[36:37]")
        XS = 'sc1' if L == 0 and OPT['xsc'] else ''
        for u in range(8): E(f"v_pk_add_f32 {vr(LO+2*u,2)}, {vr(LO+2*u,2)}, {vr(D+2*u,2)}")
        E(f"v_cndmask_b32 v{D+15}, v{D+15}, 0, s[36:37]")
        for u in range(8): E(f"v_cvt_pk_bf16_f32 v{192+u}, v{LO+2*u}, v{LO+2*u+1}")
        E(f"s_add_u32 s34, s33, {lb+XTMID}\ns_add_u32 s35, s34, 40960")
        for rh in range(2): E.vmop(f"buffer_store_dwordx4 {vr(192+4*rh)}, v3, s[8:11], s34 offen offset:{512*rh} {XS}", 'st')
        for u in range(8): E(f"v_pk_add_f32 {vr(HI+2*u,2)}, {vr(HI+2*u,2)}, {vr(D+2*u,2)}")
        for u in range(8): E(f"v_cvt_pk_bf16_f32 v{200+u}, v{HI+2*u}, v{HI+2*u+1}")
        for rh in range(2): E.vmop(f"buffer_store_dwordx4 {vr(200+4*rh)}, v4, s[8:11], s35 offen offset:{512*rh} {XS}", 'st')
        for (X, o) in ((LO, 224), (HI, 228)):
            E(f"v_pk_mul_f32 {vr(o+2,2)}, {vr(X,2)}, {vr(X,2)}\nv_pk_add_f32 {vr(o,2)}, {vr(X,2)}, {vr(X+2,2)}\nv_pk_fma_f32 {vr(o+2,2)}, {vr(X+2,2)}, {vr(X+2,2)}, {vr(o+2,2)}")
            for u in range(2, 8):
                E(f"v_pk_add_f32 {vr(o,2)}, {vr(o,2)}, {vr(X+2*u,2)}\nv_pk_fma_f32 {vr(o+2,2)}, {vr(X+2*u,2)}, {vr(X+2*u,2)}, {vr(o+2,2)}")
        E(f"""v_add_f32 v224, v224, v225
        v_add_f32 v225, v226, v227
        v_add_f32 v228, v228, v229
        v_add_f32 v229, v230, v231
        s_mul_i32 s23, s16, 10240
        s_lshl_b32 s38, s21, 9
        v_permlane32_swap_b32 v224, v228
        v_permlane32_swap_b32 v225, v229
        s_add_u32 s23, s23, s38
        s_add_u32 s23, s23, {lb+SS}
        v_pk_add_f32 v[224:225], v[224:225], v[228:229]""")
        E.vmop("buffer_store_dwordx2 v[224:225], v5, s[8:11], s23 offen", 'st')
        if L == 0:
            OOL.append(f"{l}:\nbuffer_load_dword v11, v12, s[8:11], 0 offen offset:{FLAGC+IDO} sc1\ns_waitcnt vmcnt(0)\ns_branch {l}x")
            E(f"{l}x:")
        else: E(f"{l}:")

    def rot(dst, base, add, mod, mul, plus):
        return f"s_add_u32 {dst}, {base}, {add}\ns_cmp_ge_u32 {dst}, {mod}\ns_cselect_b32 s38, {mod}, 0\ns_sub_u32 {dst}, {dst}, s38\ns_mul_i32 {dst}, {dst}, {mul}\ns_add_u32 {dst}, {dst}, {plus}"
    w1s = lambda p: f"s{42+p}" if p >= 11 else ['s96','s97','s98','s99','s43','s46','s47','s62'][10-p]
    def ffn1_pre(L):
        lb = LBASE + L*LSTR
        E(f"s_add_u32 s41, s24, {lb+XTMID}\ns_add_u32 s42, s29, s18\ns_lshl_b32 s40, s18, 12")
        for cc in range(5): E(rot(f"s{48+cc}", 's42', 4*cc, 20, 4096, 's41'))
        for p in range(NS, 20): E(rot(w1s(p), 's29', p, 20, 3072, 's39'))
        if L == 0:
            for kk in range(NW2, KS): E(rot(f"s{31+kk-NW2}", 's30', kk, 12, 5120, 's44'))
        E(f"""s_mul_i32 s42, s18, 3072
        s_min_u32 s42, s42, 7168
        s_mul_i32 s63, s16, 10240
        s_add_u32 s63, s63, s42
        s_add_u32 s63, s63, {lb+SS}
        s_add_u32 s42, s42, {L_RED}
        s_add_u32 m0, s40, {L_X}""")
    def ffn1(L):
        lb = LBASE + L*LSTR
        ACC, BF, ONES = 160, 208, 240
        xld = lambda cc, tt: E.vmop(f"buffer_load_dwordx4 v1, s[8:11], s{48+cc} offen offset:{1024*tt} {DS} lds", ('X', cc))
        for tt in range(4): xld(0, tt)
        E("s_mov_b32 m0, s42\nv_add_u32 v15, 0x10000, v1")
        for i in range(3): E.vmop(f"buffer_load_dwordx4 v1, s[8:11], s63 offen offset:{1024*i} {DS} lds", ('X', 1))
        E(f"s_add_u32 m0, s40, {L_X + 16384}\nv_lshlrev_b32 v14, 3, v0")
        for tt in range(4): xld(1, tt)
        E(f"v_add_u32 v14, {L_RED}, v14\nv_add_u32 v10, 4096, v1")
        if L == 0:
            for u in range(4): E(f"v_mov_b32 v{ONES+u}, 0x3f803f80")
            E("s_nop 0")
            E.waitvm(('W1', NS-1)); E("s_nop 0")
            for p in range(NS):
                for t in range(3):
                    E(f"v_mfma_f32_16x16x32_bf16 {ar(240+4*t)}, {vr(16+12*p+4*t)}, {vr(ONES)}, {'0' if p == 0 else ar(240+4*t)}")
        rdB = lambda p, tt: E.lgop(f"ds_read_b128 {vr(BF+16*(p&1)+4*tt)}, {'v1' if p < 16 else 'v15'} offset:{L_X + (p%16)*4096 + tt*1024}", ('B', p, tt))
        Q = []
        w1one = lambda p, t: E.vmop(f"buffer_load_dwordx4 {vr(16+12*(p%12)+4*t)}, v1, s[8:11], {w1s(p)} offen offset:{1024*t}", ('W1', p))
        w2one = lambda kk, t: E.vmop(f"buffer_load_dwordx4 {ar(20*kk+4*t)}, {'v1' if t < 4 else 'v10'}, s[8:11], s{31+kk-NW2} offen offset:{1024*(t%4)}", 'W2')
        for it in list(range(NS, 8)) + [('X', 2)] + list(range(max(NS, 8), 12)) + [('X', 3), 12, 13, 14, 15, ('X', 4), 16, 17, 18, 19]:
            if isinstance(it, tuple): Q += [(0, (lambda c=it[1], t=t: xld(c, t)), (it[1] if t == 0 else None)) for t in range(4)]
            else: Q += [(max(it-11, 0), (lambda p=it, t=t: w1one(p, t)), None) for t in range(3)]
        NQ2 = 5*(KS-NW2) if L == 0 else 0
        if L == 0:
            for kk in range(NW2, KS): Q += [(0, (lambda k=kk, t=t: w2one(k, t)), None) for t in range(5)]
        FL = (f"s_mul_i32 s23, s17, 6\ns_add_u32 s41, s23, s18\ns_lshl_b32 s41, s41, 12\ns_add_u32 s41, s41, s28\ns_add_u32 s41, s41, {lb+HH}\n"
              f"s_lshr_b32 s42, s18, 1\ns_add_u32 s42, s42, s23\ns_add_u32 s42, s42, 4\ns_lshl_b32 s42, s42, 12\ns_add_u32 s42, s42, s28\ns_add_u32 s42, s42, {lb+HH}\n"
              f"s_mul_i32 s43, s18, {12*4096}\ns_add_u32 s43, s43, s28\ns_add_u32 s43, s43, {lb+HH}\ns_lshl_b32 s47, s30, 12\ns_add_u32 s52, s47, s43\ns_add_u32 s43, s43, {12*4096}").split('\n')
        for kk in range(1, 12): FL += [f"s_add_u32 s{52+kk}, s{51+kk}, 4096", f"s_cmp_ge_u32 s{52+kk}, s43\ns_cselect_b32 s38, {12*4096}, 0", f"s_sub_u32 s{52+kk}, s{52+kk}, s38"]
        for b in range(4): FL += [f"s_add_u32 s{48+b}, s18, {b+1}", f"s_and_b32 s{48+b}, s{48+b}, 3", f"s_lshl_b32 s{48+b}, s{48+b}, 10"]
        E.waitvm(('X', 0)); E("s_barrier"); E.stamp('X0')
        for tt in range(4): rdB(0, tt)
        ST, SM = 244, 248
        for p in range(20):
            n = 0
            slots = (5, 7, 9) if p < OPT['p4s'] else (4, 6, 8, 10)
            for tt in range(4):
                for t in range(3):
                    if n == 0: E.waitvm(('W1', p))
                    if t == 0: E.waitlg(('B', p, tt))
                    a = ACC + 16*t + 4*tt
                    E(f"v_mfma_f32_16x16x32_bf16 {vr(a)}, {vr(16+12*(p%12)+4*t)}, {vr(BF+16*(p&1)+4*tt)}, {'0' if p == 0 else vr(a)}")
                    n += 1
                    if n == 1 and p < 19 and (p+1) % 4 == 0: E.waitvm(('X', (p+1)//4)); E("s_barrier")
                    if n in (2, 4, 6, 8) and p < 19: rdB(p+1, n//2-1)
                    if n+1 in slots and Q and Q[0][2] is not None: E(f"s_add_u32 m0, s40, {L_X + Q[0][2]*16384}")
                    if n in slots and Q and Q[0][0] <= p: Q.pop(0)[1]()
                    if p >= 11 and len(Q) <= NQ2 and FL and n % 2 == 1: E(FL.pop(0))
                    if p >= 11 and len(Q) <= NQ2 and FL and n in (2, 12): E(FL.pop(0))
                    if 4 <= p <= 8:
                        if n in (1, 3): E.lgop(f"ds_read2st64_b64 {vr(SM+2*(n-1))}, v14 offset0:{4*(p-4)+n-1} offset1:{4*(p-4)+n}", ('S', p))
                        if n == 10:
                            E.waitlg(('S', p))
                            E(f"v_add_f32 v{SM}, v{SM}, v{SM+2}\nv_add_f32 v{SM+1}, v{SM+1}, v{SM+3}")
                        if n == 11: E(f"v_add_f32 v{SM+4}, v{SM+4}, v{SM+6}\nv_add_f32 v{SM+5}, v{SM+5}, v{SM+7}")
                        if n == 12:
                            if p == 4: E(f"v_add_f32 v{ST}, v{SM}, v{SM+4}\nv_add_f32 v{ST+1}, v{SM+1}, v{SM+5}")
                            else: E(f"v_add3_f32 v{ST}, v{SM}, v{SM+4}, v{ST}\nv_add3_f32 v{ST+1}, v{SM+1}, v{SM+5}, v{ST+1}".replace('v_add3_f32', 'v_xadd') if 0 else
                                    f"v_add_f32 v{ST}, v{ST}, v{SM}\nv_add_f32 v{ST+1}, v{ST+1}, v{SM+1}\nv_add_f32 v{ST}, v{ST}, v{SM+4}\nv_add_f32 v{ST+1}, v{ST+1}, v{SM+5}")
                    if p == 9:
                        seq = [f"v_mul_f32 v{ST}, {f2h(1/640)}, v{ST}", f"v_mul_f32 v{ST+1}, {f2h(1/640)}, v{ST+1}",
                               f"v_fma_f32 v{ST+1}, -v{ST}, v{ST}, v{ST+1}", f"v_max_f32 v{ST+1}, 0, v{ST+1}",
                               f"v_add_f32 v{ST+1}, {f2h(1e-5)}, v{ST+1}", f"v_rsq_f32 v{ST+1}, v{ST+1}",
                               f"v_and_b32 v{ST+2}, 15, v0", f"v_lshlrev_b32 v{ST+2}, 2, v{ST+2}", f"s_lshl_b32 s23, s18, 6",
                               f"v_add_u32 v{ST+3}, s23, v{ST+2}", f"v_sub_f32 v{ST}, 0, v{ST}", None]
                        if seq[n-1]: E(seq[n-1])
                    if p == 10 and n in (1, 3, 10, 11): tt2 = (1, 3, 10, 11).index(n); E.lgop(f"ds_bpermute_b32 v{SM+2*tt2}, v{ST+2}, v{ST} offset:{64*tt2}", 'm')
                    if p == 10 and n == 12: E.lgop(f"ds_bpermute_b32 v7, v{ST+3}, v{ST+1}", 'm')
            if L == 0 and p >= NS:
                for t in range(3):
                    E(f"v_mfma_f32_16x16x32_bf16 {ar(240+4*t)}, {vr(16+12*(p%12)+4*t)}, {vr(ONES)}, {ar(240+4*t)}")
        assert not Q, len(Q)
        for x in FL: E(x)
        E.stamp('f1end')
        CS = 128
        E("s_nop 5")
        for i in range(12): E(f"v_accvgpr_read_b32 v{CS+i}, a{240+i}")
        E.waitlg()
        O = 16
        for tt in range(4):
            for t in range(3):
                a = ACC + 16*t + 4*tt
                for u in range(2):
                    E(f"v_pk_fma_f32 {vr(a+2*u,2)}, {vr(CS+4*t+2*u,2)}, {vr(SM+2*tt,2)}, {vr(a+2*u,2)} op_sel_hi:[1,0,1]")
            for t in range(3):
                a = ACC + 16*t + 4*tt
                o = O + 4*tt + 2*t if t < 2 else O + 16 + 2*tt
                for u in range(2): E(f"v_cvt_pk_bf16_f32 v{o+u}, v{a+2*u}, v{a+2*u+1}")
            for t in range(3):
                o = O + 4*tt + 2*t if t < 2 else O + 16 + 2*tt
                for u in range(2): E(f"v_pk_max_i16 v{o+u}, v{o+u}, 0")
            E.vmop(f"buffer_store_dwordx4 {vr(O+4*tt)}, v1, s[8:11], s41 offen offset:{1024*tt}", 'st')
            if tt & 1:
                o = O + 16 + 2*(tt-1)
                E(f"s_nop 0\nv_permlane32_swap_b32 v{o}, v{o+2}\nv_permlane32_swap_b32 v{o+1}, v{o+3}")
                E.vmop(f"buffer_store_dwordx4 {vr(o)}, v6, s[8:11], s42 offen offset:{1024*(tt-1)}", 'st')

    def ffn2(L):
        lb = LBASE + L*LSTR
        HF, ACC = 16, (208, 228)
        for b in range(4): E(f"v_add_u32 v{248+b}, s{48+b}, v1")
        HQ = [(b, kk) for b in range(4) for kk in range(12)]
        def hld():
            b, kk = HQ.pop(0)
            E.vmop(f"buffer_load_dwordx4 {vr(HF+48*b+4*kk)}, v{248+b}, s[8:11], s{52+kk} offen {DS}", ('h', b, kk))
        RES, PART = 16, 64
        DAF = OPT['daf'] & 1
        issued = []
        hins = lambda b, kk: f"buffer_load_dwordx4 {vr(HF+48*b+4*kk)}, v{248+b}, s[8:11], s{52+kk} offen {DS}"
        chk = lambda b, kk: [f"v_or3_b32 v252, v{HF+48*b+4*kk}, v{HF+48*b+4*kk+1}, v{HF+48*b+4*kk+2}", f"v_or_b32 v252, v252, v{HF+48*b+4*kk+3}", "v_cmp_gt_i32 vcc, 0, v252"]
        if OPT['c1']: chk = lambda b, kk: [f"v_cmp_gt_i32 vcc, 0, v{HF+48*b+4*kk+3}"]
        def retry(b, kk):
            l = lab('hr'); pend = [x for x in [(bb, k2) for bb in range(4) for k2 in range(12)] if x >= (b, kk) and x not in HQ]
            if b >= 2 or (b == 1 and kk > 0): pend = [(b, kk)]
            E(f"s_cbranch_vccnz {l}\n{l}b:")
            OOL.append(f"{l}:\ns_mov_b32 s38, 0\n{l}a:\n" + (f"s_add_u32 s97, s97, {1 if b == 0 else 100}\n" if OPT['stamps'] else '') + '\n'.join(hins(*x) for x in pend) + f"\ns_add_u32 s38, s38, 1\ns_cmp_gt_u32 s38, {SPIN}\ns_cbranch_scc1 {l}b\ns_waitcnt vmcnt(0)\n"
                       + '\n'.join(chk(b, kk)) + f"\ns_cbranch_vccnz {l}a\ns_branch {l}b")
        if DAF:
            l = lab('hs')
            E(f"s_cmp_lg_u32 s27, 0\ns_cbranch_scc1 {l}\n{l}b:")
            def slow():
                E(f"{l}:"); st = OPT['stamps']; OPT['stamps'] = ''
                sync(4*L+2, None); OPT['stamps'] = st
                E(f"s_branch {l}b")
            ool(slow)
            if L == 0:
                l = lab('w2s'); E(f"s_cmp_eq_u32 s18, 3\ns_cbranch_scc1 {l}")
                assert not OPT['hw'] or 5*(12-KS) < 60
                for kk in range(KS, 12): w2_loads(kk)
                if OPT['hw']: E.waitvm('st'); E(f"s_branch {l}x\n{l}:\ns_waitcnt vmcnt(0)\n{l}x:")
                else: E(f"{l}:")
            elif OPT['hw']: E.waitvm('st')
            E.stamp('pubh')
        else:
            sync(4*L+2, 'st', post012=(lambda: [w2_loads(kk) for kk in range(KS, 12)]) if L == 0 else None, name='h')
        for i in range(OPT['hpre']): hld()
        E(f"""v_lshrrev_b32 v14, 4, v0
        v_and_b32 v15, 15, v0
        s_mul_i32 s23, s17, 5
        v_add_u32 v8, s23, v14
        v_lshrrev_b32 v9, 2, v8
        v_lshlrev_b32 v9, 12, v9
        v_and_b32 v10, 3, v8
        v_lshl_add_u32 v9, v10, 8, v9
        v_lshlrev_b32 v10, 9, v8
        s_lshl_b32 s38, s18, 10
        v_lshl_add_u32 v11, v15, 4, s38
        v_add_u32 v8, v9, v11
        s_add_u32 s23, s23, 4
        s_lshr_b32 s35, s23, 2
        s_lshl_b32 s35, s35, 12
        s_and_b32 s36, s23, 3
        s_lshl_b32 s36, s36, 8
        s_add_u32 s35, s35, s36
        v_lshl_add_u32 v9, v14, 2, v11
        v_add_u32 v9, s35, v9
        s_lshr_b32 s35, s18, 1
        s_mul_i32 s35, s35, 40960
        s_and_b32 s36, s18, 1
        s_lshl_b32 s36, s36, 8
        s_add_u32 s35, s35, s36
        v_lshl_add_u32 v11, v15, 4, s35
        v_add_u32 v10, v10, v11
        s_lshl_b32 s23, s23, 9
        v_lshl_add_u32 v11, v14, 2, v11
        v_add_u32 v11, s23, v11""")
        if L == 0 and OPT['pr'] & 2:
            E(f"""s_add_u32 s34, s24, {XF2}
            s_add_u32 s35, s34, 20480
            s_lshl_b32 s23, s16, 12
            s_lshl_b32 s38, s17, 9
            s_add_u32 s23, s23, s38
            s_lshl_b32 s38, s18, 7
            s_add_u32 s23, s23, s38
            s_add_u32 s23, s23, {S2B}
            v_and_b32 v14, 31, v0
            v_lshlrev_b32 v14, 2, v14""")
            for (a, n, sr) in (('v10', 4, 's34'), ('v10', 4, 's35'), ('v11', 1, 's34'), ('v11', 1, 's35'), ('v14', 1, 's23')):
                E.vmop(f"buffer_store_dwordx4 v[0:3], {a}, s[8:11], {sr} offen" if n == 4 else f"buffer_store_dword v0, {a}, s[8:11], {sr} offen", 'pr')
        if L == 1:
            E(f"""s_sub_u32 s23, 64, s16
            s_cmp_eq_u32 s16, 0
            s_cselect_b32 s23, 32, s23
            s_cmp_lt_u32 s18, 2
            s_cselect_b32 s23, s16, s23
            s_and_b32 s38, s18, 1
            s_lshl_b32 s38, s38, 10
            s_add_u32 s23, s23, s38
            v_and_b32 v14, 15, v0
            v_lshl_add_u32 v14, v14, 6, s23
            v_mul_u32_u24 v14, 1280, v14
            v_lshrrev_b32 v15, 4, v0
            s_mul_i32 s23, s17, 80
            s_add_u32 s38, s23, 2
            v_lshl_add_u32 v2, v15, 4, s38
            v_add_u32 v2, v2, v14
            s_sub_u32 s38, 1264, s23
            v_lshlrev_b32 v3, 4, v15
            v_sub_u32 v3, s38, v3
            v_add_u32 v3, v3, v14
            s_add_u32 s38, s23, 66
            v_lshl_add_u32 v4, v15, 2, s38
            v_add_u32 v4, v4, v14
            s_sub_u32 s38, 1214, s23
            v_lshlrev_b32 v5, 2, v15
            v_sub_u32 v5, s38, v5
            v_add_u32 v6, -2, v5
            v_cmp_eq_u32 vcc, 640, v6
            v_add_u32 v5, v5, v14
            s_nop 0
            v_cndmask_b32 v6, v6, 0, vcc
            v_add_u32 v6, v6, v14""")
            if OPT['pr'] & 4:
                for x in ("dwordx4 v[8:11], v2", "dwordx4 v[8:11], v3", "dword v8, v4", "short v8, v5", "short v8, v6"): E.vmop(f"buffer_store_{x}, s[12:15], 0 offen", 'pr')
        E.waitvm('W2')
        if DAF:
            E.waitvm(('h', 0, 0))
            for c in chk(0, 0): E(c)
            retry(0, 0)
        for b in range(4):
            A = ACC[b & 1]; P = ACC[(b+1) & 1]
            n = 0
            for kk in range(12):
                E.waitvm(('h', b, kk))
                if b == 0 and kk == 0: E.stamp('h0')
                for t in range(5):
                    E(f"v_mfma_f32_16x16x32_bf16 {vr(A+4*t)}, {ar(20*kk+4*t)}, {vr(HF+48*b+4*kk)}, {'0' if kk == 0 else vr(A+4*t)}")
                    n += 1
                    if t == 1 and HQ: hld()
                    if DAF and (b, kk) != (3, 11):
                        nb, nk = (b, kk+1) if kk < 11 else (b+1, 0)
                        if OPT['c1']:
                            if t == 2 + OPT['cw']: E.waitvm(('h', nb, nk)); E(chk(nb, nk)[0])
                        else:
                            if t == 0: E.waitvm(('h', nb, nk))
                            if t == 2: E(chk(nb, nk)[0]); E(chk(nb, nk)[1])
                            if t == 3: E(chk(nb, nk)[2])
                        if t == 4: retry(nb, nk)
                    if b >= 1 and n == 9:
                        E(f"s_add_u32 s23, s18, {b}\ns_and_b32 s23, s23, 3\ns_mul_i32 s23, s23, {3*5120}\ns_add_u32 s23, s23, {L_RED + (b-1)*5120}\nv_add_u32 v14, s23, v1")
                    if b >= 1 and 11 <= n <= 19 and n % 2 == 1:
                        t2 = (n-11)//2
                        E.lgop(f"ds_write_b128 v14, {vr(P+4*t2)} offset:{1024*t2}", 'red')
                    if b == 1 and n == 25:
                        E(f"s_add_u32 s34, s24, {lb+XTMID}\ns_add_u32 s35, s34, 40960")
                        E.vmop(f"buffer_load_dwordx4 {vr(RES)}, v8, s[8:11], s34 offen {DS}", 'res')
                        E.vmop(f"buffer_load_dwordx4 {vr(RES+4)}, v8, s[8:11], s35 offen {DS}", 'res')
                        E.vmop(f"buffer_load_dword v{RES+8}, v9, s[8:11], s34 offen {DS}", 'res')
                        E.vmop(f"buffer_load_dword v{RES+9}, v9, s[8:11], s35 offen {DS}", 'res')
                    if b == 3 and n == 30:
                        E.waitlg(); E(f"s_barrier\ns_mul_i32 s23, s18, {3*5120}\ns_add_u32 s23, s23, {L_RED}\nv_add_u32 v14, s23, v1")
                    if b == 3 and 32 <= n < 47:
                        i = n - 32
                        E.lgop(f"ds_read_b128 {vr(PART+4*i)}, v14 offset:{1024*i}", 'part')
        E.stamp('f2end')
        if OPT['stamps']: E.note('cnt', 's97'); E("s_mov_b32 s97, 0")
        A = ACC[1]
        X = 32
        E.waitvm('res')
        pr = lambda u: (8*(u >> 2) + (u & 3), 8*(u >> 2) + (u & 3) + 4) if u < 8 else (2*u, 2*u+1)
        for u in range(10): E(f"v_lshlrev_b32 v{X+pr(u)[0]}, 16, v{RES+u}\nv_and_b32 v{X+pr(u)[1]}, 0xffff0000, v{RES+u}")
        E.waitlg()
        for u in range(10):
            E(f"v_pk_add_f32 {vr(PART+2*u,2)}, {vr(PART+2*u,2)}, {vr(PART+20+2*u,2)}\nv_pk_add_f32 {vr(A+2*u,2)}, {vr(A+2*u,2)}, {vr(PART+40+2*u,2)}")
        for u in range(10):
            E(f"v_pk_add_f32 {vr(A+2*u,2)}, {vr(A+2*u,2)}, {vr(PART+2*u,2)}")
        E("v_mov_b32 v14, v7")
        for u in range(10):
            E(f"v_pk_fma_f32 {vr(X+2*u,2)}, {vr(A+2*u,2)}, v[14:15], {vr(X+2*u,2)} op_sel_hi:[1,0,1]")
        O = 64
        if L == 0:
            nb = LBASE + LSTR
            for u in range(10): E(f"v_cvt_pk_bf16_f32 v{O+u}, v{X+pr(u)[0]}, v{X+pr(u)[1]}")
            EE, OO = 80, 92
            for u in range(4):
                E(f"v_pk_add_f32 {vr(EE+2*u,2)}, {vr(X+2*u,2)}, {vr(X+8+2*u,2)}\nv_pk_add_f32 {vr(OO+2*u,2)}, {vr(X+2*u,2)}, {vr(X+8+2*u,2)} neg_lo:[0,1] neg_hi:[0,1]")
            E(f"""v_pk_add_f32 {vr(EE+8,2)}, {vr(X+16,2)}, {vr(X+18,2)}
            v_pk_add_f32 {vr(OO+8,2)}, {vr(X+16,2)}, {vr(X+18,2)} neg_lo:[0,1] neg_hi:[0,1]
            s_cmp_eq_u32 s17, 7
            s_cselect_b32 s37, 0xffff0000, 0
            s_mov_b32 s36, 0
            s_add_u32 s34, s24, {XF2}
            s_add_u32 s35, s34, 20480
            v_cndmask_b32 v{EE+9}, v{EE+9}, v{X+17}, s[36:37]
            v_cndmask_b32 v{OO+9}, v{OO+9}, v{X+19}, s[36:37]""")
            for u in range(5):
                a, b = (u, u+4) if u < 4 else (8, 9)
                E(f"v_cvt_pk_bf16_f32 v{EE+u}, v{EE+a}, v{EE+b}\nv_cvt_pk_bf16_f32 v{OO+u}, v{OO+a}, v{OO+b}")
            E.vmop(f"buffer_store_dwordx4 {vr(EE)}, v10, s[8:11], s34 offen", 'st')
            E.vmop(f"buffer_store_dwordx4 {vr(OO)}, v10, s[8:11], s35 offen", 'st')
            E.vmop(f"buffer_store_dword v{EE+4}, v11, s[8:11], s34 offen", 'st')
            E.vmop(f"buffer_store_dword v{OO+4}, v11, s[8:11], s35 offen", 'st')
            E(f"v_pk_mul_f32 v[106:107], {vr(X,2)}, {vr(X,2)}\nv_pk_add_f32 v[104:105], {vr(X,2)}, {vr(X+2,2)}\nv_pk_fma_f32 v[106:107], {vr(X+2,2)}, {vr(X+2,2)}, v[106:107]")
            for u in range(2, 10): E(f"v_pk_add_f32 v[104:105], v[104:105], {vr(X+2*u,2)}\nv_pk_fma_f32 v[106:107], {vr(X+2*u,2)}, {vr(X+2*u,2)}, v[106:107]")
            E(f"""v_add_f32 v104, v104, v105
            v_add_f32 v105, v106, v107
            s_lshl_b32 s23, s16, 12
            s_lshl_b32 s38, s17, 9
            s_add_u32 s23, s23, s38
            v_permlane32_swap_b32 v104, v105
            s_lshl_b32 s38, s18, 7
            s_add_u32 s23, s23, s38
            v_add_f32 v104, v104, v105
            s_add_u32 s23, s23, {S2B}
            v_mov_b32 v105, v104
            v_and_b32 v106, 15, v0
            v_lshrrev_b32 v107, 5, v0
            v_permlane16_swap_b32 v104, v105
            v_lshlrev_b32 v106, 3, v106
            v_lshl_add_u32 v106, v107, 2, v106
            v_add_f32 v104, v104, v105""")
            E.vmop("buffer_store_dword v104, v106, s[8:11], s23 offen", 'st')
            E(f"s_add_u32 s34, s24, {nb+XTIN}\ns_add_u32 s35, s34, 40960")
            E.vmop(f"buffer_store_dwordx4 {vr(O)}, v8, s[8:11], s34 offen", 'st')
            E.vmop(f"buffer_store_dwordx4 {vr(O+4)}, v8, s[8:11], s35 offen", 'st')
            E.vmop(f"buffer_store_dword v{O+8}, v9, s[8:11], s34 offen", 'st')
            E.vmop(f"buffer_store_dword v{O+9}, v9, s[8:11], s35 offen", 'st')
        else:
            for u in range(4): E(f"v_cvt_pk_bf16_f32 v{O+u}, v{X+u}, v{X+4+u}\nv_cvt_pk_bf16_f32 v{O+4+u}, v{X+15-u}, v{X+11-u}")
            OS = 'sc1' if OPT['outsc'] else ''
            E(f"""buffer_store_dwordx4 {vr(O)}, v2, s[12:15], 0 offen {OS}
            v_cvt_pk_bf16_f32 v{O+8}, v{X+16}, v{X+17}
            v_cvt_pk_bf16_f32 v{O+9}, v{X+18}, v{X+19}
            buffer_store_dwordx4 {vr(O+4)}, v3, s[12:15], 0 offen {OS}
            buffer_store_dword v{O+8}, v4, s[12:15], 0 offen {OS}
            buffer_store_short v{O+9}, v5, s[12:15], 0 offen {OS}
            buffer_store_short_d16_hi v{O+9}, v6, s[12:15], 0 offen {OS}""")

    def p4():
        def g():
            l = lab('nog')
            E(f"s_cmp_ge_u32 s18, s22\ns_cbranch_scc1 {l}")
            gen_G(E, 's21')
            E(f"{l}:"); E.stamp('gen')
        if OPT['xp']: E(f"s_mul_i32 s34, s19, 40960\ns_add_u32 s34, s34, s24\ns_lshl_b32 s36, s18, 10\ns_add_u32 s34, s34, s36\ns_add_u32 s34, s34, {XF2}\ns_add_u32 s35, s34, 20480\ns_add_u32 m0, s36, {L_X}")
        sync(3, None, post012=g, name='xf')
        if OPT['xp']:
            for c in range(5):
                E.vmop(f"buffer_load_dwordx4 v1, s[8:11], s34 offen {DS} lds", ('XF', c))
                E(f"s_add_u32 m0, s36, {L_X + 20480 + 4096*c}\ns_add_u32 s34, s34, 4096")
                E.vmop(f"buffer_load_dwordx4 v1, s[8:11], s35 offen {DS} lds", ('XF', c))
                if c < 4: E(f"s_add_u32 m0, s36, {L_X + 4096*(c+1)}\ns_add_u32 s35, s35, 4096")
            E.stamp('yi')
            sv = list(E.vm)
            l = lab('nou'); l3 = lab('xw3'); lx = lab('xend')
            E(f"""s_cmp_ge_u32 s18, s22
            s_cbranch_scc1 {l}
            v_mov_b32 v10, v13
            v_lshrrev_b32 v9, 5, v0
            v_lshlrev_b32 v9, 4, v9
            v_add_u32 v9, {L_R}, v9
            s_mul_i32 s32, s21, 8192
            s_lshl_b32 s33, s20, 7
            s_add_u32 s32, s32, s33
            s_add_u32 s32, s32, {LBASE + TSTR + TT}""")
            def chunk(c):
                E.waitvm(('XF', c)); E("s_barrier")
                if c == 0: E.stamp('xf')
            dft_unit(E, L_X, 512, L_M1, 'v9', 's32', 'sc1', chunk=chunk)
            E(f"v_mov_b32 v13, v10\ns_branch {lx}\n{l}:")
            sv2 = list(E.vm); E.vm = sv
            E(f"""s_cmp_lg_u32 s18, 3
            s_cbranch_scc1 {l3}
            v_and_b32 v14, 31, v0
            v_lshlrev_b32 v14, 3, v14
            s_lshl_b32 s23, s16, 12
            s_lshl_b32 s38, s19, 8
            s_add_u32 s23, s23, s38
            s_add_u32 s23, s23, {S2B}""")
            for m in range(8): E.vmop(f"buffer_load_dwordx2 {vr(224+2*m,2)}, v14, s[8:11], s23 offen offset:{512*m} {DS}", 'S')
            for c in range(4): E.waitvm(('XF', c)); E("s_barrier")
            E.waitvm('S')
            for m in range(1, 8): E(f"v_pk_add_f32 v[224:225], v[224:225], {vr(224+2*m,2)}")
            E(f"""v_mul_f32 v224, {f2h(1/640)}, v224
            v_mul_f32 v225, {f2h(1/640)}, v225
            v_fma_f32 v225, -v224, v224, v225
            v_max_f32 v225, 0, v225
            v_add_f32 v225, {f2h(1e-5)}, v225
            v_rsq_f32 v225, v225
            v_lshlrev_b32 v14, 2, v0
            v_add_u32 v14, {L_R}, v14
            ds_write_b32 v14, v225
            s_waitcnt lgkmcnt(0)
            s_barrier
            s_branch {lx}
            {l3}:""")
            E.vm = list(sv)
            for c in range(5): E.waitvm(('XF', c)); E("s_barrier")
            E(f"{lx}:"); E.vm = sv2
            return
        E(f"""s_mul_i32 s23, s19, 40960
        s_add_u32 s23, s23, s24
        s_mul_i32 s38, s18, 10240
        s_add_u32 s23, s23, s38
        s_add_u32 s23, s23, {XF2}""")
        for i in range(10):
            if i % 4 == 0: E(f"s_add_u32 m0, s38, {L_X + 1024*i}\ns_add_u32 s34, s23, {1024*i}")
            E.vmop(f"buffer_load_dwordx4 v1, s[8:11], s34 offen offset:{1024*(i%4)} {DS} lds", 'XF')
        E(f"""v_and_b32 v14, 31, v0
        v_lshlrev_b32 v14, 3, v14
        s_lshl_b32 s23, s16, 12
        s_lshl_b32 s38, s19, 8
        s_add_u32 s23, s23, s38
        s_add_u32 s23, s23, {S2B}""")
        for m in range(8): E.vmop(f"buffer_load_dwordx2 {vr(224+2*m,2)}, v14, s[8:11], s23 offen offset:{512*m} {DS}", 'S')
        E.stamp('yi')
        if OPT['daf'] & 1: hpoison(1)
        E.stamp('yp')
        E.waitvm('XF'); E.stamp('yx')
        E.waitvm('S'); E.stamp('ys')
        for m in range(1, 8): E(f"v_pk_add_f32 v[224:225], v[224:225], {vr(224+2*m,2)}")
        E(f"""v_mul_f32 v224, {f2h(1/640)}, v224
        v_mul_f32 v225, {f2h(1/640)}, v225
        v_fma_f32 v225, -v224, v224, v225
        v_max_f32 v225, 0, v225
        v_add_f32 v225, {f2h(1e-5)}, v225
        v_rsq_f32 v225, v225
        s_lshl_b32 s23, s18, 8
        s_add_u32 s23, s23, {L_R}
        v_lshl_add_u32 v14, v0, 2, s23
        ds_write_b32 v14, v225
        v_lshrrev_b32 v9, 5, v0
        v_lshl_add_u32 v9, v9, 4, s23
        s_waitcnt lgkmcnt(0)
        s_barrier""")
        E.stamp('xf')
        l = lab('nou')
        E(f"""s_cmp_ge_u32 s18, s22
        s_cbranch_scc1 {l}
        v_mov_b32 v10, v13
        s_mul_i32 s32, s21, 8192
        s_lshl_b32 s33, s20, 7
        s_add_u32 s32, s32, s33
        s_add_u32 s32, s32, {LBASE + TSTR + TT}""")
        dft_unit(E, L_X, 512, L_M1, 'v9', 's32', 'sc1')
        E(f"v_mov_b32 v13, v10\n{l}:")

    NA, NB = OPT['na'], OPT['nb']
    E(f"""s_cmp_eq_u32 s18, 3
    s_cbranch_scc1 k2_w3a
    s_cmp_ge_u32 s18, s22
    s_cbranch_scc1 k2_nou0
    s_mul_i32 s32, s21, 8192
    s_lshl_b32 s33, s20, 7
    s_add_u32 s32, s32, s33
    s_add_u32 s32, s32, {LBASE + TT}""")
    dft_unit(E, L_X, XFS, L_M1, 'v9', 's32', 'sc1')
    E("k2_nou0:"); E.stamp('dft')
    if not OPT['daf'] & 4: E.waitvm()
    gflag(1); E.stamp('gpub0')
    if OPT['daf'] & 2: tpoison(1)
    setup()
    if OPT['daf'] & 1: hpoison(0)
    res_loads(0); gen_M2()
    E("s_barrier"); E.stamp('w1ok')
    w1_loads(0, NA)
    sv = list(E.vm)
    E("s_branch k2_B2\nk2_w3a:")
    gflag(1)
    setup()
    E(f"v_mov_b32 v14, s45\nv_mov_b32 v15, s26\ns_mov_b64 exec, 1\nbuffer_store_dword v15, v14, s[8:11], 0 offen offset:{FLAGC+IDO-12} sc1\ns_mov_b64 exec, -1")
    if OPT['daf'] & 1: hpoison(0)
    gen_M2()
    wpoll(1); E.stamp('pkpoll')
    w1_loads(0, NS)
    E("s_barrier")
    for kk in list(range(NW2)) + list(range(KS, 12)): w2_loads(kk)
    if OPT['touch'] == 1: touch()
    gpoll(1)
    E("k2_B2:\ns_waitcnt lgkmcnt(0)\ns_barrier"); E.lg = []; E.stamp('gpoll0')
    E.vm = sv
    E.pre = 'k2_a_'
    E("s_cmp_eq_u32 s18, 3\ns_cbranch_scc1 k2_w3b")
    p2a(0)
    E.stamp('p2a')
    E.waitvm(); idcheck(); publish(1); E.stamp('pub1')
    w1_loads(NA, NS)
    for kk in range(NW2): w2_loads(kk)
    ffn1_pre(0)
    sv = list(E.vm)
    E("s_branch k2_sb1\nk2_w3b:")
    if OPT['touch'] == 3: touch()
    ffn1_pre(0)
    idload(); E.waitvm(); idcheck(); publish(1); poll(1)
    E("k2_sb1:\ns_barrier"); acquire(); E.stamp('poll1')
    E.vm = sv
    ffn1(0)
    ffn2(0)
    p4()
    E("s_cmp_eq_u32 s18, 3\ns_cbranch_scc1 k2_gpoll")
    if not OPT['daf'] & 2: E.waitvm()
    gflag(2); E.stamp('gpub')
    res_loads(1)
    if OPT['xp'] and OPT['daf'] & 1: hpoison(1)
    w1_loads(0, NB)
    sv = list(E.vm)
    E("s_branch k2_gdone\nk2_gpoll:")
    if OPT['xp'] and OPT['daf'] & 1: hpoison(1)
    w1_loads(0, NS)
    gpoll(2)
    E("k2_gdone:\ns_barrier")
    E.vm = sv
    E.stamp('gpoll')
    E.pre = 'k2_b_'
    p2a(1)
    E.stamp('p2a')
    ffn1_pre(1)
    sync(5, None, post012=lambda: w1_loads(NB, NS), name='1')
    ffn1(1)
    ffn2(1)
    if OPT['stamps']: E("s_waitcnt vmcnt(0)"); E.stamp('end')
    E.dump_stamps('s18'); E.dump_dbg()
    E("k2_done:\ns_endpgm")
    for o in OOL: E(o)
    E("k2_end:")
    return head(KN) + E.text()

src = f"""; FNet (folded hidden DFT + 2-stage sequence DFT on MFMA) + ReLU FFN, two layers, one persistent kernel.  Generated by hand-written generator scripts.
; @launch grid=(256,1,1) block=(256,1,1) lds={LDS2}
.amdgcn_target "amdgcn-amd-amdhsa--gfx950"
.text
""" + kern() + '.section .rodata,"a"\n.p2align 6\n' + desc(KN, 512, 256)
print(src + '\n'.join(NAMES))
```

```python
import sys, struct
import re
OPT = dict(stamps='', fast=1, pf=1, reuse=1, dbg=0, ns=11, na=8, nb=8, touch=0, p4s=11, nw2a=2, ks=8, dsc=1, outsc=0, hpre=10, xsc=0, wso=0, daf=3, hw=0, c1=1, cw=0, pr=2, xp=1, pk=1, fst=2176, rep=1, gh=2, xm=1, n3=5, w2e=0, n3b=11, ord=0)
for a in sys.argv[1:]:
    k, v = a.split('='); OPT[k] = v if k == 'stamps' else int(v)
NAMES = []
f2h = lambda x: hex(struct.unpack('<I', struct.pack('<f', x))[0])
KB = 1024
FLAGC = 0
FLAGG = 32*KB
FLAGT = 384*KB
FST = OPT['fst']
FLAGP = FLAGT + 32*FST
STAMP = 64*KB
S2B   = 256*KB
W1P   = 512*KB
W2P   = W1P + 1920*KB
XF2   = W2P + 1920*KB
LBASE = XF2 + 2560*KB
XTIN, XTMID, TT, HH, SS = 0, 2560*KB, 5120*KB, 7680*KB, 13824*KB
LSTR  = 14336*KB
TSTR = LSTR
if OPT['reuse']:
    XTIN, XTMID, TT, HH, SS, LSTR, TSTR = 0, 0, 2560*KB, 7680*KB, 13824*KB, 0, 2560*KB
WS_BYTES = 268435456
REP = OPT['rep']; RST = 32*KB + 128
if REP > 1: FLAGG = LBASE + 2*14336*KB
L_X = 0
L_RED = 80*KB
L_M1 = 140*KB
L_M2 = 148*KB
L_R = 156*KB
LDS2 = 157*KB
XFS = 528
L1_XF = 0
L1_M1 = 44*KB
L1_R = 52*KB
LDS1 = 53*KB

class Asm:
    def __init__(s, kn): s.l = []; s.vm = []; s.lg = []; s.nst = 0; s.kn = kn; s.pre = kn + '_'
    def __call__(s, t):
        for x in [y for y in t.split('\n') if y.strip()]: s.l.append('    ' + x.strip() if not x.strip().endswith(':') else x.strip())
    def vmop(s, t, tag): s(t); s.vm.append(tag)
    def lgop(s, t, tag): s(t); s.lg.append(tag)
    def waitvm(s, tag=None):
        n = 0
        if tag is not None:
            if tag not in s.vm: return
            idx = max(i for i, t in enumerate(s.vm) if t == tag); n = len(s.vm) - 1 - idx
        n = min(n, 63); s(f's_waitcnt vmcnt({n})'); s.vm = s.vm[len(s.vm)-n:] if n else []
    def waitlg(s, tag=None):
        n = 0
        if tag is not None:
            if tag not in s.lg: return
            idx = max(i for i, t in enumerate(s.lg) if t == tag); n = len(s.lg) - 1 - idx
        n = min(n, 15); s(f's_waitcnt lgkmcnt({n})'); s.lg = s.lg[len(s.lg)-n:] if n else []
    def stamp(s, name):
        name = s.pre + name
        if OPT['stamps'] and re.search(OPT['stamps'], name):
            s(f's_memrealtime s[{64+2*s.nst}:{65+2*s.nst}]'); NAMES.append(f'; @stamp {s.kn} {s.nst} {name}'); s.nst += 1; assert s.nst <= 16, name
    def note(s, name, reg):
        name = s.pre + name
        if OPT['stamps'] and re.search(OPT['stamps'], name):
            s(f's_mov_b32 s{64+2*s.nst}, {reg}'); NAMES.append(f'; @stamp {s.kn} {s.nst} {name}'); s.nst += 1; assert s.nst <= 16, name
    def dump_stamps(s, wsreg):
        if OPT['stamps']:
            s('s_waitcnt lgkmcnt(0)')
            s(f's_lshl_b32 s40, s2, 9\ns_lshl_b32 s41, {wsreg}, 6\ns_add_u32 s40, s40, s41\ns_add_u32 s40, s40, {STAMP + s.stamp_off}\nv_mov_b32 v14, s40')
            for i in range(s.nst):
                s(f'v_mov_b32 v15, s{64+2*i}\nbuffer_store_dword v15, v14, s[8:11], 0 offen offset:{4*i}')
    def dump_dbg(s):
        if OPT['dbg'] and s.kn == 'k2':
            s(f"""s_cmp_lg_u32 s2, 37
            s_cbranch_scc1 k2_nodbg
            s_cmp_lg_u32 s18, 0
            s_cbranch_scc1 k2_nodbg
            s_load_dwordx2 s[40:41], s[0:1], 72
            s_mov_b32 s44, s64
            s_mov_b32 s42, 256
            s_mov_b32 s43, 0x20000
            v_mov_b32 v14, 0
            s_waitcnt lgkmcnt(0)""")
            for i in range(1, s.nst):
                s(f's_sub_u32 s45, s{64+2*i}, s44\nv_mov_b32 v15, s45\nbuffer_store_dword v15, v14, s[40:43], 0 offen offset:{4*i}')
            s('k2_nodbg:')
    def text(s): return '\n'.join(s.l) + '\n'
vr = lambda a, n=4: f'v[{a}:{a+n-1}]'
ar = lambda a, n=4: f'a[{a}:{a+n-1}]'

def head(name): return f".globl {name}\n.p2align 8\n.type {name},@function\n{name}:\n"
def desc(name, nfv, acc):
    return f""".amdhsa_kernel {name}
  .amdhsa_next_free_vgpr {nfv}
  .amdhsa_next_free_sgpr 100
  .amdhsa_accum_offset {acc}
  .amdhsa_group_segment_fixed_size 0
  .amdhsa_kernarg_size 88
  .amdhsa_user_sgpr_count 2
  .amdhsa_user_sgpr_kernarg_segment_ptr 1
  .amdhsa_system_sgpr_workgroup_id_x 1
.end_amdhsa_kernel
"""
def ids(E):
    E("""s_and_b32 s16, s2, 7
    s_lshr_b32 s23, s2, 6
    s_lshl_b32 s23, s23, 3
    s_or_b32 s16, s16, s23
    s_lshr_b32 s17, s2, 3
    s_and_b32 s17, s17, 7
    s_lshr_b32 s19, s17, 2
    s_sub_u32 s20, 64, s16
    s_cmp_eq_u32 s16, 0
    s_cselect_b32 s20, 32, s20
    s_cmp_eq_u32 s19, 0
    s_cselect_b32 s20, s16, s20
    s_and_b32 s23, s17, 3
    s_mul_i32 s21, s23, 5
    s_add_u32 s21, s21, 1
    s_lshr_b32 s21, s21, 1
    s_and_b32 s23, s23, 1
    s_sub_u32 s22, 3, s23""")

def gen_G(E, sE, hook=None):
    A, B, K2, F, PH = 176, 192, 208, 210, 211
    E(f"""s_lshl_b32 s23, {sE}, 5
    s_add_u32 s23, s23, 1
    v_and_b32 v{F}, 31, v0
    v_add_u32 v{F}, s23, v{F}
    v_cvt_f32_u32 v{F}, v{F}
    v_mul_f32 v{F}, {f2h(1/640)}, v{F}
    v_lshrrev_b32 v{PH}, 5, v0
    v_lshlrev_b32 v{PH}, 3, v{PH}
    v_add_u32 v{PH}, 1, v{PH}
    v_cvt_f32_u32 v{PH}, v{PH}
    v_mul_f32 v{PH}, v{PH}, v{F}
    v_mul_f32 v{PH+1}, {f2h(16.0)}, v{F}
    v_cos_f32 v{K2}, v{PH+1}
    v_add_f32 v{PH+2}, v{PH}, v{PH+1}
    v_add_f32 v{K2}, v{K2}, v{K2}""")
    for s in range(8):
        E(f"""v_cos_f32 v{A+2*s}, v{PH}
        v_sin_f32 v{A+2*s+1}, v{PH}
        v_cos_f32 v{B+2*s}, v{PH+2}
        v_sin_f32 v{B+2*s+1}, v{PH+2}""")
        if s < 7: E(f"v_add_f32 v{PH}, v{PH}, v{F}\nv_add_f32 v{PH+2}, v{PH+2}, v{F}")
    E(f"v_mov_b32 v{K2+1}, v{K2}")
    def pack(k, S):
        for u in range(4):
            E(f"v_cvt_pk_bf16_f32 v{16+8*k+u}, v{S+4*u}, v{S+4*u+2}\nv_cvt_pk_bf16_f32 v{20+8*k+u}, v{S+4*u+1}, v{S+4*u+3}")
    pack(0, A); pack(1, B)
    for k in range(2, 20):
        if hook and k == max(OPT['gh'], 2): hook()
        for s in range(8):
            E(f"v_pk_fma_f32 v[{A+2*s}:{A+2*s+1}], v[{B+2*s}:{B+2*s+1}], v[{K2}:{K2+1}], v[{A+2*s}:{A+2*s+1}] neg_lo:[0,0,1] neg_hi:[0,0,1]")
        pack(k, A); A, B = B, A

def gen_M1(E, sw, lbase, t0):
    E(f"""v_and_b32 v{t0+1}, 15, v0
    v_bfe_u32 v{t0}, v0, 4, 1
    s_lshr_b32 s23, {sw}, 1
    v_add_u32 v{t0}, s23, v{t0}
    v_lshlrev_b32 v{t0}, 3, v{t0}
    v_lshrrev_b32 v{t0+2}, 5, v0
    v_lshlrev_b32 v{t0+2}, 2, v{t0+2}
    s_and_b32 s23, {sw}, 1
    s_lshl_b32 s23, s23, 4
    v_add_u32 v{t0+2}, s23, v{t0+2}
    s_lshl_b32 s23, {sw}, 10
    s_add_u32 s23, s23, {lbase}
    v_lshl_add_u32 v{t0+3}, v0, 4, s23""")
    for mt in range(2):
        E(f"""v_mad_u32_u24 v{t0+4}, v{t0+2}, v{t0+1}, v{t0}
        v_cvt_f32_u32 v{t0+5}, v{t0+1}
        v_cvt_f32_u32 v{t0+4}, v{t0+4}
        v_mul_f32 v{t0+5}, {f2h(1/32)}, v{t0+5}
        v_mul_f32 v{t0+4}, {f2h(1/32)}, v{t0+4}""")
        for s in range(1, 8): E(f"v_fmamk_f32 v{t0+8+s}, v{t0+5}, {f2h(float(8*(s>>2)+(s&3)))}, v{t0+4}")
        for s in range(8): E(f"v_cos_f32 v{t0+8+s}, v{t0+8+s if s else t0+4}")
        E("s_nop 0")
        for u in range(4): E(f"v_cvt_pk_bf16_f32 v{t0+8+u}, v{t0+8+2*u}, v{t0+9+2*u}")
        E(f"ds_write_b128 v{t0+3}, {vr(t0+8)} offset:{mt*4096}")
        if mt == 0: E(f"v_add_u32 v{t0+1}, 16, v{t0+1}\ns_nop 0")

def dft_unit(E, lx, ps, lm1, vR, sT, stf, mid=None, chunk=None):
    AC, AS, AB, R, Z = 176, 192, 208, 224, 240
    E(f"""v_and_b32 v14, 31, v0
    v_lshlrev_b32 v14, 4, v14
    v_lshrrev_b32 v15, 5, v0
    v_mul_u32_u24 v13, {ps}, v15
    v_add_u32 v14, v14, v13""")
    def rd(k):
        b = AB + 8*(k & 1)
        E.lgop(f"ds_read_b128 {vr(b)}, v14 offset:{lx + 2*k*ps}", ('A', k))
        E.lgop(f"ds_read_b128 {vr(b+4)}, v14 offset:{lx + (40+2*k)*ps}", ('A', k))
    if chunk: chunk(0)
    rd(0); rd(1)
    E(f"""v_mov_b32 v{Z}, 0
    v_mov_b32 v{Z+1}, 0
    v_mov_b32 v{Z+2}, 0
    v_mul_u32_u24 v{Z+3}, 0x3f8000, v15
    v_lshlrev_b32 v{Z+3}, 8, v{Z+3}""")
    for k in range(20):
        b = AB + 8*(k & 1)
        E.waitlg(('A', k))
        c0 = '0' if k == 0 else vr(AC, 16); c1 = '0' if k == 0 else vr(AS, 16)
        E(f"v_mfma_f32_32x32x16_bf16 {vr(AC,16)}, {vr(b)}, {vr(16+8*k)}, {c0}")
        E(f"v_mfma_f32_32x32x16_bf16 {vr(AS,16)}, {vr(b+4)}, {vr(20+8*k)}, {c1}")
        if k == 19: E(f"v_mfma_f32_32x32x16_bf16 {vr(AC,16)}, {vr(b+4)}, {vr(Z)}, {vr(AC,16)}")
        if chunk and k + 2 < 20 and (k+2) % 4 == 0: chunk((k+2)//4)
        if k + 2 < 20: rd(k+2)
        if k == 17:
            for g4 in range(4): E.lgop(f"ds_read_b128 {vr(R+4*g4)}, {vR} offset:{32*g4}", 'R')
    m1reg = lambda i: (160 + 4*i) if i < 4 else (208 + 4*(i-4))
    E(f"v_lshlrev_b32 v13, 4, v0\nv_add_u32 v13, {lm1}, v13")
    for i in range(4): E.lgop(f"ds_read_b128 {vr(m1reg(i))}, v13 offset:{1024*i}", 'M1')
    if mid: mid()
    E("s_nop 7")
    for i in range(4, 8): E.lgop(f"ds_read_b128 {vr(m1reg(i))}, v13 offset:{1024*i}", 'M1')
    E.waitlg('R')
    for p in range(8): E(f"v_pk_mul_f32 {vr(AS+2*p,2)}, {vr(AS+2*p,2)}, {vr(R+2*p,2)}")
    for p in range(8): E(f"v_cvt_pk_bf16_f32 v{Z+8+p}, v{AS+2*p}, v{AS+2*p+1}")
    for p in range(8): E(f"v_pk_mul_f32 {vr(AC+2*p,2)}, {vr(AC+2*p,2)}, {vr(R+2*p,2)}")
    for p in range(8): E(f"v_cvt_pk_bf16_f32 v{Z+p}, v{AC+2*p}, v{AC+2*p+1}")
    E.waitlg()
    E(f"""v_and_b32 v14, 15, v0
    v_mul_u32_u24 v14, 81920, v14
    v_bfe_u32 v13, v0, 4, 1
    v_lshl_add_u32 v14, v13, 5, v14
    v_lshl_add_u32 v14, v15, 4, v14""")
    for mt in range(2):
        D = AS if mt == 0 else AC
        for ks in range(4):
            E(f"v_mfma_f32_32x32x16_bf16 {vr(D,16)}, {vr(Z+4*ks)}, {vr(m1reg(4*mt+ks))}, {'0' if ks == 0 else vr(D,16)}")
    E(f"s_add_u32 s23, {sT}, {16*81920}")
    for mt in range(2):
        D = AS if mt == 0 else AC
        E("s_nop 6" if mt == 0 else "s_nop 0")
        for r in range(8): E(f"v_permlane16_swap_b32 v{D+r}, v{D+8+r}")
        for r in range(8):
            E(f"v_cvt_pk_bf16_f32 v{R+8*mt+r}, v{D+r}, v{D+8+r}")
            if r & 3 == 3: E.vmop(f"buffer_store_dwordx4 {vr(R+8*mt+r-3)}, v14, s[8:11], {sT if mt == 0 else 's23'} offen offset:{16*(r-3)} {stf}", 'Tst')

def w2job_loads(E):
    E(f"""s_mul_i32 s33, s57, 43
    s_lshr_b32 s33, s33, 8
    s_mul_i32 s32, s33, 6
    s_sub_u32 s32, s57, s32
    s_mul_i32 s33, s33, 12
    s_mul_i32 s34, s32, 3
    s_add_u32 s34, s34, s33
    s_mul_i32 s35, s32, 6
    s_add_u32 s35, s35, s33
    s_sub_u32 s35, s35, 22
    v_lshrrev_b32 v4, 1, v2
    v_mul_u32_u24 v4, 3, v4
    v_add_u32 v4, s35, v4
    v_and_b32 v5, 1, v2
    s_and_b32 s36, s34, 3
    s_cmp_eq_u32 s36, 3
    s_cselect_b32 s36, 61, 1
    s_cmp_ge_u32 s32, 4
    s_cselect_b32 s36, 32, s36
    s_cselect_b64 vcc, -1, 0
    v_mov_b32 v7, s34
    v_cndmask_b32 v4, v7, v4, vcc
    v_cndmask_b32 v5, v2, v5, vcc
    v_lshrrev_b32 v7, 2, v4
    v_and_b32 v4, 3, v4
    v_lshl_add_u32 v4, v7, 6, v4
    v_lshl_add_u32 v4, v5, 4, v4
    v_mul_u32_u24 v4, 1280, v4
    s_mul_i32 s36, s36, 1280
    s_mul_i32 s33, s58, 80
    s_add_u32 s34, s33, 2
    v_lshl_add_u32 v5, v1, 2, s34
    v_add_u32 v5, v5, v4
    s_sub_u32 s34, 1276, s33
    v_lshlrev_b32 v7, 2, v1
    v_sub_u32 v7, s34, v7
    v_add_u32 v7, v7, v4
    v_lshrrev_b32 v9, 2, v1
    v_and_b32 v13, 1, v1
    v_lshl_add_u32 v9, v9, 1, v13
    s_mul_i32 s33, s58, 40
    s_add_u32 s33, s33, 32
    v_add_u32 v9, s33, v9
    v_add_u32 v13, 1, v9
    v_cmp_eq_u32 vcc, 319, v9
    v_sub_u32 v9, 639, v9
    v_and_b32 v14, 2, v1
    v_cndmask_b32 v9, v9, 0, vcc
    v_cmp_eq_u32 vcc, 0, v14
    s_nop 1
    v_cndmask_b32 v9, v9, v13, vcc
    v_lshl_add_u32 v9, v9, 1, v4""")
    for s in range(8):
        E(f"""s_mul_i32 s37, s36, {s>>2}
            s_add_u32 s37, s37, {(s&3)*4*1280}
            buffer_load_dword a{s}, v5, s[48:51], s37 offen
            buffer_load_dword a{8+s}, v7, s[48:51], s37 offen
            buffer_load_ushort a{16+s}, v9, s[48:51], s37 offen""")

def tpoison(E, L, P=248):
    l = f'k2_tp{L}'
    E(f"""s_cmp_ge_u32 s18, s22
    s_cbranch_scc1 {l}
    s_mul_i32 s40, s21, 8192
    s_lshl_b32 s41, s20, 7
    s_add_u32 s40, s40, s41
    s_add_u32 s40, s40, {LBASE + L*TSTR + TT}
    s_add_u32 s41, s40, {8*81920}
    s_add_u32 s42, s40, {16*81920}
    s_add_u32 s43, s40, {24*81920}
    v_lshrrev_b32 v14, 3, v0
    v_mul_u32_u24 v14, 81920, v14
    v_and_b32 v15, 7, v0
    v_lshl_add_u32 v14, v15, 4, v14""")
    for u in range(4): E(f"v_mov_b32 v{P+u}, -1")
    for i in range(4): E(f"buffer_store_dwordx4 {vr(P)}, v14, s[8:11], s{40+i} offen sc1")
    E(f"s_nop 1\n{l}:")

SPIN = 60000
KN = "interleave_layers__spectral_fnet__dense_activation_relu__prompt_kernel"
def kern():
    DS = 'sc1' if OPT['dsc'] else ''
    OOL = []
    E = Asm('k2'); E.stamp_off = 0
    uid = [0]
    def lab(p): uid[0] += 1; return f"k2_{p}{uid[0]}"
    NS = OPT['ns']; NW2 = OPT['nw2a']; KS = OPT['ks']; assert KS - NW2 <= 7
    E("""s_cmp_ge_u32 s2, 256
    s_cbranch_scc1 k2_done""")
    E.stamp('start')
    if OPT['pf']:
        E(f"""s_getpc_b64 s[40:41]
        k2_pc:
        s_sub_u32 s40, s40, k2_pc-{KN}
        s_subb_u32 s41, s41, 0
        s_mov_b32 s42, k2_end-{KN}
        s_mov_b32 s43, 0x20000
        s_lshr_b32 s23, s2, 3
        s_lshl_b32 s23, s23, 10
        v_lshl_add_u32 v14, v0, 2, s23
        v_add_u32 v15, 0x8000, v14
        buffer_load_dword v12, v14, s[40:43], 0 offen
        buffer_load_dword v12, v15, s[40:43], 0 offen""")
    E(f"""s_load_dwordx2 s[4:5], s[0:1], 0
    s_load_dwordx4 s[60:63], s[0:1], 48
    s_load_dwordx2 s[12:13], s[0:1], 64
    s_load_dwordx2 s[52:53], s[0:1], 72
    s_load_dwordx2 s[8:9], s[0:1], 80
    s_memrealtime s[46:47]
    v_lshrrev_b32 v1, 6, v0
    s_mov_b32 s6, {2048*1280}
    s_mov_b32 s7, 0x20000
    v_readfirstlane_b32 s18, v1
    s_mov_b32 s10, {WS_BYTES - OPT['wso']*KB*KB}
    s_mov_b32 s11, 0x20000
    s_mov_b32 s14, {2048*1280}
    s_mov_b32 s15, 0x20000
    s_mov_b32 s54, 256
    s_mov_b32 s55, 0x20000""")
    ids(E)
    E(f"""v_lshrrev_b32 v1, 3, v0
    v_and_b32 v2, 7, v0
    v_lshlrev_b32 v3, 6, v1
    v_add_u32 v3, s20, v3
    v_mul_u32_u24 v3, 1280, v3
    v_lshl_add_u32 v4, v2, 4, v3
    v_add_u32 v4, 2, v4
    v_lshlrev_b32 v5, 4, v2
    v_sub_u32 v5, v3, v5
    v_add_u32 v5, {1264-512}, v5
    v_mov_b32 v10, 0
    s_waitcnt lgkmcnt(0)""")
    if OPT['wso']: E(f"s_add_u32 s8, s8, {OPT['wso']*KB*KB}\ns_addc_u32 s9, s9, 0")
    LD = 216
    for k in range(5):
        E.vmop(f"buffer_load_dwordx4 {vr(LD+8*k)}, v4, s[4:7], 0 offen offset:{128*k}", ('x', k))
        E.vmop(f"buffer_load_dwordx4 {vr(LD+8*k+4)}, v5, s[4:7], 0 offen offset:{128*(4-k)}", ('x', k))
    E.vmop("buffer_load_ushort v12, v3, s[4:7], 0 offen", ('x', 4))
    E.stamp('xiss')
    if OPT['stamps']: E("s_mov_b32 s97, 0")
    E(f"""s_lshl_b32 s56, s2, 2
    s_add_u32 s56, s56, s18
    s_cmp_lg_u32 s56, 0
    s_cbranch_scc1 k2_non
    s_or_b32 s46, s46, 1
    v_mov_b32 v11, s46
    s_mov_b64 exec, 1
    buffer_store_dword v11, v10, s[52:55], 0 offen sc1
    s_mov_b64 exec, -1
    k2_non:
    v_mul_u32_u24 v6, {XFS}, v2
    v_lshl_add_u32 v6, v1, 4, v6
    v_cmp_eq_u32 s[30:31], 7, v2
    v_lshlrev_b32 v8, 2, v1
    v_and_b32 v0, 63, v0
    s_add_u32 s21, s21, s18
    v_and_b32 v1, 15, v0
    v_lshrrev_b32 v2, 4, v0
    v_lshlrev_b32 v3, 4, v0
    s_mov_b32 s51, 0x20000
    s_lshr_b32 s59, s2, 5
    s_and_b32 s56, s2, 31
    s_lshl_b32 s57, s56, 1
    s_add_u32 s57, s57, s18
    s_min_u32 s57, s57, 60
    s_lshr_b32 s23, s56, 4
    s_lshl_b32 s23, s23, 3
    s_and_b32 s38, s56, 7
    s_add_u32 s23, s23, s38
    s_add_u32 s23, s23, 32
    s_cmp_eq_u32 s18, 3
    s_cselect_b32 s56, s56, s23
    s_add_u32 s56, s56, 61
    s_cmp_lt_u32 s18, s22
    s_cselect_b32 s56, 60, s56
    s_cmp_lt_u32 s18, 2
    s_cselect_b32 s56, s57, s56""")
    PKC, PKG = OPT['pk'] & 1, OPT['pk'] & 2
    IDO = 128 if PKC else 16
    E("s_lshl_b32 s23, s18, 2")
    if PKC: E("s_lshl_b32 s45, s16, 8\ns_lshl_b32 s38, s17, 4\ns_add_u32 s45, s45, s38\ns_add_u32 s45, s45, s23")
    else: E("s_lshl_b32 s45, s2, 7\ns_add_u32 s45, s45, s23")
    if PKG: E(f"""s_and_b32 s98, s17, 3
    s_lshl_b32 s98, s98, 3
    s_lshr_b32 s38, s20, 3
    s_add_u32 s98, s98, s38
    s_mul_i32 s98, s98, {FST}
    s_and_b32 s38, s20, 7
    s_lshl_b32 s38, s38, 4
    s_add_u32 s98, s98, s38
    s_add_u32 s98, s98, s23
    s_add_u32 s98, s98, {FLAGT}
    s_mul_i32 s38, s59, {FST - 27*4}
    s_lshl_b32 s23, s2, 2
    s_add_u32 s38, s38, s23
    s_add_u32 s38, s38, {FLAGP}
    s_cmp_eq_u32 s18, 3
    s_cselect_b32 s98, s38, s98""")
    else: E(f"s_lshl_b32 s98, s2, 7\ns_add_u32 s98, s98, s23\ns_add_u32 s98, s98, {FLAGG}")
    E(f"""s_mov_b64 exec, 1
    buffer_store_dword v10, v10, s[8:11], s45 offen offset:{FLAGC}
    s_mov_b64 exec, 3
    v_lshlrev_b32 v13, 4, v0
    buffer_store_dword v10, v13, s[8:11], s98 offen sc1
    s_mov_b64 exec, -1
    buffer_load_dword v11, v10, s[52:55], 0 offen sc1""")
    assert REP == 1 and not PKG
    E(f"""s_mov_b32 s48, s60
    s_mov_b32 s49, s61
    s_mov_b32 s50, {640*3072}
    s_mul_i32 s57, s56, 171
    s_lshr_b32 s57, s57, 9
    s_sub_u32 s58, s59, s57
    s_mul_i32 s58, s58, 3
    s_add_u32 s58, s58, s56
    s_cmp_ge_u32 s57, 10
    s_cselect_b32 s33, 10, 0
    s_sub_u32 s33, s57, s33
    s_lshl_b32 s33, s33, 5
    v_lshl_add_u32 v4, v2, 3, s33
    v_add_u32 v5, 1, v4
    v_sub_u32 v7, 632, v4
    s_cmp_ge_u32 s57, 10
    s_cselect_b64 s[34:35], -1, 0
    s_cselect_b32 s36, 7, 0
    v_cndmask_b32 v5, v5, v7, s[34:35]
    v_mul_u32_u24 v5, 3072, v5
    s_lshl_b32 s33, s58, 7
    v_lshl_add_u32 v7, v1, 3, s33
    v_add_u32 v5, v5, v7
    v_cmp_eq_u32 vcc, 312, v4
    s_and_b64 vcc, vcc, s[34:35]
    s_nop 1
    v_cndmask_b32 v7, v5, v7, vcc""")
    E("k2_pk2:"); E.stamp('piss')
    def hook():
        if OPT['daf'] & 4: tpoison(E, 0, 212)
        E("s_cmp_ge_u32 s56, 60\ns_cbranch_scc1 k2_nw1")
        for s in range(8):
            E(f"s_xor_b32 s37, s36, {s}\ns_mul_i32 s37, s37, 3072\nbuffer_load_dwordx2 {ar(2*s,2)}, {'v7' if s == 7 else 'v5'}, s[48:51], s37 offen")
        E("k2_nw1:")
    E("s_cmp_ge_u32 s18, s22\ns_cbranch_scc1 k2_nog")
    gen_G(E, 's21', hook)
    TP = 4 if OPT['daf'] & 4 else 0
    E(f"s_cmp_ge_u32 s56, 60\ns_cbranch_scc1 k2_xw0\ns_waitcnt vmcnt({8+TP})\ns_branch k2_xw\nk2_xw0:\ns_waitcnt vmcnt({TP})\ns_branch k2_xw")
    E("k2_nog:\ns_cmp_lg_u32 s18, 3\ns_cbranch_scc1 k2_nw3")
    E("s_mov_b32 s38, 0\nk2_m1l:")
    gen_M1(E, 's38', L_M1, 176)
    E("s_add_u32 s38, s38, 1\ns_cmp_lt_u32 s38, 4\ns_cbranch_scc1 k2_m1l\nk2_nw3:")
    E(f"""s_mov_b32 s48, s62
    s_mov_b32 s49, s63
    s_mov_b32 s50, {1536*1280}
    s_sub_u32 s57, s56, 61
    s_mov_b32 s58, s59""")
    w2job_loads(E)
    E("s_waitcnt vmcnt(24)\nk2_xw:"); E.stamp('gen')
    E(f"""
    v_readfirstlane_b32 s46, v11
    s_mov_b32 s32, 0x05040100
    s_mov_b32 s33, 0x07060302
    s_cmp_eq_u32 s46, 0
    s_cbranch_scc1 k2_nonw
    k2_nonb:""")
    E.vm = []
    OOL.append(f"""k2_nonw:
    s_mov_b32 s38, 0
    k2_nonl:
    buffer_load_dword v11, v10, s[52:55], 0 offen sc1
    s_add_u32 s38, s38, 1
    s_cmp_gt_u32 s38, {SPIN}
    s_cbranch_scc1 k2_nonb
    s_waitcnt vmcnt(0)
    v_readfirstlane_b32 s46, v11
    s_nop 0
    s_cmp_eq_u32 s46, 0
    s_cbranch_scc1 k2_nonl
    s_branch k2_nonb""")
    E.stamp('x0')
    E("s_cmp_ge_u32 s56, 60\ns_cbranch_scc1 k2_pkd\ns_waitcnt vmcnt(0)")
    A0, P0 = 176, 200
    for i in range(16): E(f"v_accvgpr_read_b32 v{A0+i}, a{i}")
    for u in range(4):
        for v in range(4): E(f"v_perm_b32 v{P0+4*u+v}, v{A0+4*v+2+(u>>1)}, v{A0+4*v+(u>>1)}, s{32+(u&1)}")
        E(f"""s_lshl_b32 s34, s58, 2
        s_add_u32 s34, s34, {u}
        s_mul_i32 s35, s34, 171
        s_lshr_b32 s35, s35, 9
        s_mul_i32 s36, s35, 57
        s_add_u32 s36, s36, s34
        s_mul_i32 s37, s57, 3
        s_add_u32 s36, s36, s37
        s_lshl_b32 s36, s36, 10
        s_add_u32 s36, s36, {W1P}
        buffer_store_dwordx4 {vr(P0+4*u)}, v3, s[8:11], s36 offen sc1""")
    E("s_nop 1\nk2_pkd:"); E.stamp('pkst')
    LO, HI, EE, OO, SM, SQ = 180, 188, 196, 204, 212, 214
    E(f"v_mov_b32 v{SM}, 0\nv_mov_b32 v{SM+1}, 0\nv_mov_b32 v{SQ}, 0\nv_mov_b32 v{SQ+1}, 0")
    for k in range(5):
        lo, hi = LD+8*k, LD+8*k+4
        for u in range(4):
            E(f"""v_lshlrev_b32 v{LO+2*u}, 16, v{lo+u}
            v_and_b32 v{LO+2*u+1}, 0xffff0000, v{lo+u}
            v_and_b32 v{HI+2*u}, 0xffff0000, v{hi+3-u}
            v_lshlrev_b32 v{HI+2*u+1}, 16, v{hi+3-u}""")
        if k == 4:
            E(f"v_lshlrev_b32 v12, 16, v12\nv_cndmask_b32 v{HI+7}, v{HI+7}, v12, s[30:31]")
        for u in range(4):
            E(f"""v_pk_add_f32 {vr(EE+2*u,2)}, {vr(LO+2*u,2)}, {vr(HI+2*u,2)}
            v_pk_add_f32 {vr(OO+2*u,2)}, {vr(LO+2*u,2)}, {vr(HI+2*u,2)} neg_lo:[0,1] neg_hi:[0,1]
            v_pk_fma_f32 {vr(SQ,2)}, {vr(LO+2*u,2)}, {vr(LO+2*u,2)}, {vr(SQ,2)}
            v_pk_add_f32 {vr(SM,2)}, {vr(SM,2)}, {vr(EE+2*u,2)}
            v_pk_fma_f32 {vr(SQ,2)}, {vr(HI+2*u,2)}, {vr(HI+2*u,2)}, {vr(SQ,2)}""")
        if k == 4:
            E(f"v_cndmask_b32 v{EE+7}, v{EE+7}, v{LO+7}, s[30:31]\nv_cndmask_b32 v{OO+7}, v{OO+7}, v{HI+7}, s[30:31]")
        for u in range(4): E(f"v_cvt_pk_bf16_f32 v{EE+u}, v{EE+2*u}, v{EE+2*u+1}")
        for u in range(4): E(f"v_cvt_pk_bf16_f32 v{OO+u}, v{OO+2*u}, v{OO+2*u+1}")
        E(f"ds_write_b128 v6, {vr(EE)} offset:{L_X + 8*k*XFS}\nds_write_b128 v6, {vr(OO)} offset:{L_X + (40+8*k)*XFS}")
    E(f"""v_add_f32 v{SM}, v{SM}, v{SM+1}
    v_add_f32 v{SQ}, v{SQ}, v{SQ+1}
    v_add_u32 v8, {L_R}, v8
    s_nop 0""")
    for d in ["quad_perm:[1,0,3,2]", "quad_perm:[2,3,0,1]", "row_half_mirror"]:
        E(f"""v_add_f32_dpp v{SM}, v{SM}, v{SM} {d} row_mask:0xf bank_mask:0xf
        v_add_f32_dpp v{SQ}, v{SQ}, v{SQ} {d} row_mask:0xf bank_mask:0xf
        s_nop 1""")
    E(f"""v_mul_f32 v{SM}, {f2h(1/640)}, v{SM}
    v_mul_f32 v{SQ}, {f2h(1/640)}, v{SQ}
    v_fma_f32 v{SQ}, -v{SM}, v{SM}, v{SQ}
    v_max_f32 v{SQ}, 0, v{SQ}
    v_add_f32 v{SQ}, {f2h(1e-5)}, v{SQ}
    v_rsq_f32 v{SQ}, v{SQ}
    v_lshrrev_b32 v9, 5, v0
    ds_write_b32 v8, v{SQ}
    v_lshlrev_b32 v9, 4, v9
    v_add_u32 v9, {L_R}, v9""")
    E.stamp('ln')
    E(f"""s_cmp_ge_u32 s18, 2
    s_cbranch_scc1 k2_nf1
    s_add_u32 s23, s46, 1
    v_mov_b32 v15, s23
    s_waitcnt vmcnt(0)
    s_mov_b64 exec, 1
    buffer_store_dword v15, off, s[8:11], s98 offset:16 sc1
    s_mov_b64 exec, -1
    k2_nf1:""")
    E("s_waitcnt lgkmcnt(0)\ns_barrier")
    E.stamp('bar')

    def w2finish():
        E("s_waitcnt vmcnt(0)")
        E(f"""s_mul_i32 s34, s58, 48
    s_add_u32 s34, s34, s57
    s_mul_i32 s34, s34, 5120
    s_add_u32 s34, s34, {W2P}
    s_add_u32 s35, s34, 4096""")
        for i in range(24): E(f"v_accvgpr_read_b32 v{A0+i}, a{i}")
        for t in range(4):
            for v in range(4): E(f"v_perm_b32 v{P0+4*t+v}, v{A0+8*(t>>1)+2*v+1}, v{A0+8*(t>>1)+2*v}, s{32+((t&1)^(t>>1))}")
            E(f"buffer_store_dwordx4 {vr(P0+4*t)}, v3, s[8:11], s34 offen offset:{1024*t} sc1")
        for v in range(4): E(f"v_perm_b32 v{A0+v}, v{A0+16+2*v+1}, v{A0+16+2*v}, s32")
        E(f"buffer_store_dwordx4 {vr(A0)}, v3, s[8:11], s35 offen sc1")
        E("s_nop 0")
    def setup():
        E(f"""s_mul_i32 s24, s16, 81920
        s_and_b32 s25, s20, 31
        s_mul_i32 s25, s25, 10
        s_add_u32 s25, s25, s21
        s_lshl_b32 s25, s25, 13
        s_getreg_b32 s26, hwreg(HW_REG_XCC_ID)
        s_and_b32 s26, s26, 15
        s_add_u32 s26, s26, 16
        s_add_u32 s26, s26, s46
        s_mul_i32 s28, s16, 196608
        s_mul_i32 s29, s17, 5
        s_lshr_b32 s29, s29, 1
        s_mul_i32 s30, s17, 3
        s_lshr_b32 s30, s30, 1
        s_lshl_b32 s39, s17, 2
        s_add_u32 s39, s39, s18
        s_mul_i32 s44, s39, {60*KB}
        s_add_u32 s39, s44, {W1P}
        s_add_u32 s44, s44, {W2P}
        v_lshlrev_b32 v1, 4, v0
        v_and_b32 v14, 31, v0
        v_lshrrev_b32 v15, 5, v0
        v_and_b32 v2, 3, v14
        v_bfe_u32 v3, v14, 2, 1
        v_lshl_add_u32 v2, v3, 4, v2
        v_bfe_u32 v3, v14, 3, 2
        v_lshl_add_u32 v2, v3, 2, v2
        v_lshlrev_b32 v2, 2, v2
        v_lshl_add_u32 v2, v15, 9, v2
        s_lshl_b32 s23, s19, 5
        v_add_u32 v5, s23, v14
        v_sub_u32 v6, 63, v5
        v_sub_u32 v7, 32, v14
        v_and_b32 v7, 31, v7
        v_sub_u32 v8, 95, v5
        s_cmp_eq_u32 s19, 0
        s_cselect_b64 s[36:37], -1, 0
        v_cndmask_b32 v7, v8, v7, s[36:37]
        s_cmp_eq_u32 s16, 0
        s_cselect_b64 s[36:37], -1, 0
        v_cndmask_b32 v6, v6, v7, s[36:37]
        v_lshrrev_b32 v3, 4, v5
        v_lshlrev_b32 v3, 10, v3
        v_and_b32 v7, 15, v5
        v_lshl_add_u32 v3, v7, 4, v3
        v_lshl_add_u32 v3, v15, 8, v3
        v_lshrrev_b32 v4, 4, v6
        v_lshlrev_b32 v4, 10, v4
        v_and_b32 v7, 15, v6
        v_lshl_add_u32 v4, v7, 4, v4
        v_lshl_add_u32 v4, v15, 8, v4
        v_mov_b32 v9, v6
        v_add_u32 v6, 640, v6
        v_cmp_eq_u32 vcc, 0, v15
        s_and_b32 s23, s2, 0xc7
        v_and_b32 v12, 7, v0
        v_cndmask_b32 v5, v6, v5, vcc
        v_lshlrev_b32 v5, 3, v5
        """)
        if PKC: E("s_lshl_b32 s23, s16, 8\nv_lshl_add_u32 v12, v12, 4, s23")
        else: E("v_lshl_add_u32 v12, v12, 3, s23\nv_lshlrev_b32 v12, 7, v12")
        if PKG: E(f"""s_and_b32 s23, s17, 3
        s_mul_i32 s23, s23, {8*FST}
        s_add_u32 s23, s23, {FLAGT}
        v_lshrrev_b32 v7, 3, v0
        v_mul_u32_u24 v7, {FST}, v7
        v_and_b32 v13, 7, v0
        v_lshl_add_u32 v13, v13, 4, s23
        v_add_u32 v13, v13, v7""")
        else: E(f"""v_and_b32 v13, 7, v14
        v_lshrrev_b32 v7, 3, v14
        v_lshl_add_u32 v13, v7, 6, v13
        v_lshl_add_u32 v13, v15, 5, v13
        s_and_b32 s23, s17, 3
        s_lshl_b32 s23, s23, 3
        v_add_u32 v13, s23, v13
        v_lshlrev_b32 v13, 7, v13
        s_and_b32 s23, s16, {REP-1}
        s_mul_i32 s23, s23, {RST}
        s_add_u32 s23, s23, {FLAGG}
        v_add_u32 v13, s23, v13""")
        E(f"""
        v_lshrrev_b32 v7, 4, v0
        v_and_b32 v8, 15, v0
        v_and_b32 v6, 1, v7
        s_and_b32 s23, s18, 1
        s_lshl_b32 s23, s23, 1
        v_add_u32 v6, s23, v6
        v_lshlrev_b32 v6, 8, v6
        v_lshl_add_u32 v6, v8, 4, v6
        v_lshl_add_u32 v6, v15, 10, v6""")
    def gen_M2():
        E(f"""v_and_b32 v224, 31, v0
        v_lshlrev_b32 v224, 6, v224
        v_add_u32 v224, s20, v224
        s_lshl_b32 s23, s18, 4
        v_lshrrev_b32 v225, 5, v0
        v_lshl_add_u32 v225, v225, 2, s23
        v_mul_u32_u24 v225, v225, v224
        s_lshl_b32 s23, s18, 11
        s_add_u32 s23, s23, {L_M2}
        v_add_u32 v226, s23, v1""")
        for kk in range(2):
            for u in range(4):
                E(f"""v_and_b32 v227, 2047, v225
                v_cvt_f32_u32 v227, v227
                v_mul_f32 v227, {f2h(1/2048)}, v227
                v_cos_f32 v228, v227
                v_sin_f32 v229, v227
                v_add_u32 v225, v225, v224
                v_cvt_pk_bf16_f32 v{232+4*kk+u}, v228, v229""")
            if kk == 0: E("v_lshl_add_u32 v225, v224, 2, v225")
            E(f"ds_write_b128 v226, {vr(232+4*kk)} offset:{1024*kk}")
    def res_loads(L):
        l = lab('nor'); E(f"s_cmp_ge_u32 s18, s22\ns_cbranch_scc1 {l}")
        E("s_lshl_b32 s33, s21, 12\ns_add_u32 s33, s33, s24")
        if L == 0:
            E(f"""s_sub_u32 s23, 64, s16
            s_cmp_eq_u32 s16, 0
            s_cselect_b32 s23, 32, s23
            v_mov_b32 v7, s23
            v_mov_b32 v8, s16
            v_cmp_gt_u32 vcc, 32, v9
            v_and_b32 v9, 31, v9
            v_and_b32 v10, 31, v0
            v_cndmask_b32 v7, v7, v8, vcc
            v_lshl_add_u32 v9, v9, 6, v7
            v_mul_u32_u24 v9, 1280, v9
            v_lshl_add_u32 v10, v10, 6, s20
            v_mul_u32_u24 v10, 1280, v10
            v_lshrrev_b32 v7, 5, v0
            v_lshlrev_b32 v7, 4, v7
            s_lshl_b32 s23, s21, 6
            s_add_u32 s38, s23, 2
            v_add3_u32 v10, v10, v7, s38
            s_sub_u32 s38, 1232, s23
            v_sub_u32 v7, s38, v7
            v_add_u32 v7, v7, v9""")
            for rh in range(2): E.vmop(f"buffer_load_dwordx4 {vr(192+4*rh)}, v10, s[4:7], 0 offen offset:{32*rh}", 'res')
            for rh in range(2): E.vmop(f"buffer_load_dwordx4 {vr(200+4*rh)}, v7, s[4:7], 0 offen offset:{32*(1-rh)}", 'res')
            E.vmop("buffer_load_ushort v8, v9, s[4:7], 0 offen", 'res')
            if OPT['pr'] & 1:
                E(f"s_add_u32 s34, s33, {LBASE+XTMID}\ns_add_u32 s35, s34, 40960\ns_mul_i32 s23, s16, 10240\ns_lshl_b32 s38, s21, 9\ns_add_u32 s23, s23, s38\ns_add_u32 s23, s23, {LBASE+SS}")
                for rh in range(2): E.vmop(f"buffer_store_dwordx4 v[0:3], v3, s[8:11], s34 offen offset:{512*rh}", 'pr')
                for rh in range(2): E.vmop(f"buffer_store_dwordx4 v[0:3], v4, s[8:11], s35 offen offset:{512*rh}", 'pr')
                E.vmop("buffer_store_dwordx2 v[0:1], v5, s[8:11], s23 offen", 'pr')
        else:
            E(f"s_add_u32 s34, s33, {LBASE+LSTR+XTIN}\ns_add_u32 s35, s34, 40960")
            for rh in range(2): E.vmop(f"buffer_load_dwordx4 {vr(192+4*rh)}, v3, s[8:11], s34 offen offset:{512*rh} {DS}", 'res')
            for rh in range(2): E.vmop(f"buffer_load_dwordx4 {vr(200+4*rh)}, v4, s[8:11], s35 offen offset:{512*rh} {DS}", 'res')
        E(f"{l}:")
    def t_loads(L):
        E(f"s_add_u32 s31, s25, {LBASE+TT+L*TSTR}\ns_add_u32 s32, s31, 4096")
        for k in range(8):
            for u in range(4):
                E.vmop(f"buffer_load_dword v{160+4*k+u}, v2, s[8:11], s{31 if k < 4 else 32} offen offset:{(k%4)*1024+u*128} sc1", ('T', k))
    def w1_loads(p0, p1, tagp='W1'):
        for p in range(p0, p1):
            E(f"s_add_u32 s23, s29, {p}\ns_cmp_ge_u32 s23, 20\ns_cselect_b32 s38, 20, 0\ns_sub_u32 s23, s23, s38\ns_mul_i32 s23, s23, 3072\ns_add_u32 s23, s23, s39")
            for t in range(3):
                E.vmop(f"buffer_load_dwordx4 {vr(16+12*(p%12)+4*t)}, v1, s[8:11], s23 offen offset:{1024*t}", (tagp, p))
    def w2_loads(kk):
        E(f"s_add_u32 s23, s30, {kk}\ns_cmp_ge_u32 s23, 12\ns_cselect_b32 s38, 12, 0\ns_sub_u32 s23, s23, s38\ns_mul_i32 s23, s23, 5120\ns_add_u32 s23, s23, s44\ns_add_u32 s38, s23, 4096")
        for t in range(5):
            E.vmop(f"buffer_load_dwordx4 {ar(20*kk+4*t)}, v1, s[8:11], {'s23' if t < 4 else 's38'} offen offset:{1024*(t%4)}", 'W2')
    def gflag(val, off=0):
        E(f"""s_add_u32 s23, s46, {val}
        v_mov_b32 v15, s23
        s_mov_b64 exec, 1
        buffer_store_dword v15, off, s[8:11], s98 offset:{off} sc1
        s_mov_b64 exec, -1""")
    def spin(loads, n, val, t=252, mask=False):
        l = lab('poll'); l2 = lab('pout')
        E(f"""s_mov_b32 s38, 0
        s_add_u32 s23, s46, {val}
        {l}:
        {loads}
        s_add_u32 s38, s38, 1
        s_cmp_gt_u32 s38, {SPIN}
        s_cbranch_scc1 {l2}
        s_waitcnt vmcnt(0)""")
        for i in range(n): E(f"v_subrev_u32 v{t+i}, s23, v{t+i}")
        if n == 2: E(f"v_max_u32 v{t}, v{t}, v{t+1}")
        if n > 2: E(f"v_max3_u32 v{t}, v{t}, v{t+1}, v{t+2}")
        if n == 4: E(f"v_max_u32 v{t}, v{t}, v{t+3}")
        if mask and OPT['xm']: E(f"v_cmp_lt_u32 vcc, 15, v{t}\ns_cbranch_vccz {l2}\ns_mov_b64 exec, vcc\ns_branch {l}\n{l2}:\ns_mov_b64 exec, -1")
        else: E(f"v_cmp_lt_u32 vcc, 15, v{t}\ns_cbranch_vccnz {l}\n{l2}:")
    poll = lambda val: spin(f"buffer_load_dwordx4 v[252:255], v12, s[8:11], 0 offen offset:{FLAGC} sc1", 4, val)
    gpoll = lambda val: spin("buffer_load_dwordx3 v[252:254], v13, s[8:11], 0 offen sc1", 3, val, mask=True)
    def publish(val):
        l = lab('pub'); l2 = lab('pubs')
        E(f"""s_add_u32 s23, s46, {val}
        v_mov_b32 v14, s45
        v_mov_b32 v15, s23
        s_cmp_lg_u32 s27, 0
        s_cbranch_scc1 {l2}
        s_mov_b64 exec, 1
        buffer_store_dword v15, v14, s[8:11], 0 offen offset:{FLAGC}
        s_mov_b64 exec, -1
        {l}:""")
        OOL.append(f"""{l2}:
        buffer_wbl2 sc1
        s_waitcnt vmcnt(0)
        s_mov_b64 exec, 1
        buffer_store_dword v15, v14, s[8:11], 0 offen offset:{FLAGC} sc1
        s_mov_b64 exec, -1
        s_branch {l}""")
    def acquire():
        l = lab('acq'); l2 = lab('acqs')
        E(f"s_cmp_lg_u32 s27, 0\ns_cbranch_scc1 {l2}\n{l}:")
        OOL.append(f"{l2}:\nbuffer_inv sc1\ns_waitcnt vmcnt(0)\ns_branch {l}")
    def idload(): E.vmop(f"buffer_load_dword v11, v12, s[8:11], 0 offen offset:{FLAGC+IDO} sc1", 'id')
    def idcheck():
        d = lab('idd'); l = lab('idv')
        E(f"""v_cmp_ne_u32 vcc, s26, v11
        s_mov_b32 s27, {0 if OPT['fast'] else 1}
        s_cbranch_vccnz {l}
        {d}:""")
        OOL.append(f"""{l}:
        s_mov_b32 s38, 0
        s_add_u32 s23, s46, 16
        {l}a:
        buffer_load_dword v11, v12, s[8:11], 0 offen offset:{FLAGC+IDO} sc1
        s_add_u32 s38, s38, 1
        s_cmp_gt_u32 s38, {SPIN}
        s_cbranch_scc1 {l}b
        s_waitcnt vmcnt(0)
        v_subrev_u32 v14, s23, v11
        v_cmp_lt_u32 vcc, 15, v14
        s_cbranch_vccnz {l}a
        {l}b:
        v_cmp_ne_u32 vcc, s26, v11
        s_nop 1
        s_cmp_lg_u64 vcc, 0
        s_cselect_b32 s27, 1, s27
        s_branch {d}""")
    def sync(val, tag, post012=None, name=''):
        l3 = lab('w3'); lb = lab('sb')
        E(f"s_cmp_eq_u32 s18, 3\ns_cbranch_scc1 {l3}")
        E.waitvm(tag); publish(val); E.stamp('pub'+name)
        if post012: post012()
        E(f"s_branch {lb}\n{l3}:\ns_waitcnt vmcnt(0)")
        publish(val); poll(val)
        E(f"{lb}:\ns_waitcnt lgkmcnt(0)\ns_barrier"); E.lg = []; acquire(); E.stamp('poll'+name)
    def wpoll(val, half):
        if half == 0: E(f"v_and_b32 v10, 31, v0\ns_lshl_b32 s23, s17, 5\nv_add_u32 v10, s23, v10\nv_lshlrev_b32 v10, 7, v10\nv_add_u32 v10, {FLAGG+16}, v10")
        spin(f"buffer_load_dwordx2 v[252:253], v10, s[8:11], 0 offen offset:{8*half} sc1", 2, val, mask=True)
    def touch():
        E(f"v_lshlrev_b32 v14, 7, v0")
        for (base, sb, ms, n) in ((LBASE+XTMID, 's24', 10240, 80), (LBASE+HH, 's28', 24576, 192), (XF2, 's24', 10240, 80)):
            E(f"s_mul_i32 s38, s17, {ms}\ns_add_u32 s23, {sb}, s38\ns_add_u32 s23, s23, {base}")
            for i in range(0, n, 64):
                if n - i < 64: E(f"s_mov_b64 exec, {hex((1 << (n-i)) - 1)}")
                E.vmop("buffer_load_dword v255, v14, s[8:11], s23 offen sc1", 'tch'); E("s_add_u32 s23, s23, 8192")
            E("s_mov_b64 exec, -1")
        E(f"s_mul_i32 s23, s16, 10240\ns_mul_i32 s38, s17, 1280\ns_add_u32 s23, s23, s38\ns_add_u32 s23, s23, {LBASE+SS}\ns_mov_b64 exec, 0x3ff")
        E.vmop("buffer_load_dword v255, v14, s[8:11], s23 offen sc1", 'tch')
        E(f"s_lshl_b32 s23, s16, 12\ns_lshl_b32 s38, s17, 9\ns_add_u32 s23, s23, s38\ns_add_u32 s23, s23, {S2B}\ns_mov_b64 exec, 0xf")
        E.vmop("buffer_load_dword v255, v14, s[8:11], s23 offen sc1", 'tch')
        E("s_mov_b64 exec, -1")
    def hpoison(L):
        E(f"s_mul_i32 s23, s17, 24576\ns_mul_i32 s38, s18, 6144\ns_add_u32 s23, s23, s38\ns_add_u32 s23, s23, s28\ns_add_u32 s23, s23, {LBASE+L*LSTR+HH}\ns_add_u32 s38, s23, 4096")
        for u in range(4): E(f"v_mov_b32 v{248+u}, -1")
        for i in range(6): E.vmop(f"buffer_store_dwordx4 v[248:251], v1, s[8:11], {'s23' if i < 4 else 's38'} offen offset:{1024*(i%4)}", 'psn')
        E("s_nop 1")
    def ool(fn):
        sl, sv, sg = E.l, list(E.vm), list(E.lg); E.l = []
        fn(); OOL.append('\n'.join(E.l)); E.l, E.vm, E.lg = sl, sv, sg
    def p2a(L):
        lb = LBASE + L*LSTR
        l = lab('nou')
        E(f"s_cmp_ge_u32 s18, s22\ns_cbranch_scc1 {l}")
        TV = OPT['daf'] & (4 if L == 0 else 2)
        lr = lab('tr')
        if TV: E(f"s_mov_b32 s47, 0\n{lr}:")
        t_loads(L)
        E(f"v_add_u32 v14, {L_M2}, v1")
        for k in range(8): E.lgop(f"ds_read_b128 {vr(224+4*k)}, v14 offset:{1024*k}", ('M2', k))
        E(f"""s_cmp_eq_u32 s21, 9
        s_cselect_b32 s37, -1, 0
        s_mov_b32 s36, 0""")
        for k in range(8):
            E.waitvm(('T', k)); E.waitlg(('M2', k))
            if k == 0: E.stamp('T0')
            E(f"v_mfma_f32_32x32x16_bf16 {vr(208,16)}, {vr(160+4*k)}, {vr(224+4*k)}, {'0' if k == 0 else vr(208,16)}")
            if TV: E((f"v_max_u32 v15, v160, v161" if k == 0 else f"v_max3_u32 v15, v15, v{160+4*k}, v{161+4*k}") + f"\nv_max3_u32 v15, v15, v{162+4*k}, v{163+4*k}")
        if TV:
            E(f"v_cmp_eq_u32 vcc, -1, v15\ns_cbranch_vccnz {lr}a\n{lr}b:")
            OOL.append(f"{lr}a:\ns_add_u32 s47, s47, 1\n" + ("s_add_u32 s97, s97, 1\n" if OPT['stamps'] else '') + f"s_cmp_gt_u32 s47, {SPIN}\ns_cbranch_scc1 {lr}b\ns_branch {lr}")
        if L == 0: idload()
        E.waitvm('res')
        LO, HI, D = 160, 176, 208
        for u in range(8):
            E(f"""v_lshlrev_b32 v{LO+2*u}, 16, v{192+u}
            v_and_b32 v{LO+2*u+1}, 0xffff0000, v{192+u}""")
            if L: E(f"v_lshlrev_b32 v{HI+2*u}, 16, v{200+u}\nv_and_b32 v{HI+2*u+1}, 0xffff0000, v{200+u}")
            else: E(f"v_and_b32 v{HI+2*u}, 0xffff0000, v{200+(u^3)}\nv_lshlrev_b32 v{HI+2*u+1}, 16, v{200+(u^3)}")
        if L == 0: E(f"v_lshlrev_b32 v8, 16, v8\nv_cndmask_b32 v{HI+15}, v{HI+15}, v8, s[36:37]")
        XS = 'sc1' if L == 0 and OPT['xsc'] else ''
        for u in range(8): E(f"v_pk_add_f32 {vr(LO+2*u,2)}, {vr(LO+2*u,2)}, {vr(D+2*u,2)}")
        E(f"v_cndmask_b32 v{D+15}, v{D+15}, 0, s[36:37]")
        for u in range(8): E(f"v_cvt_pk_bf16_f32 v{192+u}, v{LO+2*u}, v{LO+2*u+1}")
        E(f"s_add_u32 s34, s33, {lb+XTMID}\ns_add_u32 s35, s34, 40960")
        for rh in range(2): E.vmop(f"buffer_store_dwordx4 {vr(192+4*rh)}, v3, s[8:11], s34 offen offset:{512*rh} {XS}", 'st')
        for u in range(8): E(f"v_pk_add_f32 {vr(HI+2*u,2)}, {vr(HI+2*u,2)}, {vr(D+2*u,2)}")
        for u in range(8): E(f"v_cvt_pk_bf16_f32 v{200+u}, v{HI+2*u}, v{HI+2*u+1}")
        for rh in range(2): E.vmop(f"buffer_store_dwordx4 {vr(200+4*rh)}, v4, s[8:11], s35 offen offset:{512*rh} {XS}", 'st')
        for (X, o) in ((LO, 224), (HI, 228)):
            E(f"v_pk_mul_f32 {vr(o+2,2)}, {vr(X,2)}, {vr(X,2)}\nv_pk_add_f32 {vr(o,2)}, {vr(X,2)}, {vr(X+2,2)}\nv_pk_fma_f32 {vr(o+2,2)}, {vr(X+2,2)}, {vr(X+2,2)}, {vr(o+2,2)}")
            for u in range(2, 8):
                E(f"v_pk_add_f32 {vr(o,2)}, {vr(o,2)}, {vr(X+2*u,2)}\nv_pk_fma_f32 {vr(o+2,2)}, {vr(X+2*u,2)}, {vr(X+2*u,2)}, {vr(o+2,2)}")
        E(f"""v_add_f32 v224, v224, v225
        v_add_f32 v225, v226, v227
        v_add_f32 v228, v228, v229
        v_add_f32 v229, v230, v231
        s_mul_i32 s23, s16, 10240
        s_lshl_b32 s38, s21, 9
        v_permlane32_swap_b32 v224, v228
        v_permlane32_swap_b32 v225, v229
        s_add_u32 s23, s23, s38
        s_add_u32 s23, s23, {lb+SS}
        v_pk_add_f32 v[224:225], v[224:225], v[228:229]""")
        E.vmop("buffer_store_dwordx2 v[224:225], v5, s[8:11], s23 offen", 'st')
        if L == 0:
            OOL.append(f"{l}:\nbuffer_load_dword v11, v12, s[8:11], 0 offen offset:{FLAGC+IDO} sc1\ns_waitcnt vmcnt(0)\ns_branch {l}x")
            E(f"{l}x:")
        else: E(f"{l}:")

    def rot(dst, base, add, mod, mul, plus):
        return f"s_add_u32 {dst}, {base}, {add}\ns_cmp_ge_u32 {dst}, {mod}\ns_cselect_b32 s38, {mod}, 0\ns_sub_u32 {dst}, {dst}, s38\ns_mul_i32 {dst}, {dst}, {mul}\ns_add_u32 {dst}, {dst}, {plus}"
    w1s = lambda p: f"s{42+p}" if p >= 11 else ['s96','s97','s98','s99','s43','s46','s47','s62'][10-p]
    def ffn1_pre(L):
        lb = LBASE + L*LSTR
        E(f"s_add_u32 s41, s24, {lb+XTMID}\ns_add_u32 s42, s29, s18\ns_lshl_b32 s40, s18, 12")
        for cc in range(5): E(rot(f"s{48+cc}", 's42', 4*cc, 20, 4096, 's41'))
        for p in range(NS, 20): E(rot(w1s(p), 's29', p, 20, 3072, 's39'))
        if L == 0:
            for kk in range(NW2, KS): E(rot(f"s{31+kk-NW2}", 's30', kk, 12, 5120, 's44'))
        E(f"""s_mul_i32 s42, s18, 3072
        s_min_u32 s42, s42, 7168
        s_mul_i32 s63, s16, 10240
        s_add_u32 s63, s63, s42
        s_add_u32 s63, s63, {lb+SS}
        s_add_u32 s42, s42, {L_RED}
        s_add_u32 m0, s40, {L_X}""")
    def ffn1(L):
        lb = LBASE + L*LSTR
        ACC, BF, ONES = 160, 208, 240
        xld = lambda cc, tt: E.vmop(f"buffer_load_dwordx4 v1, s[8:11], s{48+cc} offen offset:{1024*tt} {DS} lds", ('X', cc))
        for tt in range(4): xld(0, tt)
        E("s_mov_b32 m0, s42\nv_add_u32 v15, 0x10000, v1")
        for i in range(3): E.vmop(f"buffer_load_dwordx4 v1, s[8:11], s63 offen offset:{1024*i} {DS} lds", ('X', 1))
        E(f"s_add_u32 m0, s40, {L_X + 16384}\nv_lshlrev_b32 v14, 3, v0")
        for tt in range(4): xld(1, tt)
        E(f"v_add_u32 v14, {L_RED}, v14\nv_add_u32 v10, 4096, v1")
        if L == 0:
            for u in range(4): E(f"v_mov_b32 v{ONES+u}, 0x3f803f80")
            E("s_nop 0")
            E.waitvm(('W1', NS-1)); E("s_nop 0")
            for p in range(NS):
                for t in range(3):
                    E(f"v_mfma_f32_16x16x32_bf16 {ar(240+4*t)}, {vr(16+12*p+4*t)}, {vr(ONES)}, {'0' if p == 0 else ar(240+4*t)}")
        rdB = lambda p, tt: E.lgop(f"ds_read_b128 {vr(BF+16*(p&1)+4*tt)}, {'v1' if p < 16 else 'v15'} offset:{L_X + (p%16)*4096 + tt*1024}", ('B', p, tt))
        Q = []
        w1one = lambda p, t: E.vmop(f"buffer_load_dwordx4 {vr(16+12*(p%12)+4*t)}, v1, s[8:11], {w1s(p)} offen offset:{1024*t}", ('W1', p))
        w2one = lambda kk, t: E.vmop(f"buffer_load_dwordx4 {ar(20*kk+4*t)}, {'v1' if t < 4 else 'v10'}, s[8:11], s{31+kk-NW2} offen offset:{1024*(t%4)}", 'W2')
        for it in list(range(NS, 8)) + [('X', 2)] + list(range(max(NS, 8), 12)) + [('X', 3), 12, 13, 14, 15, ('X', 4), 16, 17, 18, 19]:
            if isinstance(it, tuple): Q += [(0, (lambda c=it[1], t=t: xld(c, t)), (it[1] if t == 0 else None)) for t in range(4)]
            else: Q += [(max(it-11, 0), (lambda p=it, t=t: w1one(p, t)), None) for t in range(3)]
        NQ2 = 5*(KS-NW2) if L == 0 else 0
        if L == 0:
            for kk in range(NW2, KS): Q += [(0, (lambda k=kk, t=t: w2one(k, t)), None) for t in range(5)]
        FL = (f"s_mul_i32 s23, s17, 6\ns_add_u32 s41, s23, s18\ns_lshl_b32 s41, s41, 12\ns_add_u32 s41, s41, s28\ns_add_u32 s41, s41, {lb+HH}\n"
              f"s_lshr_b32 s42, s18, 1\ns_add_u32 s42, s42, s23\ns_add_u32 s42, s42, 4\ns_lshl_b32 s42, s42, 12\ns_add_u32 s42, s42, s28\ns_add_u32 s42, s42, {lb+HH}\n"
              f"s_mul_i32 s43, s18, {12*4096}\ns_add_u32 s43, s43, s28\ns_add_u32 s43, s43, {lb+HH}\ns_lshl_b32 s47, s30, 12\ns_add_u32 s52, s47, s43\ns_add_u32 s43, s43, {12*4096}").split('\n')
        for kk in range(1, 12): FL += [f"s_add_u32 s{52+kk}, s{51+kk}, 4096", f"s_cmp_ge_u32 s{52+kk}, s43\ns_cselect_b32 s38, {12*4096}, 0", f"s_sub_u32 s{52+kk}, s{52+kk}, s38"]
        for b in range(4): FL += [f"s_add_u32 s{48+b}, s18, {b+1}", f"s_and_b32 s{48+b}, s{48+b}, 3", f"s_lshl_b32 s{48+b}, s{48+b}, 10"]
        E.waitvm(('X', 0)); E("s_barrier"); E.stamp('X0')
        for tt in range(4): rdB(0, tt)
        ST, SM = 244, 248
        for p in range(20):
            n = 0
            slots = (5, 7, 9) if p < OPT['p4s'] else (4, 6, 8, 10)
            for tt in range(4):
                for t in range(3):
                    if n == 0: E.waitvm(('W1', p))
                    if t == 0: E.waitlg(('B', p, tt))
                    a = ACC + 16*t + 4*tt
                    E(f"v_mfma_f32_16x16x32_bf16 {vr(a)}, {vr(16+12*(p%12)+4*t)}, {vr(BF+16*(p&1)+4*tt)}, {'0' if p == 0 else vr(a)}")
                    n += 1
                    if n == 1 and p < 19 and (p+1) % 4 == 0: E.waitvm(('X', (p+1)//4)); E("s_barrier")
                    if n in (2, 4, 6, 8) and p < 19: rdB(p+1, n//2-1)
                    if n+1 in slots and Q and Q[0][2] is not None: E(f"s_add_u32 m0, s40, {L_X + Q[0][2]*16384}")
                    if n in slots and Q and Q[0][0] <= p: Q.pop(0)[1]()
                    if p >= 11 and len(Q) <= NQ2 and FL and n % 2 == 1: E(FL.pop(0))
                    if p >= 11 and len(Q) <= NQ2 and FL and n in (2, 12): E(FL.pop(0))
                    if 4 <= p <= 8:
                        if n in (1, 3): E.lgop(f"ds_read2st64_b64 {vr(SM+2*(n-1))}, v14 offset0:{4*(p-4)+n-1} offset1:{4*(p-4)+n}", ('S', p))
                        if n == 10:
                            E.waitlg(('S', p))
                            E(f"v_add_f32 v{SM}, v{SM}, v{SM+2}\nv_add_f32 v{SM+1}, v{SM+1}, v{SM+3}")
                        if n == 11: E(f"v_add_f32 v{SM+4}, v{SM+4}, v{SM+6}\nv_add_f32 v{SM+5}, v{SM+5}, v{SM+7}")
                        if n == 12:
                            if p == 4: E(f"v_add_f32 v{ST}, v{SM}, v{SM+4}\nv_add_f32 v{ST+1}, v{SM+1}, v{SM+5}")
                            else: E(f"v_add3_f32 v{ST}, v{SM}, v{SM+4}, v{ST}\nv_add3_f32 v{ST+1}, v{SM+1}, v{SM+5}, v{ST+1}".replace('v_add3_f32', 'v_xadd') if 0 else
                                    f"v_add_f32 v{ST}, v{ST}, v{SM}\nv_add_f32 v{ST+1}, v{ST+1}, v{SM+1}\nv_add_f32 v{ST}, v{ST}, v{SM+4}\nv_add_f32 v{ST+1}, v{ST+1}, v{SM+5}")
                    if p == 9:
                        seq = [f"v_mul_f32 v{ST}, {f2h(1/640)}, v{ST}", f"v_mul_f32 v{ST+1}, {f2h(1/640)}, v{ST+1}",
                               f"v_fma_f32 v{ST+1}, -v{ST}, v{ST}, v{ST+1}", f"v_max_f32 v{ST+1}, 0, v{ST+1}",
                               f"v_add_f32 v{ST+1}, {f2h(1e-5)}, v{ST+1}", f"v_rsq_f32 v{ST+1}, v{ST+1}",
                               f"v_and_b32 v{ST+2}, 15, v0", f"v_lshlrev_b32 v{ST+2}, 2, v{ST+2}", f"s_lshl_b32 s23, s18, 6",
                               f"v_add_u32 v{ST+3}, s23, v{ST+2}", f"v_sub_f32 v{ST}, 0, v{ST}", None]
                        if seq[n-1]: E(seq[n-1])
                    if p == 10 and n in (1, 3, 10, 11): tt2 = (1, 3, 10, 11).index(n); E.lgop(f"ds_bpermute_b32 v{SM+2*tt2}, v{ST+2}, v{ST} offset:{64*tt2}", 'm')
                    if p == 10 and n == 12: E.lgop(f"ds_bpermute_b32 v7, v{ST+3}, v{ST+1}", 'm')
            if L == 0 and p >= NS:
                for t in range(3):
                    E(f"v_mfma_f32_16x16x32_bf16 {ar(240+4*t)}, {vr(16+12*(p%12)+4*t)}, {vr(ONES)}, {ar(240+4*t)}")
        assert not Q, len(Q)
        for x in FL: E(x)
        E.stamp('f1end')
        CS = 128
        E("s_nop 5")
        for i in range(12): E(f"v_accvgpr_read_b32 v{CS+i}, a{240+i}")
        E.waitlg()
        O = 16
        for tt in range(4):
            for t in range(3):
                a = ACC + 16*t + 4*tt
                for u in range(2):
                    E(f"v_pk_fma_f32 {vr(a+2*u,2)}, {vr(CS+4*t+2*u,2)}, {vr(SM+2*tt,2)}, {vr(a+2*u,2)} op_sel_hi:[1,0,1]")
            for t in range(3):
                a = ACC + 16*t + 4*tt
                o = O + 4*tt + 2*t if t < 2 else O + 16 + 2*tt
                for u in range(2): E(f"v_cvt_pk_bf16_f32 v{o+u}, v{a+2*u}, v{a+2*u+1}")
            for t in range(3):
                o = O + 4*tt + 2*t if t < 2 else O + 16 + 2*tt
                for u in range(2): E(f"v_pk_max_i16 v{o+u}, v{o+u}, 0")
            E.vmop(f"buffer_store_dwordx4 {vr(O+4*tt)}, v1, s[8:11], s41 offen offset:{1024*tt}", 'st')
            if tt & 1:
                o = O + 16 + 2*(tt-1)
                E(f"s_nop 0\nv_permlane32_swap_b32 v{o}, v{o+2}\nv_permlane32_swap_b32 v{o+1}, v{o+3}")
                E.vmop(f"buffer_store_dwordx4 {vr(o)}, v6, s[8:11], s42 offen offset:{1024*(tt-1)}", 'st')

    def ffn2(L):
        lb = LBASE + L*LSTR
        HF, ACC = 16, (208, 228)
        for b in range(4): E(f"v_add_u32 v{248+b}, s{48+b}, v1")
        HQ = [(b, kk) for b in range(4) for kk in range(12)]
        def hld():
            b, kk = HQ.pop(0)
            E.vmop(f"buffer_load_dwordx4 {vr(HF+48*b+4*kk)}, v{248+b}, s[8:11], s{52+kk} offen {DS}", ('h', b, kk))
        RES, PART = 16, 64
        DAF = OPT['daf'] & 1
        issued = []
        hins = lambda b, kk: f"buffer_load_dwordx4 {vr(HF+48*b+4*kk)}, v{248+b}, s[8:11], s{52+kk} offen {DS}"
        chk = lambda b, kk: [f"v_or3_b32 v252, v{HF+48*b+4*kk}, v{HF+48*b+4*kk+1}, v{HF+48*b+4*kk+2}", f"v_or_b32 v252, v252, v{HF+48*b+4*kk+3}", "v_cmp_gt_i32 vcc, 0, v252"]
        if OPT['c1']: chk = lambda b, kk: [f"v_cmp_gt_i32 vcc, 0, v{HF+48*b+4*kk+3}"]
        def retry(b, kk):
            l = lab('hr'); pend = [x for x in [(bb, k2) for bb in range(4) for k2 in range(12)] if x >= (b, kk) and x not in HQ]
            if b >= 2 or (b == 1 and kk > 0): pend = [(b, kk)]
            E(f"s_cbranch_vccnz {l}\n{l}b:")
            OOL.append(f"{l}:\ns_mov_b32 s38, 0\n{l}a:\n" + (f"s_add_u32 s97, s97, {1 if b == 0 else 100}\n" if OPT['stamps'] else '') + '\n'.join(hins(*x) for x in pend) + f"\ns_add_u32 s38, s38, 1\ns_cmp_gt_u32 s38, {SPIN}\ns_cbranch_scc1 {l}b\ns_waitcnt vmcnt(0)\n"
                       + '\n'.join(chk(b, kk)) + f"\ns_cbranch_vccnz {l}a\ns_branch {l}b")
        if DAF:
            l = lab('hs')
            E(f"s_cmp_lg_u32 s27, 0\ns_cbranch_scc1 {l}\n{l}b:")
            def slow():
                E(f"{l}:"); st = OPT['stamps']; OPT['stamps'] = ''
                sync(4*L+2, None); OPT['stamps'] = st
                E(f"s_branch {l}b")
            ool(slow)
            if L == 0:
                l = lab('w2s'); E(f"s_cmp_eq_u32 s18, 3\ns_cbranch_scc1 {l}")
                assert not OPT['hw'] or 5*(12-KS) < 60
                for kk in range(KS, 12): w2_loads(kk)
                if OPT['hw']: E.waitvm('st'); E(f"s_branch {l}x\n{l}:\ns_waitcnt vmcnt(0)\n{l}x:")
                else: E(f"{l}:")
            elif OPT['hw']: E.waitvm('st')
            E.stamp('pubh')
        else:
            sync(4*L+2, 'st', post012=(lambda: [w2_loads(kk) for kk in range(KS, 12)]) if L == 0 else None, name='h')
        for i in range(OPT['hpre']): hld()
        E(f"""v_lshrrev_b32 v14, 4, v0
        v_and_b32 v15, 15, v0
        s_mul_i32 s23, s17, 5
        v_add_u32 v8, s23, v14
        v_lshrrev_b32 v9, 2, v8
        v_lshlrev_b32 v9, 12, v9
        v_and_b32 v10, 3, v8
        v_lshl_add_u32 v9, v10, 8, v9
        v_lshlrev_b32 v10, 9, v8
        s_lshl_b32 s38, s18, 10
        v_lshl_add_u32 v11, v15, 4, s38
        v_add_u32 v8, v9, v11
        s_add_u32 s23, s23, 4
        s_lshr_b32 s35, s23, 2
        s_lshl_b32 s35, s35, 12
        s_and_b32 s36, s23, 3
        s_lshl_b32 s36, s36, 8
        s_add_u32 s35, s35, s36
        v_lshl_add_u32 v9, v14, 2, v11
        v_add_u32 v9, s35, v9
        s_lshr_b32 s35, s18, 1
        s_mul_i32 s35, s35, 40960
        s_and_b32 s36, s18, 1
        s_lshl_b32 s36, s36, 8
        s_add_u32 s35, s35, s36
        v_lshl_add_u32 v11, v15, 4, s35
        v_add_u32 v10, v10, v11
        s_lshl_b32 s23, s23, 9
        v_lshl_add_u32 v11, v14, 2, v11
        v_add_u32 v11, s23, v11""")
        if L == 0 and OPT['pr'] & 2:
            E(f"""s_add_u32 s34, s24, {XF2}
            s_add_u32 s35, s34, 20480
            s_lshl_b32 s23, s16, 12
            s_lshl_b32 s38, s17, 9
            s_add_u32 s23, s23, s38
            s_lshl_b32 s38, s18, 7
            s_add_u32 s23, s23, s38
            s_add_u32 s23, s23, {S2B}
            v_and_b32 v14, 31, v0
            v_lshlrev_b32 v14, 2, v14""")
            for (a, n, sr) in (('v10', 4, 's34'), ('v10', 4, 's35'), ('v11', 1, 's34'), ('v11', 1, 's35'), ('v14', 1, 's23')):
                E.vmop(f"buffer_store_dwordx4 v[0:3], {a}, s[8:11], {sr} offen" if n == 4 else f"buffer_store_dword v0, {a}, s[8:11], {sr} offen", 'pr')
        if L == 1:
            E(f"""s_sub_u32 s23, 64, s16
            s_cmp_eq_u32 s16, 0
            s_cselect_b32 s23, 32, s23
            s_cmp_lt_u32 s18, 2
            s_cselect_b32 s23, s16, s23
            s_and_b32 s38, s18, 1
            s_lshl_b32 s38, s38, 10
            s_add_u32 s23, s23, s38
            v_and_b32 v14, 15, v0
            v_lshl_add_u32 v14, v14, 6, s23
            v_mul_u32_u24 v14, 1280, v14
            v_lshrrev_b32 v15, 4, v0
            s_mul_i32 s23, s17, 80
            s_add_u32 s38, s23, 2
            v_lshl_add_u32 v2, v15, 4, s38
            v_add_u32 v2, v2, v14
            s_sub_u32 s38, 1264, s23
            v_lshlrev_b32 v3, 4, v15
            v_sub_u32 v3, s38, v3
            v_add_u32 v3, v3, v14
            s_add_u32 s38, s23, 66
            v_lshl_add_u32 v4, v15, 2, s38
            v_add_u32 v4, v4, v14
            s_sub_u32 s38, 1214, s23
            v_lshlrev_b32 v5, 2, v15
            v_sub_u32 v5, s38, v5
            v_add_u32 v6, -2, v5
            v_cmp_eq_u32 vcc, 640, v6
            v_add_u32 v5, v5, v14
            s_nop 0
            v_cndmask_b32 v6, v6, 0, vcc
            v_add_u32 v6, v6, v14""")
            if OPT['pr'] & 4:
                for x in ("dwordx4 v[8:11], v2", "dwordx4 v[8:11], v3", "dword v8, v4", "short v8, v5", "short v8, v6"): E.vmop(f"buffer_store_{x}, s[12:15], 0 offen", 'pr')
        E.waitvm('W2')
        if DAF:
            E.waitvm(('h', 0, 0))
            for c in chk(0, 0): E(c)
            retry(0, 0)
        for b in range(4):
            A = ACC[b & 1]; P = ACC[(b+1) & 1]
            n = 0
            for kk in range(12):
                E.waitvm(('h', b, kk))
                if b == 0 and kk == 0: E.stamp('h0')
                for t in range(5):
                    E(f"v_mfma_f32_16x16x32_bf16 {vr(A+4*t)}, {ar(20*kk+4*t)}, {vr(HF+48*b+4*kk)}, {'0' if kk == 0 else vr(A+4*t)}")
                    n += 1
                    if t == 1 and HQ: hld()
                    if DAF and (b, kk) != (3, 11):
                        nb, nk = (b, kk+1) if kk < 11 else (b+1, 0)
                        if OPT['c1']:
                            if t == 2 + OPT['cw']: E.waitvm(('h', nb, nk)); E(chk(nb, nk)[0])
                        else:
                            if t == 0: E.waitvm(('h', nb, nk))
                            if t == 2: E(chk(nb, nk)[0]); E(chk(nb, nk)[1])
                            if t == 3: E(chk(nb, nk)[2])
                        if t == 4: retry(nb, nk)
                    if b >= 1 and n == 9:
                        E(f"s_add_u32 s23, s18, {b}\ns_and_b32 s23, s23, 3\ns_mul_i32 s23, s23, {3*5120}\ns_add_u32 s23, s23, {L_RED + (b-1)*5120}\nv_add_u32 v14, s23, v1")
                    if b >= 1 and 11 <= n <= 19 and n % 2 == 1:
                        t2 = (n-11)//2
                        E.lgop(f"ds_write_b128 v14, {vr(P+4*t2)} offset:{1024*t2}", 'red')
                    if b == 1 and n == 25:
                        E(f"s_add_u32 s34, s24, {lb+XTMID}\ns_add_u32 s35, s34, 40960")
                        E.vmop(f"buffer_load_dwordx4 {vr(RES)}, v8, s[8:11], s34 offen {DS}", 'res')
                        E.vmop(f"buffer_load_dwordx4 {vr(RES+4)}, v8, s[8:11], s35 offen {DS}", 'res')
                        E.vmop(f"buffer_load_dword v{RES+8}, v9, s[8:11], s34 offen {DS}", 'res')
                        E.vmop(f"buffer_load_dword v{RES+9}, v9, s[8:11], s35 offen {DS}", 'res')
                    if b == 3 and n == 30:
                        E.waitlg(); E(f"s_barrier\ns_mul_i32 s23, s18, {3*5120}\ns_add_u32 s23, s23, {L_RED}\nv_add_u32 v14, s23, v1")
                    if b == 3 and 32 <= n < 47:
                        i = n - 32
                        E.lgop(f"ds_read_b128 {vr(PART+4*i)}, v14 offset:{1024*i}", 'part')
        E.stamp('f2end')
        if OPT['stamps']: E.note('cnt', 's97'); E("s_mov_b32 s97, 0")
        A = ACC[1]
        X = 32
        E.waitvm('res')
        pr = lambda u: (8*(u >> 2) + (u & 3), 8*(u >> 2) + (u & 3) + 4) if u < 8 else (2*u, 2*u+1)
        for u in range(10): E(f"v_lshlrev_b32 v{X+pr(u)[0]}, 16, v{RES+u}\nv_and_b32 v{X+pr(u)[1]}, 0xffff0000, v{RES+u}")
        E.waitlg()
        for u in range(10):
            E(f"v_pk_add_f32 {vr(PART+2*u,2)}, {vr(PART+2*u,2)}, {vr(PART+20+2*u,2)}\nv_pk_add_f32 {vr(A+2*u,2)}, {vr(A+2*u,2)}, {vr(PART+40+2*u,2)}")
        for u in range(10):
            E(f"v_pk_add_f32 {vr(A+2*u,2)}, {vr(A+2*u,2)}, {vr(PART+2*u,2)}")
        E("v_mov_b32 v14, v7")
        for u in range(10):
            E(f"v_pk_fma_f32 {vr(X+2*u,2)}, {vr(A+2*u,2)}, v[14:15], {vr(X+2*u,2)} op_sel_hi:[1,0,1]")
        O = 64
        if L == 0:
            nb = LBASE + LSTR
            for u in range(10): E(f"v_cvt_pk_bf16_f32 v{O+u}, v{X+pr(u)[0]}, v{X+pr(u)[1]}")
            EE, OO = 80, 92
            for u in range(4):
                E(f"v_pk_add_f32 {vr(EE+2*u,2)}, {vr(X+2*u,2)}, {vr(X+8+2*u,2)}\nv_pk_add_f32 {vr(OO+2*u,2)}, {vr(X+2*u,2)}, {vr(X+8+2*u,2)} neg_lo:[0,1] neg_hi:[0,1]")
            E(f"""v_pk_add_f32 {vr(EE+8,2)}, {vr(X+16,2)}, {vr(X+18,2)}
            v_pk_add_f32 {vr(OO+8,2)}, {vr(X+16,2)}, {vr(X+18,2)} neg_lo:[0,1] neg_hi:[0,1]
            s_cmp_eq_u32 s17, 7
            s_cselect_b32 s37, 0xffff0000, 0
            s_mov_b32 s36, 0
            s_add_u32 s34, s24, {XF2}
            s_add_u32 s35, s34, 20480
            v_cndmask_b32 v{EE+9}, v{EE+9}, v{X+17}, s[36:37]
            v_cndmask_b32 v{OO+9}, v{OO+9}, v{X+19}, s[36:37]""")
            for u in range(5):
                a, b = (u, u+4) if u < 4 else (8, 9)
                E(f"v_cvt_pk_bf16_f32 v{EE+u}, v{EE+a}, v{EE+b}\nv_cvt_pk_bf16_f32 v{OO+u}, v{OO+a}, v{OO+b}")
            E.vmop(f"buffer_store_dwordx4 {vr(EE)}, v10, s[8:11], s34 offen", 'st')
            E.vmop(f"buffer_store_dwordx4 {vr(OO)}, v10, s[8:11], s35 offen", 'st')
            E.vmop(f"buffer_store_dword v{EE+4}, v11, s[8:11], s34 offen", 'st')
            E.vmop(f"buffer_store_dword v{OO+4}, v11, s[8:11], s35 offen", 'st')
            E(f"v_pk_mul_f32 v[106:107], {vr(X,2)}, {vr(X,2)}\nv_pk_add_f32 v[104:105], {vr(X,2)}, {vr(X+2,2)}\nv_pk_fma_f32 v[106:107], {vr(X+2,2)}, {vr(X+2,2)}, v[106:107]")
            for u in range(2, 10): E(f"v_pk_add_f32 v[104:105], v[104:105], {vr(X+2*u,2)}\nv_pk_fma_f32 v[106:107], {vr(X+2*u,2)}, {vr(X+2*u,2)}, v[106:107]")
            E(f"""v_add_f32 v104, v104, v105
            v_add_f32 v105, v106, v107
            s_lshl_b32 s23, s16, 12
            s_lshl_b32 s38, s17, 9
            s_add_u32 s23, s23, s38
            v_permlane32_swap_b32 v104, v105
            s_lshl_b32 s38, s18, 7
            s_add_u32 s23, s23, s38
            v_add_f32 v104, v104, v105
            s_add_u32 s23, s23, {S2B}
            v_mov_b32 v105, v104
            v_and_b32 v106, 15, v0
            v_lshrrev_b32 v107, 5, v0
            v_permlane16_swap_b32 v104, v105
            v_lshlrev_b32 v106, 3, v106
            v_lshl_add_u32 v106, v107, 2, v106
            v_add_f32 v104, v104, v105""")
            E.vmop("buffer_store_dword v104, v106, s[8:11], s23 offen", 'st')
            E(f"s_add_u32 s34, s24, {nb+XTIN}\ns_add_u32 s35, s34, 40960")
            E.vmop(f"buffer_store_dwordx4 {vr(O)}, v8, s[8:11], s34 offen", 'st')
            E.vmop(f"buffer_store_dwordx4 {vr(O+4)}, v8, s[8:11], s35 offen", 'st')
            E.vmop(f"buffer_store_dword v{O+8}, v9, s[8:11], s34 offen", 'st')
            E.vmop(f"buffer_store_dword v{O+9}, v9, s[8:11], s35 offen", 'st')
        else:
            for u in range(4): E(f"v_cvt_pk_bf16_f32 v{O+u}, v{X+u}, v{X+4+u}\nv_cvt_pk_bf16_f32 v{O+4+u}, v{X+15-u}, v{X+11-u}")
            OS = 'sc1' if OPT['outsc'] else ''
            E(f"""buffer_store_dwordx4 {vr(O)}, v2, s[12:15], 0 offen {OS}
            v_cvt_pk_bf16_f32 v{O+8}, v{X+16}, v{X+17}
            v_cvt_pk_bf16_f32 v{O+9}, v{X+18}, v{X+19}
            buffer_store_dwordx4 {vr(O+4)}, v3, s[12:15], 0 offen {OS}
            buffer_store_dword v{O+8}, v4, s[12:15], 0 offen {OS}
            buffer_store_short v{O+9}, v5, s[12:15], 0 offen {OS}
            buffer_store_short_d16_hi v{O+9}, v6, s[12:15], 0 offen {OS}""")

    def p4():
        def g():
            l = lab('nog')
            E(f"s_cmp_ge_u32 s18, s22\ns_cbranch_scc1 {l}")
            gen_G(E, 's21')
            E(f"{l}:"); E.stamp('gen')
        if OPT['xp']: E(f"s_mul_i32 s34, s19, 40960\ns_add_u32 s34, s34, s24\ns_lshl_b32 s36, s18, 10\ns_add_u32 s34, s34, s36\ns_add_u32 s34, s34, {XF2}\ns_add_u32 s35, s34, 20480\ns_add_u32 m0, s36, {L_X}")
        sync(3, None, post012=g, name='xf')
        if OPT['xp']:
            for c in range(5):
                E.vmop(f"buffer_load_dwordx4 v1, s[8:11], s34 offen {DS} lds", ('XF', c))
                E(f"s_add_u32 m0, s36, {L_X + 20480 + 4096*c}\ns_add_u32 s34, s34, 4096")
                E.vmop(f"buffer_load_dwordx4 v1, s[8:11], s35 offen {DS} lds", ('XF', c))
                if c < 4: E(f"s_add_u32 m0, s36, {L_X + 4096*(c+1)}\ns_add_u32 s35, s35, 4096")
            E.stamp('yi')
            sv = list(E.vm)
            l = lab('nou'); l3 = lab('xw3'); lx = lab('xend')
            E(f"""s_cmp_ge_u32 s18, s22
            s_cbranch_scc1 {l}
            v_mov_b32 v10, v13
            v_lshrrev_b32 v9, 5, v0
            v_lshlrev_b32 v9, 4, v9
            v_add_u32 v9, {L_R}, v9
            s_mul_i32 s32, s21, 8192
            s_lshl_b32 s33, s20, 7
            s_add_u32 s32, s32, s33
            s_add_u32 s32, s32, {LBASE + TSTR + TT}""")
            def chunk(c):
                E.waitvm(('XF', c)); E("s_barrier")
                if c == 0: E.stamp('xf')
            dft_unit(E, L_X, 512, L_M1, 'v9', 's32', 'sc1', chunk=chunk)
            E(f"v_mov_b32 v13, v10\ns_branch {lx}\n{l}:")
            sv2 = list(E.vm); E.vm = sv
            E(f"""s_cmp_lg_u32 s18, 3
            s_cbranch_scc1 {l3}
            v_and_b32 v14, 31, v0
            v_lshlrev_b32 v14, 3, v14
            s_lshl_b32 s23, s16, 12
            s_lshl_b32 s38, s19, 8
            s_add_u32 s23, s23, s38
            s_add_u32 s23, s23, {S2B}""")
            for m in range(8): E.vmop(f"buffer_load_dwordx2 {vr(224+2*m,2)}, v14, s[8:11], s23 offen offset:{512*m} {DS}", 'S')
            for c in range(4): E.waitvm(('XF', c)); E("s_barrier")
            E.waitvm('S')
            for m in range(1, 8): E(f"v_pk_add_f32 v[224:225], v[224:225], {vr(224+2*m,2)}")
            E(f"""v_mul_f32 v224, {f2h(1/640)}, v224
            v_mul_f32 v225, {f2h(1/640)}, v225
            v_fma_f32 v225, -v224, v224, v225
            v_max_f32 v225, 0, v225
            v_add_f32 v225, {f2h(1e-5)}, v225
            v_rsq_f32 v225, v225
            v_lshlrev_b32 v14, 2, v0
            v_add_u32 v14, {L_R}, v14
            ds_write_b32 v14, v225
            s_waitcnt lgkmcnt(0)
            s_barrier
            s_branch {lx}
            {l3}:""")
            E.vm = list(sv)
            for c in range(5): E.waitvm(('XF', c)); E("s_barrier")
            E(f"{lx}:"); E.vm = sv2
            return
        E(f"""s_mul_i32 s23, s19, 40960
        s_add_u32 s23, s23, s24
        s_mul_i32 s38, s18, 10240
        s_add_u32 s23, s23, s38
        s_add_u32 s23, s23, {XF2}""")
        for i in range(10):
            if i % 4 == 0: E(f"s_add_u32 m0, s38, {L_X + 1024*i}\ns_add_u32 s34, s23, {1024*i}")
            E.vmop(f"buffer_load_dwordx4 v1, s[8:11], s34 offen offset:{1024*(i%4)} {DS} lds", 'XF')
        E(f"""v_and_b32 v14, 31, v0
        v_lshlrev_b32 v14, 3, v14
        s_lshl_b32 s23, s16, 12
        s_lshl_b32 s38, s19, 8
        s_add_u32 s23, s23, s38
        s_add_u32 s23, s23, {S2B}""")
        for m in range(8): E.vmop(f"buffer_load_dwordx2 {vr(224+2*m,2)}, v14, s[8:11], s23 offen offset:{512*m} {DS}", 'S')
        E.stamp('yi')
        if OPT['daf'] & 1: hpoison(1)
        E.stamp('yp')
        E.waitvm('XF'); E.stamp('yx')
        E.waitvm('S'); E.stamp('ys')
        for m in range(1, 8): E(f"v_pk_add_f32 v[224:225], v[224:225], {vr(224+2*m,2)}")
        E(f"""v_mul_f32 v224, {f2h(1/640)}, v224
        v_mul_f32 v225, {f2h(1/640)}, v225
        v_fma_f32 v225, -v224, v224, v225
        v_max_f32 v225, 0, v225
        v_add_f32 v225, {f2h(1e-5)}, v225
        v_rsq_f32 v225, v225
        s_lshl_b32 s23, s18, 8
        s_add_u32 s23, s23, {L_R}
        v_lshl_add_u32 v14, v0, 2, s23
        ds_write_b32 v14, v225
        v_lshrrev_b32 v9, 5, v0
        v_lshl_add_u32 v9, v9, 4, s23
        s_waitcnt lgkmcnt(0)
        s_barrier""")
        E.stamp('xf')
        l = lab('nou')
        E(f"""s_cmp_ge_u32 s18, s22
        s_cbranch_scc1 {l}
        v_mov_b32 v10, v13
        s_mul_i32 s32, s21, 8192
        s_lshl_b32 s33, s20, 7
        s_add_u32 s32, s32, s33
        s_add_u32 s32, s32, {LBASE + TSTR + TT}""")
        dft_unit(E, L_X, 512, L_M1, 'v9', 's32', 'sc1')
        E(f"v_mov_b32 v13, v10\n{l}:")

    NA, NB = OPT['na'], OPT['nb']
    E(f"""s_cmp_eq_u32 s18, 3
    s_cbranch_scc1 k2_w3a
    s_cmp_ge_u32 s18, s22
    s_cbranch_scc1 k2_nou0
    s_mul_i32 s32, s21, 8192
    s_lshl_b32 s33, s20, 7
    s_add_u32 s32, s32, s33
    s_add_u32 s32, s32, {LBASE + TT}""")
    E("s_cmp_lg_u32 s18, 2\ns_cbranch_scc1 k2_nf2"); gflag(1, 16); E("k2_nf2:")
    dft_unit(E, L_X, XFS, L_M1, 'v9', 's32', 'sc1', mid=(lambda: E("s_waitcnt vmcnt(0)")) if OPT['daf'] & 4 else None)
    E("s_branch k2_nou1\nk2_nou0:")
    w2finish(); E("s_waitcnt vmcnt(0)"); gflag(1, 16)
    E("k2_nou1:"); E.stamp('dft')
    if not OPT['daf'] & 4: E.waitvm()
    gflag(1); E.stamp('gpub0')
    if OPT['ord'] == 0:
        if OPT['daf'] & 2: tpoison(E, 1)
        setup()
        if OPT['daf'] & 1: hpoison(0)
        res_loads(0); gen_M2()
        E("s_barrier"); E.stamp('w1ok')
        w1_loads(0, NA)
    else:
        setup()
        if OPT['ord'] == 2: res_loads(0)
        E("s_barrier"); E.stamp('w1ok')
        w1_loads(0, NA)
        if OPT['ord'] == 1: res_loads(0)
        gen_M2()
        if OPT['daf'] & 1: hpoison(0)
        if OPT['daf'] & 2: tpoison(E, 1)
    sv = list(E.vm)
    E("s_branch k2_B2\nk2_w3a:")
    w2finish(); E.stamp('w2st')
    setup()
    E(f"v_mov_b32 v14, s45\nv_mov_b32 v15, s26\ns_mov_b64 exec, 1\nbuffer_store_dword v15, v14, s[8:11], 0 offen offset:{FLAGC+IDO-12} sc1\ns_mov_b64 exec, -1")
    gen_M2()
    E("s_waitcnt vmcnt(0)"); gflag(1, 16); E.stamp('w2pub')
    if OPT['daf'] & 1: hpoison(0)
    wpoll(1, 0); E.stamp('pkpoll')
    N3 = OPT['n3']
    w1_loads(0, N3)
    E("s_barrier")
    w1_loads(N3, OPT['n3b'])
    wpoll(1, 1); E.stamp('pk2')
    W2A = list(range(NW2)) + list(range(KS, 12))
    for kk in W2A[:OPT['w2e']]: w2_loads(kk)
    gpoll(1)
    E("k2_B2:\ns_waitcnt lgkmcnt(0)\ns_barrier"); E.lg = []; E.stamp('gpoll0')
    E.vm = sv
    E.pre = 'k2_a_'
    E("s_cmp_eq_u32 s18, 3\ns_cbranch_scc1 k2_w3b")
    p2a(0)
    E.stamp('p2a')
    E.waitvm(); idcheck(); publish(1); E.stamp('pub1')
    w1_loads(NA, NS)
    for kk in range(NW2): w2_loads(kk)
    ffn1_pre(0)
    sv = list(E.vm)
    E("s_branch k2_sb1\nk2_w3b:")
    idload(); E.waitvm(); idcheck(); publish(1)
    w1_loads(OPT['n3b'], NS)
    for kk in W2A[OPT['w2e']:]: w2_loads(kk)
    ffn1_pre(0)
    poll(1)
    E("k2_sb1:\ns_barrier"); acquire(); E.stamp('poll1')
    E.vm = sv
    ffn1(0)
    ffn2(0)
    p4()
    E("s_cmp_eq_u32 s18, 3\ns_cbranch_scc1 k2_gpoll")
    if not OPT['daf'] & 2: E.waitvm()
    gflag(2); E.stamp('gpub')
    res_loads(1)
    if OPT['xp'] and OPT['daf'] & 1: hpoison(1)
    w1_loads(0, NB)
    sv = list(E.vm)
    E("s_branch k2_gdone\nk2_gpoll:")
    if OPT['xp'] and OPT['daf'] & 1: hpoison(1)
    w1_loads(0, NS)
    gpoll(2)
    E("k2_gdone:\ns_barrier")
    E.vm = sv
    E.stamp('gpoll')
    E.pre = 'k2_b_'
    p2a(1)
    E.stamp('p2a')
    ffn1_pre(1)
    sync(5, None, post012=lambda: w1_loads(NB, NS), name='1')
    ffn1(1)
    ffn2(1)
    if OPT['stamps']: E("s_waitcnt vmcnt(0)"); E.stamp('end')
    E.dump_stamps('s18'); E.dump_dbg()
    E("k2_done:\ns_endpgm")
    for o in OOL: E(o)
    E("k2_end:")
    return head(KN) + E.text()

src = f"""; FNet (folded hidden DFT + 2-stage sequence DFT on MFMA) + ReLU FFN, two layers, one persistent kernel.  Generated by hand-written generator scripts.
; @launch grid=(256,1,1) block=(256,1,1) lds={LDS2}
.amdgcn_target "amdgcn-amd-amdhsa--gfx950"
.text
""" + kern() + '.section .rodata,"a"\n.p2align 6\n' + desc(KN, 512, 256)
print(src + '\n'.join(NAMES))
```

```python
import sys, struct
import re
OPT = dict(stamps='', fast=1, pf=1, reuse=1, dbg=0, ns=11, na=8, nb=8, touch=0, p4s=11, nw2a=2, ks=8, dsc=1, outsc=0, hpre=10, xsc=0, wso=0, daf=3, hw=0, c1=1, cw=0, pr=2, xp=1, pk=1, fst=2176, rep=1, gh=2, xm=1, n3=5, w2e=0, n3b=5, ord=0, n3l=11, hpl=0, nt=0, lw=0, l3=0, gs=4, td=3)
for a in sys.argv[1:]:
    k, v = a.split('='); OPT[k] = v if k == 'stamps' else int(v)
NAMES = []
f2h = lambda x: hex(struct.unpack('<I', struct.pack('<f', x))[0])
KB = 1024
NT = lambda b: ' nt' if OPT['nt'] & b else ''
FLAGC = 0
FLAGG = 32*KB
FLAGT = 384*KB
FST = OPT['fst']
FLAGP = FLAGT + 32*FST
STAMP = 64*KB
S2B   = 256*KB
W1P   = 512*KB
W2P   = W1P + 1920*KB
XF2   = W2P + 1920*KB
LBASE = XF2 + 2560*KB
XTIN, XTMID, TT, HH, SS = 0, 2560*KB, 5120*KB, 7680*KB, 13824*KB
LSTR  = 14336*KB
TSTR = LSTR
if OPT['reuse']:
    XTIN, XTMID, TT, HH, SS, LSTR, TSTR = 0, 0, 2560*KB, 7680*KB, 13824*KB, 0, 2560*KB
WS_BYTES = 268435456
REP = OPT['rep']; RST = 32*KB + 128
if REP > 1: FLAGG = LBASE + 2*14336*KB
L_X = 0
L_RED = 80*KB
L_M1 = 140*KB
L_M2 = 148*KB
L_R = 156*KB
LDS2 = 157*KB
XFS = 528
L1_XF = 0
L1_M1 = 44*KB
L1_R = 52*KB
LDS1 = 53*KB

class Asm:
    def __init__(s, kn): s.l = []; s.vm = []; s.lg = []; s.nst = 0; s.kn = kn; s.pre = kn + '_'
    def __call__(s, t):
        for x in [y for y in t.split('\n') if y.strip()]: s.l.append('    ' + x.strip() if not x.strip().endswith(':') else x.strip())
    def vmop(s, t, tag): s(t); s.vm.append(tag)
    def lgop(s, t, tag): s(t); s.lg.append(tag)
    def waitvm(s, tag=None):
        n = 0
        if tag is not None:
            if tag not in s.vm: return
            idx = max(i for i, t in enumerate(s.vm) if t == tag); n = len(s.vm) - 1 - idx
        n = min(n, 63); s(f's_waitcnt vmcnt({n})'); s.vm = s.vm[len(s.vm)-n:] if n else []
    def waitlg(s, tag=None):
        n = 0
        if tag is not None:
            if tag not in s.lg: return
            idx = max(i for i, t in enumerate(s.lg) if t == tag); n = len(s.lg) - 1 - idx
        n = min(n, 15); s(f's_waitcnt lgkmcnt({n})'); s.lg = s.lg[len(s.lg)-n:] if n else []
    def stamp(s, name):
        name = s.pre + name
        if OPT['stamps'] and re.search(OPT['stamps'], name):
            s(f's_memrealtime s[{64+2*s.nst}:{65+2*s.nst}]'); NAMES.append(f'; @stamp {s.kn} {s.nst} {name}'); s.nst += 1; assert s.nst <= 16, name
    def note(s, name, reg):
        name = s.pre + name
        if OPT['stamps'] and re.search(OPT['stamps'], name):
            s(f's_mov_b32 s{64+2*s.nst}, {reg}'); NAMES.append(f'; @stamp {s.kn} {s.nst} {name}'); s.nst += 1; assert s.nst <= 16, name
    def dump_stamps(s, wsreg):
        if OPT['stamps']:
            s('s_waitcnt lgkmcnt(0)')
            s(f's_lshl_b32 s40, s2, 9\ns_lshl_b32 s41, {wsreg}, 6\ns_add_u32 s40, s40, s41\ns_add_u32 s40, s40, {STAMP + s.stamp_off}\nv_mov_b32 v14, s40')
            for i in range(s.nst):
                s(f'v_mov_b32 v15, s{64+2*i}\nbuffer_store_dword v15, v14, s[8:11], 0 offen offset:{4*i}')
    def dump_dbg(s):
        if OPT['dbg'] and s.kn == 'k2':
            s(f"""s_cmp_lg_u32 s2, 37
            s_cbranch_scc1 k2_nodbg
            s_cmp_lg_u32 s18, 0
            s_cbranch_scc1 k2_nodbg
            s_load_dwordx2 s[40:41], s[0:1], 72
            s_mov_b32 s44, s64
            s_mov_b32 s42, 256
            s_mov_b32 s43, 0x20000
            v_mov_b32 v14, 0
            s_waitcnt lgkmcnt(0)""")
            for i in range(1, s.nst):
                s(f's_sub_u32 s45, s{64+2*i}, s44\nv_mov_b32 v15, s45\nbuffer_store_dword v15, v14, s[40:43], 0 offen offset:{4*i}')
            s('k2_nodbg:')
    def text(s): return '\n'.join(s.l) + '\n'
vr = lambda a, n=4: f'v[{a}:{a+n-1}]'
ar = lambda a, n=4: f'a[{a}:{a+n-1}]'

def head(name): return f".globl {name}\n.p2align 8\n.type {name},@function\n{name}:\n"
def desc(name, nfv, acc):
    return f""".amdhsa_kernel {name}
  .amdhsa_next_free_vgpr {nfv}
  .amdhsa_next_free_sgpr 100
  .amdhsa_accum_offset {acc}
  .amdhsa_group_segment_fixed_size 0
  .amdhsa_kernarg_size 88
  .amdhsa_user_sgpr_count 2
  .amdhsa_user_sgpr_kernarg_segment_ptr 1
  .amdhsa_system_sgpr_workgroup_id_x 1
.end_amdhsa_kernel
"""
def ids(E):
    E("""s_and_b32 s16, s2, 7
    s_lshr_b32 s23, s2, 6
    s_lshl_b32 s23, s23, 3
    s_or_b32 s16, s16, s23
    s_lshr_b32 s17, s2, 3
    s_and_b32 s17, s17, 7
    s_lshr_b32 s19, s17, 2
    s_sub_u32 s20, 64, s16
    s_cmp_eq_u32 s16, 0
    s_cselect_b32 s20, 32, s20
    s_cmp_eq_u32 s19, 0
    s_cselect_b32 s20, s16, s20
    s_and_b32 s23, s17, 3
    s_mul_i32 s21, s23, 5
    s_add_u32 s21, s21, 1
    s_lshr_b32 s21, s21, 1
    s_and_b32 s23, s23, 1
    s_sub_u32 s22, 3, s23""")

def gen_G(E, sE, hook=None, step=None, part=None):
    A, B, K2, F, PH = 176, 192, 208, 210, 211
    k0, k1 = part or (0, 20)
    sl = E.l
    if k0: E.l = []
    E(f"""s_lshl_b32 s23, {sE}, 5
    s_add_u32 s23, s23, 1
    v_and_b32 v{F}, 31, v0
    v_add_u32 v{F}, s23, v{F}
    v_cvt_f32_u32 v{F}, v{F}
    v_mul_f32 v{F}, {f2h(1/640)}, v{F}
    v_lshrrev_b32 v{PH}, 5, v0
    v_lshlrev_b32 v{PH}, 3, v{PH}
    v_add_u32 v{PH}, 1, v{PH}
    v_cvt_f32_u32 v{PH}, v{PH}
    v_mul_f32 v{PH}, v{PH}, v{F}
    v_mul_f32 v{PH+1}, {f2h(16.0)}, v{F}
    v_cos_f32 v{K2}, v{PH+1}
    v_add_f32 v{PH+2}, v{PH}, v{PH+1}
    v_add_f32 v{K2}, v{K2}, v{K2}""")
    for s in range(8):
        E(f"""v_cos_f32 v{A+2*s}, v{PH}
        v_sin_f32 v{A+2*s+1}, v{PH}
        v_cos_f32 v{B+2*s}, v{PH+2}
        v_sin_f32 v{B+2*s+1}, v{PH+2}""")
        if s < 7: E(f"v_add_f32 v{PH}, v{PH}, v{F}\nv_add_f32 v{PH+2}, v{PH+2}, v{F}")
    E(f"v_mov_b32 v{K2+1}, v{K2}")
    def pack(k, S):
        for u in range(4):
            E(f"v_cvt_pk_bf16_f32 v{16+8*k+u}, v{S+4*u}, v{S+4*u+2}\nv_cvt_pk_bf16_f32 v{20+8*k+u}, v{S+4*u+1}, v{S+4*u+3}")
    pack(0, A); pack(1, B)
    E.l = sl
    for k in range(2, 20):
        if not (k0 <= k < k1):
            A, B = B, A; continue
        if hook and k == max(OPT['gh'], 2): hook()
        if step: step(k)
        for s in range(8):
            E(f"v_pk_fma_f32 v[{A+2*s}:{A+2*s+1}], v[{B+2*s}:{B+2*s+1}], v[{K2}:{K2+1}], v[{A+2*s}:{A+2*s+1}] neg_lo:[0,0,1] neg_hi:[0,0,1]")
        pack(k, A); A, B = B, A

def gen_M1(E, sw, lbase, t0):
    E(f"""v_and_b32 v{t0+1}, 15, v0
    v_bfe_u32 v{t0}, v0, 4, 1
    s_lshr_b32 s23, {sw}, 1
    v_add_u32 v{t0}, s23, v{t0}
    v_lshlrev_b32 v{t0}, 3, v{t0}
    v_lshrrev_b32 v{t0+2}, 5, v0
    v_lshlrev_b32 v{t0+2}, 2, v{t0+2}
    s_and_b32 s23, {sw}, 1
    s_lshl_b32 s23, s23, 4
    v_add_u32 v{t0+2}, s23, v{t0+2}
    s_lshl_b32 s23, {sw}, 10
    s_add_u32 s23, s23, {lbase}
    v_lshl_add_u32 v{t0+3}, v0, 4, s23""")
    for mt in range(2):
        E(f"""v_mad_u32_u24 v{t0+4}, v{t0+2}, v{t0+1}, v{t0}
        v_cvt_f32_u32 v{t0+5}, v{t0+1}
        v_cvt_f32_u32 v{t0+4}, v{t0+4}
        v_mul_f32 v{t0+5}, {f2h(1/32)}, v{t0+5}
        v_mul_f32 v{t0+4}, {f2h(1/32)}, v{t0+4}""")
        for s in range(1, 8): E(f"v_fmamk_f32 v{t0+8+s}, v{t0+5}, {f2h(float(8*(s>>2)+(s&3)))}, v{t0+4}")
        for s in range(8): E(f"v_cos_f32 v{t0+8+s}, v{t0+8+s if s else t0+4}")
        E("s_nop 0")
        for u in range(4): E(f"v_cvt_pk_bf16_f32 v{t0+8+u}, v{t0+8+2*u}, v{t0+9+2*u}")
        E(f"ds_write_b128 v{t0+3}, {vr(t0+8)} offset:{mt*4096}")
        if mt == 0: E(f"v_add_u32 v{t0+1}, 16, v{t0+1}\ns_nop 0")

def dft_unit(E, lx, ps, lm1, vR, sT, stf, mid=None, chunk=None):
    AC, AS, AB, R, Z = 176, 192, 208, 224, 240
    E(f"""v_and_b32 v14, 31, v0
    v_lshlrev_b32 v14, 4, v14
    v_lshrrev_b32 v15, 5, v0
    v_mul_u32_u24 v13, {ps}, v15
    v_add_u32 v14, v14, v13""")
    def rd(k):
        b = AB + 8*(k & 1)
        E.lgop(f"ds_read_b128 {vr(b)}, v14 offset:{lx + 2*k*ps}", ('A', k))
        E.lgop(f"ds_read_b128 {vr(b+4)}, v14 offset:{lx + (40+2*k)*ps}", ('A', k))
    if chunk: chunk(0)
    rd(0); rd(1)
    E(f"""v_mov_b32 v{Z}, 0
    v_mov_b32 v{Z+1}, 0
    v_mov_b32 v{Z+2}, 0
    v_mul_u32_u24 v{Z+3}, 0x3f8000, v15
    v_lshlrev_b32 v{Z+3}, 8, v{Z+3}""")
    for k in range(20):
        b = AB + 8*(k & 1)
        E.waitlg(('A', k))
        c0 = '0' if k == 0 else vr(AC, 16); c1 = '0' if k == 0 else vr(AS, 16)
        E(f"v_mfma_f32_32x32x16_bf16 {vr(AC,16)}, {vr(b)}, {vr(16+8*k)}, {c0}")
        E(f"v_mfma_f32_32x32x16_bf16 {vr(AS,16)}, {vr(b+4)}, {vr(20+8*k)}, {c1}")
        if k == 19: E(f"v_mfma_f32_32x32x16_bf16 {vr(AC,16)}, {vr(b+4)}, {vr(Z)}, {vr(AC,16)}")
        if chunk and k + 2 < 20 and (k+2) % 4 == 0: chunk((k+2)//4)
        if k + 2 < 20: rd(k+2)
        if k == 17:
            for g4 in range(4): E.lgop(f"ds_read_b128 {vr(R+4*g4)}, {vR} offset:{32*g4}", 'R')
    m1reg = lambda i: (160 + 4*i) if i < 4 else (208 + 4*(i-4))
    E(f"v_lshlrev_b32 v13, 4, v0\nv_add_u32 v13, {lm1}, v13")
    for i in range(4): E.lgop(f"ds_read_b128 {vr(m1reg(i))}, v13 offset:{1024*i}", 'M1')
    if mid: mid()
    E("s_nop 7")
    for i in range(4, 8): E.lgop(f"ds_read_b128 {vr(m1reg(i))}, v13 offset:{1024*i}", 'M1')
    E.waitlg('R')
    for p in range(8): E(f"v_pk_mul_f32 {vr(AS+2*p,2)}, {vr(AS+2*p,2)}, {vr(R+2*p,2)}")
    for p in range(8): E(f"v_cvt_pk_bf16_f32 v{Z+8+p}, v{AS+2*p}, v{AS+2*p+1}")
    for p in range(8): E(f"v_pk_mul_f32 {vr(AC+2*p,2)}, {vr(AC+2*p,2)}, {vr(R+2*p,2)}")
    for p in range(8): E(f"v_cvt_pk_bf16_f32 v{Z+p}, v{AC+2*p}, v{AC+2*p+1}")
    E.waitlg()
    E(f"""v_and_b32 v14, 15, v0
    v_mul_u32_u24 v14, 81920, v14
    v_bfe_u32 v13, v0, 4, 1
    v_lshl_add_u32 v14, v13, 5, v14
    v_lshl_add_u32 v14, v15, 4, v14""")
    for mt in range(2):
        D = AS if mt == 0 else AC
        for ks in range(4):
            E(f"v_mfma_f32_32x32x16_bf16 {vr(D,16)}, {vr(Z+4*ks)}, {vr(m1reg(4*mt+ks))}, {'0' if ks == 0 else vr(D,16)}")
    E(f"s_add_u32 s23, {sT}, {16*81920}"); E.stamp('yt')
    for mt in range(2):
        D = AS if mt == 0 else AC
        E("s_nop 6" if mt == 0 else "s_nop 0")
        for r in range(8): E(f"v_permlane16_swap_b32 v{D+r}, v{D+8+r}")
        for r in range(8):
            E(f"v_cvt_pk_bf16_f32 v{R+8*mt+r}, v{D+r}, v{D+8+r}")
            if r & 3 == 3: E.vmop(f"buffer_store_dwordx4 {vr(R+8*mt+r-3)}, v14, s[8:11], {sT if mt == 0 else 's23'} offen offset:{16*(r-3)} {stf}", 'Tst')

def w2job_loads(E):
    E(f"""s_mul_i32 s33, s57, 43
    s_lshr_b32 s33, s33, 8
    s_mul_i32 s32, s33, 6
    s_sub_u32 s32, s57, s32
    s_mul_i32 s33, s33, 12
    s_mul_i32 s34, s32, 3
    s_add_u32 s34, s34, s33
    s_mul_i32 s35, s32, 6
    s_add_u32 s35, s35, s33
    s_sub_u32 s35, s35, 22
    v_lshrrev_b32 v4, 1, v2
    v_mul_u32_u24 v4, 3, v4
    v_add_u32 v4, s35, v4
    v_and_b32 v5, 1, v2
    s_and_b32 s36, s34, 3
    s_cmp_eq_u32 s36, 3
    s_cselect_b32 s36, 61, 1
    s_cmp_ge_u32 s32, 4
    s_cselect_b32 s36, 32, s36
    s_cselect_b64 vcc, -1, 0
    v_mov_b32 v7, s34
    v_cndmask_b32 v4, v7, v4, vcc
    v_cndmask_b32 v5, v2, v5, vcc
    v_lshrrev_b32 v7, 2, v4
    v_and_b32 v4, 3, v4
    v_lshl_add_u32 v4, v7, 6, v4
    v_lshl_add_u32 v4, v5, 4, v4
    v_mul_u32_u24 v4, 1280, v4
    s_mul_i32 s36, s36, 1280
    s_mul_i32 s33, s58, 80
    s_add_u32 s34, s33, 2
    v_lshl_add_u32 v5, v1, 2, s34
    v_add_u32 v5, v5, v4
    s_sub_u32 s34, 1276, s33
    v_lshlrev_b32 v7, 2, v1
    v_sub_u32 v7, s34, v7
    v_add_u32 v7, v7, v4
    v_lshrrev_b32 v9, 2, v1
    v_and_b32 v13, 1, v1
    v_lshl_add_u32 v9, v9, 1, v13
    s_mul_i32 s33, s58, 40
    s_add_u32 s33, s33, 32
    v_add_u32 v9, s33, v9
    v_add_u32 v13, 1, v9
    v_cmp_eq_u32 vcc, 319, v9
    v_sub_u32 v9, 639, v9
    v_and_b32 v14, 2, v1
    v_cndmask_b32 v9, v9, 0, vcc
    v_cmp_eq_u32 vcc, 0, v14
    s_nop 1
    v_cndmask_b32 v9, v9, v13, vcc
    v_lshl_add_u32 v9, v9, 1, v4""")
    for s in range(8):
        E(f"""s_mul_i32 s37, s36, {s>>2}
            s_add_u32 s37, s37, {(s&3)*4*1280}
            buffer_load_dword a{s}, v5, s[48:51], s37 offen{NT(2)}
            buffer_load_dword a{8+s}, v7, s[48:51], s37 offen{NT(2)}
            buffer_load_ushort a{16+s}, v9, s[48:51], s37 offen{NT(2)}""")

def tpoison(E, L, P=248):
    l = f'k2_tp{L}'
    E(f"""s_cmp_ge_u32 s18, s22
    s_cbranch_scc1 {l}
    s_mul_i32 s40, s21, 8192
    s_lshl_b32 s41, s20, 7
    s_add_u32 s40, s40, s41
    s_add_u32 s40, s40, {LBASE + L*TSTR + TT}
    s_add_u32 s41, s40, {8*81920}
    s_add_u32 s42, s40, {16*81920}
    s_add_u32 s43, s40, {24*81920}
    v_lshrrev_b32 v14, 3, v0
    v_mul_u32_u24 v14, 81920, v14
    v_and_b32 v15, 7, v0
    v_lshl_add_u32 v14, v15, 4, v14""")
    for u in range(4): E(f"v_mov_b32 v{P+u}, -1")
    for i in range(4): E(f"buffer_store_dwordx4 {vr(P)}, v14, s[8:11], s{40+i} offen sc1")
    E(f"s_nop 1\n{l}:")

SPIN = 60000
KN = "interleave_layers__spectral_fnet__dense_activation_relu__prompt_kernel"
def kern():
    DS = 'sc1' if OPT['dsc'] else ''
    OOL = []
    E = Asm('k2'); E.stamp_off = 0
    uid = [0]
    def lab(p): uid[0] += 1; return f"k2_{p}{uid[0]}"
    NS = OPT['ns']; NW2 = OPT['nw2a']; KS = OPT['ks']; assert KS - NW2 <= 7
    E("""s_cmp_ge_u32 s2, 256
    s_cbranch_scc1 k2_done""")
    E.stamp('start')
    if OPT['pf']:
        E(f"""s_getpc_b64 s[40:41]
        k2_pc:
        s_sub_u32 s40, s40, k2_pc-{KN}
        s_subb_u32 s41, s41, 0
        s_mov_b32 s42, k2_end-{KN}
        s_mov_b32 s43, 0x20000
        s_lshr_b32 s23, s2, 3
        s_lshl_b32 s23, s23, 10
        v_lshl_add_u32 v14, v0, 2, s23
        v_add_u32 v15, 0x8000, v14
        buffer_load_dword v12, v14, s[40:43], 0 offen
        buffer_load_dword v12, v15, s[40:43], 0 offen""")
    E(f"""s_load_dwordx2 s[4:5], s[0:1], 0
    s_load_dwordx4 s[60:63], s[0:1], 48
    s_load_dwordx2 s[12:13], s[0:1], 64
    s_load_dwordx2 s[52:53], s[0:1], 72
    s_load_dwordx2 s[8:9], s[0:1], 80
    s_memrealtime s[46:47]
    v_lshrrev_b32 v1, 6, v0
    s_mov_b32 s6, {2048*1280}
    s_mov_b32 s7, 0x20000
    v_readfirstlane_b32 s18, v1
    s_mov_b32 s10, {WS_BYTES - OPT['wso']*KB*KB}
    s_mov_b32 s11, 0x20000
    s_mov_b32 s14, {2048*1280}
    s_mov_b32 s15, 0x20000
    s_mov_b32 s54, 256
    s_mov_b32 s55, 0x20000""")
    ids(E)
    E(f"""v_lshrrev_b32 v1, 3, v0
    v_and_b32 v2, 7, v0
    v_lshlrev_b32 v3, 6, v1
    v_add_u32 v3, s20, v3
    v_mul_u32_u24 v3, 1280, v3
    v_lshl_add_u32 v4, v2, 4, v3
    v_add_u32 v4, 2, v4
    v_lshlrev_b32 v5, 4, v2
    v_sub_u32 v5, v3, v5
    v_add_u32 v5, {1264-512}, v5
    v_mov_b32 v10, 0
    s_waitcnt lgkmcnt(0)""")
    if OPT['wso']: E(f"s_add_u32 s8, s8, {OPT['wso']*KB*KB}\ns_addc_u32 s9, s9, 0")
    LD = 216
    for k in range(5):
        E.vmop(f"buffer_load_dwordx4 {vr(LD+8*k)}, v4, s[4:7], 0 offen offset:{128*k}", ('x', k))
        E.vmop(f"buffer_load_dwordx4 {vr(LD+8*k+4)}, v5, s[4:7], 0 offen offset:{128*(4-k)}", ('x', k))
    E.vmop("buffer_load_ushort v12, v3, s[4:7], 0 offen", ('x', 4))
    E.stamp('xiss')
    if OPT['stamps']: E("s_mov_b32 s97, 0")
    E(f"""s_lshl_b32 s56, s2, 2
    s_add_u32 s56, s56, s18
    s_cmp_lg_u32 s56, 0
    s_cbranch_scc1 k2_non
    s_or_b32 s46, s46, 1
    v_mov_b32 v11, s46
    s_mov_b64 exec, 1
    buffer_store_dword v11, v10, s[52:55], 0 offen sc1
    s_mov_b64 exec, -1
    k2_non:
    v_mul_u32_u24 v6, {XFS}, v2
    v_lshl_add_u32 v6, v1, 4, v6
    v_cmp_eq_u32 s[30:31], 7, v2
    v_lshlrev_b32 v8, 2, v1
    v_and_b32 v0, 63, v0
    s_add_u32 s21, s21, s18
    v_and_b32 v1, 15, v0
    v_lshrrev_b32 v2, 4, v0
    v_lshlrev_b32 v3, 4, v0
    s_mov_b32 s51, 0x20000
    s_lshr_b32 s59, s2, 5
    s_and_b32 s56, s2, 31
    s_lshl_b32 s57, s56, 1
    s_add_u32 s57, s57, s18
    s_min_u32 s57, s57, 60
    s_lshr_b32 s23, s56, 4
    s_lshl_b32 s23, s23, 3
    s_and_b32 s38, s56, 7
    s_add_u32 s23, s23, s38
    s_add_u32 s23, s23, 32
    s_cmp_eq_u32 s18, 3
    s_cselect_b32 s56, s56, s23
    s_add_u32 s56, s56, 61
    s_cmp_lt_u32 s18, s22
    s_cselect_b32 s56, 60, s56
    s_cmp_lt_u32 s18, 2
    s_cselect_b32 s56, s57, s56""")
    PKC, PKG = OPT['pk'] & 1, OPT['pk'] & 2
    IDO = 128 if PKC else 16
    E("s_lshl_b32 s23, s18, 2")
    if PKC: E("s_lshl_b32 s45, s16, 8\ns_lshl_b32 s38, s17, 4\ns_add_u32 s45, s45, s38\ns_add_u32 s45, s45, s23")
    else: E("s_lshl_b32 s45, s2, 7\ns_add_u32 s45, s45, s23")
    if PKG: E(f"""s_and_b32 s98, s17, 3
    s_lshl_b32 s98, s98, 3
    s_lshr_b32 s38, s20, 3
    s_add_u32 s98, s98, s38
    s_mul_i32 s98, s98, {FST}
    s_and_b32 s38, s20, 7
    s_lshl_b32 s38, s38, 4
    s_add_u32 s98, s98, s38
    s_add_u32 s98, s98, s23
    s_add_u32 s98, s98, {FLAGT}
    s_mul_i32 s38, s59, {FST - 27*4}
    s_lshl_b32 s23, s2, 2
    s_add_u32 s38, s38, s23
    s_add_u32 s38, s38, {FLAGP}
    s_cmp_eq_u32 s18, 3
    s_cselect_b32 s98, s38, s98""")
    else: E(f"s_lshl_b32 s98, s2, 7\ns_add_u32 s98, s98, s23\ns_add_u32 s98, s98, {FLAGG}")
    E(f"""s_mov_b64 exec, 1
    buffer_store_dword v10, v10, s[8:11], s45 offen offset:{FLAGC}
    s_mov_b64 exec, 3
    v_lshlrev_b32 v13, 4, v0
    buffer_store_dword v10, v13, s[8:11], s98 offen sc1
    s_mov_b64 exec, -1
    buffer_load_dword v11, v10, s[52:55], 0 offen sc1""")
    assert REP == 1 and not PKG
    E(f"""s_mov_b32 s48, s60
    s_mov_b32 s49, s61
    s_mov_b32 s50, {640*3072}
    s_mul_i32 s57, s56, 171
    s_lshr_b32 s57, s57, 9
    s_sub_u32 s58, s59, s57
    s_mul_i32 s58, s58, 3
    s_add_u32 s58, s58, s56
    s_cmp_ge_u32 s57, 10
    s_cselect_b32 s33, 10, 0
    s_sub_u32 s33, s57, s33
    s_lshl_b32 s33, s33, 5
    v_lshl_add_u32 v4, v2, 3, s33
    v_add_u32 v5, 1, v4
    v_sub_u32 v7, 632, v4
    s_cmp_ge_u32 s57, 10
    s_cselect_b64 s[34:35], -1, 0
    s_cselect_b32 s36, 7, 0
    v_cndmask_b32 v5, v5, v7, s[34:35]
    v_mul_u32_u24 v5, 3072, v5
    s_lshl_b32 s33, s58, 7
    v_lshl_add_u32 v7, v1, 3, s33
    v_add_u32 v5, v5, v7
    v_cmp_eq_u32 vcc, 312, v4
    s_and_b64 vcc, vcc, s[34:35]
    s_nop 1
    v_cndmask_b32 v7, v5, v7, vcc""")
    E("k2_pk2:"); E.stamp('piss')
    def hook():
        if OPT['daf'] & 4: tpoison(E, 0, 212)
        E("s_cmp_ge_u32 s56, 60\ns_cbranch_scc1 k2_nw1")
        for s in range(8):
            E(f"s_xor_b32 s37, s36, {s}\ns_mul_i32 s37, s37, 3072\nbuffer_load_dwordx2 {ar(2*s,2)}, {'v7' if s == 7 else 'v5'}, s[48:51], s37 offen{NT(2)}")
        E("k2_nw1:")
    E("s_cmp_ge_u32 s18, s22\ns_cbranch_scc1 k2_nog")
    gen_G(E, 's21', hook)
    TP = 4 if OPT['daf'] & 4 else 0
    E(f"s_cmp_ge_u32 s56, 60\ns_cbranch_scc1 k2_xw0\ns_waitcnt vmcnt({8+TP})\ns_branch k2_xw\nk2_xw0:\ns_waitcnt vmcnt({TP})\ns_branch k2_xw")
    E("k2_nog:\ns_cmp_lg_u32 s18, 3\ns_cbranch_scc1 k2_nw3")
    E("s_mov_b32 s38, 0\nk2_m1l:")
    gen_M1(E, 's38', L_M1, 176)
    E("s_add_u32 s38, s38, 1\ns_cmp_lt_u32 s38, 4\ns_cbranch_scc1 k2_m1l\nk2_nw3:")
    E(f"""s_mov_b32 s48, s62
    s_mov_b32 s49, s63
    s_mov_b32 s50, {1536*1280}
    s_sub_u32 s57, s56, 61
    s_mov_b32 s58, s59""")
    w2job_loads(E)
    E("s_waitcnt vmcnt(24)\nk2_xw:"); E.stamp('gen')
    E(f"""
    v_readfirstlane_b32 s46, v11
    s_mov_b32 s32, 0x05040100
    s_mov_b32 s33, 0x07060302
    s_cmp_eq_u32 s46, 0
    s_cbranch_scc1 k2_nonw
    k2_nonb:""")
    E.vm = []
    OOL.append(f"""k2_nonw:
    s_mov_b32 s38, 0
    k2_nonl:
    buffer_load_dword v11, v10, s[52:55], 0 offen sc1
    s_add_u32 s38, s38, 1
    s_cmp_gt_u32 s38, {SPIN}
    s_cbranch_scc1 k2_nonb
    s_waitcnt vmcnt(0)
    v_readfirstlane_b32 s46, v11
    s_nop 0
    s_cmp_eq_u32 s46, 0
    s_cbranch_scc1 k2_nonl
    s_branch k2_nonb""")
    E.stamp('x0')
    E("s_cmp_ge_u32 s56, 60\ns_cbranch_scc1 k2_pkd\ns_waitcnt vmcnt(0)")
    A0, P0 = 176, 200
    for i in range(16): E(f"v_accvgpr_read_b32 v{A0+i}, a{i}")
    for u in range(4):
        for v in range(4): E(f"v_perm_b32 v{P0+4*u+v}, v{A0+4*v+2+(u>>1)}, v{A0+4*v+(u>>1)}, s{32+(u&1)}")
        E(f"""s_lshl_b32 s34, s58, 2
        s_add_u32 s34, s34, {u}
        s_mul_i32 s35, s34, 171
        s_lshr_b32 s35, s35, 9
        s_mul_i32 s36, s35, 57
        s_add_u32 s36, s36, s34
        s_mul_i32 s37, s57, 3
        s_add_u32 s36, s36, s37
        s_lshl_b32 s36, s36, 10
        s_add_u32 s36, s36, {W1P}
        buffer_store_dwordx4 {vr(P0+4*u)}, v3, s[8:11], s36 offen sc1""")
    E("s_nop 1\nk2_pkd:"); E.stamp('pkst')
    LO, HI, EE, OO, SM, SQ = 180, 188, 196, 204, 212, 214
    E(f"v_mov_b32 v{SM}, 0\nv_mov_b32 v{SM+1}, 0\nv_mov_b32 v{SQ}, 0\nv_mov_b32 v{SQ+1}, 0")
    for k in range(5):
        lo, hi = LD+8*k, LD+8*k+4
        for u in range(4):
            E(f"""v_lshlrev_b32 v{LO+2*u}, 16, v{lo+u}
            v_and_b32 v{LO+2*u+1}, 0xffff0000, v{lo+u}
            v_and_b32 v{HI+2*u}, 0xffff0000, v{hi+3-u}
            v_lshlrev_b32 v{HI+2*u+1}, 16, v{hi+3-u}""")
        if k == 4:
            E(f"v_lshlrev_b32 v12, 16, v12\nv_cndmask_b32 v{HI+7}, v{HI+7}, v12, s[30:31]")
        for u in range(4):
            E(f"""v_pk_add_f32 {vr(EE+2*u,2)}, {vr(LO+2*u,2)}, {vr(HI+2*u,2)}
            v_pk_add_f32 {vr(OO+2*u,2)}, {vr(LO+2*u,2)}, {vr(HI+2*u,2)} neg_lo:[0,1] neg_hi:[0,1]
            v_pk_fma_f32 {vr(SQ,2)}, {vr(LO+2*u,2)}, {vr(LO+2*u,2)}, {vr(SQ,2)}
            v_pk_add_f32 {vr(SM,2)}, {vr(SM,2)}, {vr(EE+2*u,2)}
            v_pk_fma_f32 {vr(SQ,2)}, {vr(HI+2*u,2)}, {vr(HI+2*u,2)}, {vr(SQ,2)}""")
        if k == 4:
            E(f"v_cndmask_b32 v{EE+7}, v{EE+7}, v{LO+7}, s[30:31]\nv_cndmask_b32 v{OO+7}, v{OO+7}, v{HI+7}, s[30:31]")
        for u in range(4): E(f"v_cvt_pk_bf16_f32 v{EE+u}, v{EE+2*u}, v{EE+2*u+1}")
        for u in range(4): E(f"v_cvt_pk_bf16_f32 v{OO+u}, v{OO+2*u}, v{OO+2*u+1}")
        E(f"ds_write_b128 v6, {vr(EE)} offset:{L_X + 8*k*XFS}\nds_write_b128 v6, {vr(OO)} offset:{L_X + (40+8*k)*XFS}")
    E(f"""v_add_f32 v{SM}, v{SM}, v{SM+1}
    v_add_f32 v{SQ}, v{SQ}, v{SQ+1}
    v_add_u32 v8, {L_R}, v8
    s_nop 0""")
    for d in ["quad_perm:[1,0,3,2]", "quad_perm:[2,3,0,1]", "row_half_mirror"]:
        E(f"""v_add_f32_dpp v{SM}, v{SM}, v{SM} {d} row_mask:0xf bank_mask:0xf
        v_add_f32_dpp v{SQ}, v{SQ}, v{SQ} {d} row_mask:0xf bank_mask:0xf
        s_nop 1""")
    E(f"""v_mul_f32 v{SM}, {f2h(1/640)}, v{SM}
    v_mul_f32 v{SQ}, {f2h(1/640)}, v{SQ}
    v_fma_f32 v{SQ}, -v{SM}, v{SM}, v{SQ}
    v_max_f32 v{SQ}, 0, v{SQ}
    v_add_f32 v{SQ}, {f2h(1e-5)}, v{SQ}
    v_rsq_f32 v{SQ}, v{SQ}
    v_lshrrev_b32 v9, 5, v0
    ds_write_b32 v8, v{SQ}
    v_lshlrev_b32 v9, 4, v9
    v_add_u32 v9, {L_R}, v9""")
    E.stamp('ln')
    E(f"""s_cmp_ge_u32 s18, 2
    s_cbranch_scc1 k2_nf1
    s_add_u32 s23, s46, 1
    v_mov_b32 v15, s23
    s_waitcnt vmcnt(0)
    s_mov_b64 exec, 1
    buffer_store_dword v15, off, s[8:11], s98 offset:16 sc1
    s_mov_b64 exec, -1
    k2_nf1:""")
    E("s_waitcnt lgkmcnt(0)\ns_barrier")
    E.stamp('bar')

    def w2finish():
        E("s_waitcnt vmcnt(0)")
        E(f"""s_mul_i32 s34, s58, 48
    s_add_u32 s34, s34, s57
    s_mul_i32 s34, s34, 5120
    s_add_u32 s34, s34, {W2P}
    s_add_u32 s35, s34, 4096""")
        for i in range(24): E(f"v_accvgpr_read_b32 v{A0+i}, a{i}")
        for t in range(4):
            for v in range(4): E(f"v_perm_b32 v{P0+4*t+v}, v{A0+8*(t>>1)+2*v+1}, v{A0+8*(t>>1)+2*v}, s{32+((t&1)^(t>>1))}")
            E(f"buffer_store_dwordx4 {vr(P0+4*t)}, v3, s[8:11], s34 offen offset:{1024*t} sc1")
        for v in range(4): E(f"v_perm_b32 v{A0+v}, v{A0+16+2*v+1}, v{A0+16+2*v}, s32")
        E(f"buffer_store_dwordx4 {vr(A0)}, v3, s[8:11], s35 offen sc1")
        E("s_nop 0")
    def setup():
        E(f"""s_mul_i32 s24, s16, 81920
        s_and_b32 s25, s20, 31
        s_mul_i32 s25, s25, 10
        s_add_u32 s25, s25, s21
        s_lshl_b32 s25, s25, 13
        s_getreg_b32 s26, hwreg(HW_REG_XCC_ID)
        s_and_b32 s26, s26, 15
        s_add_u32 s26, s26, 16
        s_add_u32 s26, s26, s46
        s_mul_i32 s28, s16, 196608
        s_mul_i32 s29, s17, 5
        s_lshr_b32 s29, s29, 1
        s_mul_i32 s30, s17, 3
        s_lshr_b32 s30, s30, 1
        s_lshl_b32 s39, s17, 2
        s_add_u32 s39, s39, s18
        s_mul_i32 s44, s39, {60*KB}
        s_add_u32 s39, s44, {W1P}
        s_add_u32 s44, s44, {W2P}
        v_lshlrev_b32 v1, 4, v0
        v_and_b32 v14, 31, v0
        v_lshrrev_b32 v15, 5, v0
        v_and_b32 v2, 3, v14
        v_bfe_u32 v3, v14, 2, 1
        v_lshl_add_u32 v2, v3, 4, v2
        v_bfe_u32 v3, v14, 3, 2
        v_lshl_add_u32 v2, v3, 2, v2
        v_lshlrev_b32 v2, 2, v2
        v_lshl_add_u32 v2, v15, 9, v2
        s_lshl_b32 s23, s19, 5
        v_add_u32 v5, s23, v14
        v_sub_u32 v6, 63, v5
        v_sub_u32 v7, 32, v14
        v_and_b32 v7, 31, v7
        v_sub_u32 v8, 95, v5
        s_cmp_eq_u32 s19, 0
        s_cselect_b64 s[36:37], -1, 0
        v_cndmask_b32 v7, v8, v7, s[36:37]
        s_cmp_eq_u32 s16, 0
        s_cselect_b64 s[36:37], -1, 0
        v_cndmask_b32 v6, v6, v7, s[36:37]
        v_lshrrev_b32 v3, 4, v5
        v_lshlrev_b32 v3, 10, v3
        v_and_b32 v7, 15, v5
        v_lshl_add_u32 v3, v7, 4, v3
        v_lshl_add_u32 v3, v15, 8, v3
        v_lshrrev_b32 v4, 4, v6
        v_lshlrev_b32 v4, 10, v4
        v_and_b32 v7, 15, v6
        v_lshl_add_u32 v4, v7, 4, v4
        v_lshl_add_u32 v4, v15, 8, v4
        v_mov_b32 v9, v6
        v_add_u32 v6, 640, v6
        v_cmp_eq_u32 vcc, 0, v15
        s_and_b32 s23, s2, 0xc7
        v_and_b32 v12, 7, v0
        v_cndmask_b32 v5, v6, v5, vcc
        v_lshlrev_b32 v5, 3, v5
        """)
        if PKC: E("s_lshl_b32 s23, s16, 8\nv_lshl_add_u32 v12, v12, 4, s23")
        else: E("v_lshl_add_u32 v12, v12, 3, s23\nv_lshlrev_b32 v12, 7, v12")
        if PKG: E(f"""s_and_b32 s23, s17, 3
        s_mul_i32 s23, s23, {8*FST}
        s_add_u32 s23, s23, {FLAGT}
        v_lshrrev_b32 v7, 3, v0
        v_mul_u32_u24 v7, {FST}, v7
        v_and_b32 v13, 7, v0
        v_lshl_add_u32 v13, v13, 4, s23
        v_add_u32 v13, v13, v7""")
        else: E(f"""v_and_b32 v13, 7, v14
        v_lshrrev_b32 v7, 3, v14
        v_lshl_add_u32 v13, v7, 6, v13
        v_lshl_add_u32 v13, v15, 5, v13
        s_and_b32 s23, s17, 3
        s_lshl_b32 s23, s23, 3
        v_add_u32 v13, s23, v13
        v_lshlrev_b32 v13, 7, v13
        s_and_b32 s23, s16, {REP-1}
        s_mul_i32 s23, s23, {RST}
        s_add_u32 s23, s23, {FLAGG}
        v_add_u32 v13, s23, v13""")
        E(f"""
        v_lshrrev_b32 v7, 4, v0
        v_and_b32 v8, 15, v0
        v_and_b32 v6, 1, v7
        s_and_b32 s23, s18, 1
        s_lshl_b32 s23, s23, 1
        v_add_u32 v6, s23, v6
        v_lshlrev_b32 v6, 8, v6
        v_lshl_add_u32 v6, v8, 4, v6
        v_lshl_add_u32 v6, v15, 10, v6""")
    def gen_M2():
        E(f"""v_and_b32 v224, 31, v0
        v_lshlrev_b32 v224, 6, v224
        v_add_u32 v224, s20, v224
        s_lshl_b32 s23, s18, 4
        v_lshrrev_b32 v225, 5, v0
        v_lshl_add_u32 v225, v225, 2, s23
        v_mul_u32_u24 v225, v225, v224
        s_lshl_b32 s23, s18, 11
        s_add_u32 s23, s23, {L_M2}
        v_add_u32 v226, s23, v1""")
        for kk in range(2):
            for u in range(4):
                E(f"""v_and_b32 v227, 2047, v225
                v_cvt_f32_u32 v227, v227
                v_mul_f32 v227, {f2h(1/2048)}, v227
                v_cos_f32 v228, v227
                v_sin_f32 v229, v227
                v_add_u32 v225, v225, v224
                v_cvt_pk_bf16_f32 v{232+4*kk+u}, v228, v229""")
            if kk == 0: E("v_lshl_add_u32 v225, v224, 2, v225")
            E(f"ds_write_b128 v226, {vr(232+4*kk)} offset:{1024*kk}")
    def res_loads(L):
        l = lab('nor'); E(f"s_cmp_ge_u32 s18, s22\ns_cbranch_scc1 {l}")
        E("s_lshl_b32 s33, s21, 12\ns_add_u32 s33, s33, s24")
        if L == 0:
            E(f"""s_sub_u32 s23, 64, s16
            s_cmp_eq_u32 s16, 0
            s_cselect_b32 s23, 32, s23
            v_mov_b32 v7, s23
            v_mov_b32 v8, s16
            v_cmp_gt_u32 vcc, 32, v9
            v_and_b32 v9, 31, v9
            v_and_b32 v10, 31, v0
            v_cndmask_b32 v7, v7, v8, vcc
            v_lshl_add_u32 v9, v9, 6, v7
            v_mul_u32_u24 v9, 1280, v9
            v_lshl_add_u32 v10, v10, 6, s20
            v_mul_u32_u24 v10, 1280, v10
            v_lshrrev_b32 v7, 5, v0
            v_lshlrev_b32 v7, 4, v7
            s_lshl_b32 s23, s21, 6
            s_add_u32 s38, s23, 2
            v_add3_u32 v10, v10, v7, s38
            s_sub_u32 s38, 1232, s23
            v_sub_u32 v7, s38, v7
            v_add_u32 v7, v7, v9""")
            for rh in range(2): E.vmop(f"buffer_load_dwordx4 {vr(192+4*rh)}, v10, s[4:7], 0 offen offset:{32*rh}", 'res')
            for rh in range(2): E.vmop(f"buffer_load_dwordx4 {vr(200+4*rh)}, v7, s[4:7], 0 offen offset:{32*(1-rh)}", 'res')
            E.vmop("buffer_load_ushort v8, v9, s[4:7], 0 offen", 'res')
            if OPT['pr'] & 1:
                E(f"s_add_u32 s34, s33, {LBASE+XTMID}\ns_add_u32 s35, s34, 40960\ns_mul_i32 s23, s16, 10240\ns_lshl_b32 s38, s21, 9\ns_add_u32 s23, s23, s38\ns_add_u32 s23, s23, {LBASE+SS}")
                for rh in range(2): E.vmop(f"buffer_store_dwordx4 v[0:3], v3, s[8:11], s34 offen offset:{512*rh}", 'pr')
                for rh in range(2): E.vmop(f"buffer_store_dwordx4 v[0:3], v4, s[8:11], s35 offen offset:{512*rh}", 'pr')
                E.vmop("buffer_store_dwordx2 v[0:1], v5, s[8:11], s23 offen", 'pr')
        else:
            E(f"s_add_u32 s34, s33, {LBASE+LSTR+XTIN}\ns_add_u32 s35, s34, 40960")
            for rh in range(2): E.vmop(f"buffer_load_dwordx4 {vr(192+4*rh)}, v3, s[8:11], s34 offen offset:{512*rh} {DS}", 'res')
            for rh in range(2): E.vmop(f"buffer_load_dwordx4 {vr(200+4*rh)}, v4, s[8:11], s35 offen offset:{512*rh} {DS}", 'res')
        E(f"{l}:")
    def t_loads(L):
        E(f"s_add_u32 s31, s25, {LBASE+TT+L*TSTR}\ns_add_u32 s32, s31, 4096")
        for k in range(8):
            for u in range(4):
                E.vmop(f"buffer_load_dword v{160+4*k+u}, v2, s[8:11], s{31 if k < 4 else 32} offen offset:{(k%4)*1024+u*128} sc1", ('T', k))
    def w1_loads(p0, p1, tagp='W1'):
        for p in range(p0, p1):
            E(f"s_add_u32 s23, s29, {p}\ns_cmp_ge_u32 s23, 20\ns_cselect_b32 s38, 20, 0\ns_sub_u32 s23, s23, s38\ns_mul_i32 s23, s23, 3072\ns_add_u32 s23, s23, s39")
            for t in range(3):
                E.vmop(f"buffer_load_dwordx4 {vr(16+12*(p%12)+4*t)}, v1, s[8:11], s23 offen offset:{1024*t}", (tagp, p))
    def w2_loads(kk):
        E(f"s_add_u32 s23, s30, {kk}\ns_cmp_ge_u32 s23, 12\ns_cselect_b32 s38, 12, 0\ns_sub_u32 s23, s23, s38\ns_mul_i32 s23, s23, 5120\ns_add_u32 s23, s23, s44\ns_add_u32 s38, s23, 4096")
        for t in range(5):
            E.vmop(f"buffer_load_dwordx4 {ar(20*kk+4*t)}, v1, s[8:11], {'s23' if t < 4 else 's38'} offen offset:{1024*(t%4)}{NT(1)}", 'W2')
    def gflag(val, off=0):
        E(f"""s_add_u32 s23, s46, {val}
        v_mov_b32 v15, s23
        s_mov_b64 exec, 1
        buffer_store_dword v15, off, s[8:11], s98 offset:{off} sc1
        s_mov_b64 exec, -1""")
    def spin(loads, n, val, t=252, mask=False):
        l = lab('poll'); l2 = lab('pout')
        E(f"""s_mov_b32 s38, 0
        s_add_u32 s23, s46, {val}
        {l}:
        {loads}
        s_add_u32 s38, s38, 1
        s_cmp_gt_u32 s38, {SPIN}
        s_cbranch_scc1 {l2}
        s_waitcnt vmcnt(0)""")
        for i in range(n): E(f"v_subrev_u32 v{t+i}, s23, v{t+i}")
        if n == 2: E(f"v_max_u32 v{t}, v{t}, v{t+1}")
        if n > 2: E(f"v_max3_u32 v{t}, v{t}, v{t+1}, v{t+2}")
        if n == 4: E(f"v_max_u32 v{t}, v{t}, v{t+3}")
        if mask and OPT['xm']: E(f"v_cmp_lt_u32 vcc, 15, v{t}\ns_cbranch_vccz {l2}\ns_mov_b64 exec, vcc\ns_branch {l}\n{l2}:\ns_mov_b64 exec, -1")
        else: E(f"v_cmp_lt_u32 vcc, 15, v{t}\ns_cbranch_vccnz {l}\n{l2}:")
    poll = lambda val: spin(f"buffer_load_dwordx4 v[252:255], v12, s[8:11], 0 offen offset:{FLAGC} sc1", 4, val)
    gpoll = lambda val: spin("buffer_load_dwordx4 v[252:255], v13, s[8:11], 0 offen sc1", 4, val, mask=True) if OPT['td'] == 2 else spin("buffer_load_dwordx3 v[252:254], v13, s[8:11], 0 offen sc1", 3, val, mask=True)
    def publish(val):
        l = lab('pub'); l2 = lab('pubs')
        E(f"""s_add_u32 s23, s46, {val}
        v_mov_b32 v14, s45
        v_mov_b32 v15, s23
        s_cmp_lg_u32 s27, 0
        s_cbranch_scc1 {l2}
        s_mov_b64 exec, 1
        buffer_store_dword v15, v14, s[8:11], 0 offen offset:{FLAGC}
        s_mov_b64 exec, -1
        {l}:""")
        OOL.append(f"""{l2}:
        buffer_wbl2 sc1
        s_waitcnt vmcnt(0)
        s_mov_b64 exec, 1
        buffer_store_dword v15, v14, s[8:11], 0 offen offset:{FLAGC} sc1
        s_mov_b64 exec, -1
        s_branch {l}""")
    def acquire():
        l = lab('acq'); l2 = lab('acqs')
        E(f"s_cmp_lg_u32 s27, 0\ns_cbranch_scc1 {l2}\n{l}:")
        OOL.append(f"{l2}:\nbuffer_inv sc1\ns_waitcnt vmcnt(0)\ns_branch {l}")
    def idload(): E.vmop(f"buffer_load_dword v11, v12, s[8:11], 0 offen offset:{FLAGC+IDO} sc1", 'id')
    def idcheck():
        d = lab('idd'); l = lab('idv')
        E(f"""v_cmp_ne_u32 vcc, s26, v11
        s_mov_b32 s27, {0 if OPT['fast'] else 1}
        s_cbranch_vccnz {l}
        {d}:""")
        OOL.append(f"""{l}:
        s_mov_b32 s38, 0
        s_add_u32 s23, s46, 16
        {l}a:
        buffer_load_dword v11, v12, s[8:11], 0 offen offset:{FLAGC+IDO} sc1
        s_add_u32 s38, s38, 1
        s_cmp_gt_u32 s38, {SPIN}
        s_cbranch_scc1 {l}b
        s_waitcnt vmcnt(0)
        v_subrev_u32 v14, s23, v11
        v_cmp_lt_u32 vcc, 15, v14
        s_cbranch_vccnz {l}a
        {l}b:
        v_cmp_ne_u32 vcc, s26, v11
        s_nop 1
        s_cmp_lg_u64 vcc, 0
        s_cselect_b32 s27, 1, s27
        s_branch {d}""")
    def sync(val, tag, post012=None, name='', pre3=None, pre012=None):
        l3 = lab('w3'); lb = lab('sb')
        E(f"s_cmp_eq_u32 s18, 3\ns_cbranch_scc1 {l3}")
        if pre012: pre012()
        E.waitvm(tag); publish(val); E.stamp('pub'+name)
        if post012: post012()
        E(f"s_branch {lb}\n{l3}:\ns_waitcnt vmcnt(0)")
        publish(val)
        if pre3: pre3()
        poll(val)
        E(f"{lb}:\ns_waitcnt lgkmcnt(0)\ns_barrier"); E.lg = []; acquire(); E.stamp('poll'+name)
    def wpoll(val, half):
        if half == 0: E(f"v_and_b32 v10, 31, v0\ns_lshl_b32 s23, s17, 5\nv_add_u32 v10, s23, v10\nv_lshlrev_b32 v10, 7, v10\nv_add_u32 v10, {FLAGG+16}, v10")
        spin(f"buffer_load_dwordx2 v[252:253], v10, s[8:11], 0 offen offset:{8*half} sc1", 2, val, mask=True)
    def touch():
        E(f"v_lshlrev_b32 v14, 7, v0")
        for (base, sb, ms, n) in ((LBASE+XTMID, 's24', 10240, 80), (LBASE+HH, 's28', 24576, 192), (XF2, 's24', 10240, 80)):
            E(f"s_mul_i32 s38, s17, {ms}\ns_add_u32 s23, {sb}, s38\ns_add_u32 s23, s23, {base}")
            for i in range(0, n, 64):
                if n - i < 64: E(f"s_mov_b64 exec, {hex((1 << (n-i)) - 1)}")
                E.vmop("buffer_load_dword v255, v14, s[8:11], s23 offen sc1", 'tch'); E("s_add_u32 s23, s23, 8192")
            E("s_mov_b64 exec, -1")
        E(f"s_mul_i32 s23, s16, 10240\ns_mul_i32 s38, s17, 1280\ns_add_u32 s23, s23, s38\ns_add_u32 s23, s23, {LBASE+SS}\ns_mov_b64 exec, 0x3ff")
        E.vmop("buffer_load_dword v255, v14, s[8:11], s23 offen sc1", 'tch')
        E(f"s_lshl_b32 s23, s16, 12\ns_lshl_b32 s38, s17, 9\ns_add_u32 s23, s23, s38\ns_add_u32 s23, s23, {S2B}\ns_mov_b64 exec, 0xf")
        E.vmop("buffer_load_dword v255, v14, s[8:11], s23 offen sc1", 'tch')
        E("s_mov_b64 exec, -1")
    def hpoison(L):
        E(f"s_mul_i32 s23, s17, 24576\ns_mul_i32 s38, s18, 6144\ns_add_u32 s23, s23, s38\ns_add_u32 s23, s23, s28\ns_add_u32 s23, s23, {LBASE+L*LSTR+HH}\ns_add_u32 s38, s23, 4096")
        for u in range(4): E(f"v_mov_b32 v{248+u}, -1")
        for i in range(6): E.vmop(f"buffer_store_dwordx4 v[248:251], v1, s[8:11], {'s23' if i < 4 else 's38'} offen offset:{1024*(i%4)}", 'psn')
        E("s_nop 1")
    def ool(fn):
        sl, sv, sg = E.l, list(E.vm), list(E.lg); E.l = []
        fn(); OOL.append('\n'.join(E.l)); E.l, E.vm, E.lg = sl, sv, sg
    def p2a(L):
        lb = LBASE + L*LSTR
        l = lab('nou')
        E(f"s_cmp_ge_u32 s18, s22\ns_cbranch_scc1 {l}")
        TV = OPT['daf'] & (4 if L == 0 else 2)
        lr = lab('tr')
        TD = OPT['td'] and L == 1
        if TV: E(f"s_mov_b32 s47, 0" + ('' if TD else f"\n{lr}:"))
        t_loads(L)
        E(f"v_add_u32 v14, {L_M2}, v1")
        for k in range(8): E.lgop(f"ds_read_b128 {vr(224+4*k)}, v14 offset:{1024*k}", ('M2', k))
        E(f"""s_cmp_eq_u32 s21, 9
        s_cselect_b32 s37, -1, 0
        s_mov_b32 s36, 0""")
        if TD: E(f"{lr}:")
        for k in range(8):
            E.waitvm(('T', k)); E.waitlg(('M2', k))
            if k == 0: E.stamp('T0')
            E(f"v_mfma_f32_32x32x16_bf16 {vr(208,16)}, {vr(160+4*k)}, {vr(224+4*k)}, {'0' if k == 0 else vr(208,16)}")
            if TV: E((f"v_max_u32 v15, v160, v161" if k == 0 else f"v_max3_u32 v15, v15, v{160+4*k}, v{161+4*k}") + f"\nv_max3_u32 v15, v15, v{162+4*k}, v{163+4*k}")
        if TV:
            E(f"v_cmp_eq_u32 vcc, -1, v15\ns_cbranch_vccnz {lr}a\n{lr}b:")
            OOL.append(f"{lr}a:\ns_add_u32 s47, s47, 1\n" + ("s_add_u32 s97, s97, 1\n" if OPT['stamps'] else '') + f"s_cmp_gt_u32 s47, {SPIN}\ns_cbranch_scc1 {lr}b\n" + (''.join(
                f"v_max_u32 v15, v{160+4*k}, v{161+4*k}\nv_max3_u32 v15, v15, v{162+4*k}, v{163+4*k}\nv_cmp_eq_u32 vcc, -1, v15\ns_cbranch_vccz {lr}s{k}\n"
                + ''.join(f"buffer_load_dword v{160+4*k+u}, v2, s[8:11], s{31 if k < 4 else 32} offen offset:{(k%4)*1024+u*128} sc1\n" for u in range(4)) + f"{lr}s{k}:\n" for k in range(8))
                + "s_waitcnt vmcnt(0)\n" if TD else '') + f"s_branch {lr}")
        E.stamp('Tok')
        if L == 0: idload()
        E.waitvm('res')
        LO, HI, D = 160, 176, 208
        for u in range(8):
            E(f"""v_lshlrev_b32 v{LO+2*u}, 16, v{192+u}
            v_and_b32 v{LO+2*u+1}, 0xffff0000, v{192+u}""")
            if L: E(f"v_lshlrev_b32 v{HI+2*u}, 16, v{200+u}\nv_and_b32 v{HI+2*u+1}, 0xffff0000, v{200+u}")
            else: E(f"v_and_b32 v{HI+2*u}, 0xffff0000, v{200+(u^3)}\nv_lshlrev_b32 v{HI+2*u+1}, 16, v{200+(u^3)}")
        if L == 0: E(f"v_lshlrev_b32 v8, 16, v8\nv_cndmask_b32 v{HI+15}, v{HI+15}, v8, s[36:37]")
        XS = 'sc1' if L == 0 and OPT['xsc'] else ''
        for u in range(8): E(f"v_pk_add_f32 {vr(LO+2*u,2)}, {vr(LO+2*u,2)}, {vr(D+2*u,2)}")
        E(f"v_cndmask_b32 v{D+15}, v{D+15}, 0, s[36:37]")
        for u in range(8): E(f"v_cvt_pk_bf16_f32 v{192+u}, v{LO+2*u}, v{LO+2*u+1}")
        E(f"s_add_u32 s34, s33, {lb+XTMID}\ns_add_u32 s35, s34, 40960")
        for rh in range(2): E.vmop(f"buffer_store_dwordx4 {vr(192+4*rh)}, v3, s[8:11], s34 offen offset:{512*rh} {XS}", 'st')
        for u in range(8): E(f"v_pk_add_f32 {vr(HI+2*u,2)}, {vr(HI+2*u,2)}, {vr(D+2*u,2)}")
        for u in range(8): E(f"v_cvt_pk_bf16_f32 v{200+u}, v{HI+2*u}, v{HI+2*u+1}")
        for rh in range(2): E.vmop(f"buffer_store_dwordx4 {vr(200+4*rh)}, v4, s[8:11], s35 offen offset:{512*rh} {XS}", 'st')
        for (X, o) in ((LO, 224), (HI, 228)):
            E(f"v_pk_mul_f32 {vr(o+2,2)}, {vr(X,2)}, {vr(X,2)}\nv_pk_add_f32 {vr(o,2)}, {vr(X,2)}, {vr(X+2,2)}\nv_pk_fma_f32 {vr(o+2,2)}, {vr(X+2,2)}, {vr(X+2,2)}, {vr(o+2,2)}")
            for u in range(2, 8):
                E(f"v_pk_add_f32 {vr(o,2)}, {vr(o,2)}, {vr(X+2*u,2)}\nv_pk_fma_f32 {vr(o+2,2)}, {vr(X+2*u,2)}, {vr(X+2*u,2)}, {vr(o+2,2)}")
        E(f"""v_add_f32 v224, v224, v225
        v_add_f32 v225, v226, v227
        v_add_f32 v228, v228, v229
        v_add_f32 v229, v230, v231
        s_mul_i32 s23, s16, 10240
        s_lshl_b32 s38, s21, 9
        v_permlane32_swap_b32 v224, v228
        v_permlane32_swap_b32 v225, v229
        s_add_u32 s23, s23, s38
        s_add_u32 s23, s23, {lb+SS}
        v_pk_add_f32 v[224:225], v[224:225], v[228:229]""")
        E.vmop("buffer_store_dwordx2 v[224:225], v5, s[8:11], s23 offen", 'st')
        if L == 0:
            OOL.append(f"{l}:\nbuffer_load_dword v11, v12, s[8:11], 0 offen offset:{FLAGC+IDO} sc1\ns_waitcnt vmcnt(0)\ns_branch {l}x")
            E(f"{l}x:")
        else: E(f"{l}:")

    def rot(dst, base, add, mod, mul, plus):
        return f"s_add_u32 {dst}, {base}, {add}\ns_cmp_ge_u32 {dst}, {mod}\ns_cselect_b32 s38, {mod}, 0\ns_sub_u32 {dst}, {dst}, s38\ns_mul_i32 {dst}, {dst}, {mul}\ns_add_u32 {dst}, {dst}, {plus}"
    w1s = lambda p: f"s{42+p}" if p >= 11 else ['s96','s97','s98','s99','s43','s46','s47','s62'][10-p]
    def ffn1_pre(L):
        lb = LBASE + L*LSTR
        E(f"s_add_u32 s41, s24, {lb+XTMID}\ns_add_u32 s42, s29, s18\ns_lshl_b32 s40, s18, 12")
        for cc in range(5): E(rot(f"s{48+cc}", 's42', 4*cc, 20, 4096, 's41'))
        for p in range(NS, 20): E(rot(w1s(p), 's29', p, 20, 3072, 's39'))
        if L == 0:
            for kk in range(NW2, KS): E(rot(f"s{31+kk-NW2}", 's30', kk, 12, 5120, 's44'))
        E(f"""s_mul_i32 s42, s18, 3072
        s_min_u32 s42, s42, 7168
        s_mul_i32 s63, s16, 10240
        s_add_u32 s63, s63, s42
        s_add_u32 s63, s63, {lb+SS}
        s_add_u32 s42, s42, {L_RED}
        s_add_u32 m0, s40, {L_X}""")
    def ffn1(L):
        lb = LBASE + L*LSTR
        ACC, BF, ONES = 160, 208, 240
        xld = lambda cc, tt: E.vmop(f"buffer_load_dwordx4 v1, s[8:11], s{48+cc} offen offset:{1024*tt} {DS} lds", ('X', cc))
        for tt in range(4): xld(0, tt)
        E("s_mov_b32 m0, s42\nv_add_u32 v15, 0x10000, v1")
        for i in range(3): E.vmop(f"buffer_load_dwordx4 v1, s[8:11], s63 offen offset:{1024*i} {DS} lds", ('X', 1))
        E(f"s_add_u32 m0, s40, {L_X + 16384}\nv_lshlrev_b32 v14, 3, v0")
        for tt in range(4): xld(1, tt)
        E(f"v_add_u32 v14, {L_RED}, v14\nv_add_u32 v10, 4096, v1")
        if L == 0:
            for u in range(4): E(f"v_mov_b32 v{ONES+u}, 0x3f803f80")
            E("s_nop 0")
            E.waitvm(('W1', NS-1)); E("s_nop 0")
            for p in range(NS):
                for t in range(3):
                    E(f"v_mfma_f32_16x16x32_bf16 {ar(240+4*t)}, {vr(16+12*p+4*t)}, {vr(ONES)}, {'0' if p == 0 else ar(240+4*t)}")
        rdB = lambda p, tt: E.lgop(f"ds_read_b128 {vr(BF+16*(p&1)+4*tt)}, {'v1' if p < 16 else 'v15'} offset:{L_X + (p%16)*4096 + tt*1024}", ('B', p, tt))
        Q = []
        w1one = lambda p, t: E.vmop(f"buffer_load_dwordx4 {vr(16+12*(p%12)+4*t)}, v1, s[8:11], {w1s(p)} offen offset:{1024*t}", ('W1', p))
        w2one = lambda kk, t: E.vmop(f"buffer_load_dwordx4 {ar(20*kk+4*t)}, {'v1' if t < 4 else 'v10'}, s[8:11], s{31+kk-NW2} offen offset:{1024*(t%4)}{NT(1)}", 'W2')
        for it in list(range(NS, 8)) + [('X', 2)] + list(range(max(NS, 8), 12)) + [('X', 3), 12, 13, 14, 15, ('X', 4), 16, 17, 18, 19]:
            if isinstance(it, tuple): Q += [(0, (lambda c=it[1], t=t: xld(c, t)), (it[1] if t == 0 else None)) for t in range(4)]
            else: Q += [(max(it-11, 0), (lambda p=it, t=t: w1one(p, t)), None) for t in range(3)]
        NQ2 = 5*(KS-NW2) if L == 0 else 0
        if L == 0:
            for kk in range(NW2, KS): Q += [(0, (lambda k=kk, t=t: w2one(k, t)), None) for t in range(5)]
        FL = (f"s_mul_i32 s23, s17, 6\ns_add_u32 s41, s23, s18\ns_lshl_b32 s41, s41, 12\ns_add_u32 s41, s41, s28\ns_add_u32 s41, s41, {lb+HH}\n"
              f"s_lshr_b32 s42, s18, 1\ns_add_u32 s42, s42, s23\ns_add_u32 s42, s42, 4\ns_lshl_b32 s42, s42, 12\ns_add_u32 s42, s42, s28\ns_add_u32 s42, s42, {lb+HH}\n"
              f"s_mul_i32 s43, s18, {12*4096}\ns_add_u32 s43, s43, s28\ns_add_u32 s43, s43, {lb+HH}\ns_lshl_b32 s47, s30, 12\ns_add_u32 s52, s47, s43\ns_add_u32 s43, s43, {12*4096}").split('\n')
        for kk in range(1, 12): FL += [f"s_add_u32 s{52+kk}, s{51+kk}, 4096", f"s_cmp_ge_u32 s{52+kk}, s43\ns_cselect_b32 s38, {12*4096}, 0", f"s_sub_u32 s{52+kk}, s{52+kk}, s38"]
        for b in range(4): FL += [f"s_add_u32 s{48+b}, s18, {b+1}", f"s_and_b32 s{48+b}, s{48+b}, 3", f"s_lshl_b32 s{48+b}, s{48+b}, 10"]
        E.waitvm(('X', 0)); E("s_barrier"); E.stamp('X0')
        for tt in range(4): rdB(0, tt)
        ST, SM = 244, 248
        for p in range(20):
            n = 0
            slots = (5, 7, 9) if p < OPT['p4s'] else (4, 6, 8, 10)
            for tt in range(4):
                for t in range(3):
                    if n == 0: E.waitvm(('W1', p))
                    if t == 0: E.waitlg(('B', p, tt))
                    a = ACC + 16*t + 4*tt
                    E(f"v_mfma_f32_16x16x32_bf16 {vr(a)}, {vr(16+12*(p%12)+4*t)}, {vr(BF+16*(p&1)+4*tt)}, {'0' if p == 0 else vr(a)}")
                    n += 1
                    if n == 1 and p < 19 and (p+1) % 4 == 0: E.waitvm(('X', (p+1)//4)); E("s_barrier")
                    if n in (2, 4, 6, 8) and p < 19: rdB(p+1, n//2-1)
                    if n+1 in slots and Q and Q[0][2] is not None: E(f"s_add_u32 m0, s40, {L_X + Q[0][2]*16384}")
                    if n in slots and Q and Q[0][0] <= p: Q.pop(0)[1]()
                    if p >= 11 and len(Q) <= NQ2 and FL and n % 2 == 1: E(FL.pop(0))
                    if p >= 11 and len(Q) <= NQ2 and FL and n in (2, 12): E(FL.pop(0))
                    if 4 <= p <= 8:
                        if n in (1, 3): E.lgop(f"ds_read2st64_b64 {vr(SM+2*(n-1))}, v14 offset0:{4*(p-4)+n-1} offset1:{4*(p-4)+n}", ('S', p))
                        if n == 10:
                            E.waitlg(('S', p))
                            E(f"v_add_f32 v{SM}, v{SM}, v{SM+2}\nv_add_f32 v{SM+1}, v{SM+1}, v{SM+3}")
                        if n == 11: E(f"v_add_f32 v{SM+4}, v{SM+4}, v{SM+6}\nv_add_f32 v{SM+5}, v{SM+5}, v{SM+7}")
                        if n == 12:
                            if p == 4: E(f"v_add_f32 v{ST}, v{SM}, v{SM+4}\nv_add_f32 v{ST+1}, v{SM+1}, v{SM+5}")
                            else: E(f"v_add3_f32 v{ST}, v{SM}, v{SM+4}, v{ST}\nv_add3_f32 v{ST+1}, v{SM+1}, v{SM+5}, v{ST+1}".replace('v_add3_f32', 'v_xadd') if 0 else
                                    f"v_add_f32 v{ST}, v{ST}, v{SM}\nv_add_f32 v{ST+1}, v{ST+1}, v{SM+1}\nv_add_f32 v{ST}, v{ST}, v{SM+4}\nv_add_f32 v{ST+1}, v{ST+1}, v{SM+5}")
                    if p == 9:
                        seq = [f"v_mul_f32 v{ST}, {f2h(1/640)}, v{ST}", f"v_mul_f32 v{ST+1}, {f2h(1/640)}, v{ST+1}",
                               f"v_fma_f32 v{ST+1}, -v{ST}, v{ST}, v{ST+1}", f"v_max_f32 v{ST+1}, 0, v{ST+1}",
                               f"v_add_f32 v{ST+1}, {f2h(1e-5)}, v{ST+1}", f"v_rsq_f32 v{ST+1}, v{ST+1}",
                               f"v_and_b32 v{ST+2}, 15, v0", f"v_lshlrev_b32 v{ST+2}, 2, v{ST+2}", f"s_lshl_b32 s23, s18, 6",
                               f"v_add_u32 v{ST+3}, s23, v{ST+2}", f"v_sub_f32 v{ST}, 0, v{ST}", None]
                        if seq[n-1]: E(seq[n-1])
                    if p == 10 and n in (1, 3, 10, 11): tt2 = (1, 3, 10, 11).index(n); E.lgop(f"ds_bpermute_b32 v{SM+2*tt2}, v{ST+2}, v{ST} offset:{64*tt2}", 'm')
                    if p == 10 and n == 12: E.lgop(f"ds_bpermute_b32 v7, v{ST+3}, v{ST+1}", 'm')
            if L == 0 and p >= NS:
                for t in range(3):
                    E(f"v_mfma_f32_16x16x32_bf16 {ar(240+4*t)}, {vr(16+12*(p%12)+4*t)}, {vr(ONES)}, {ar(240+4*t)}")
        assert not Q, len(Q)
        for x in FL: E(x)
        E.stamp('f1end')
        CS = 128
        E("s_nop 5")
        for i in range(12): E(f"v_accvgpr_read_b32 v{CS+i}, a{240+i}")
        E.waitlg()
        O = 16
        for tt in range(4):
            for t in range(3):
                a = ACC + 16*t + 4*tt
                for u in range(2):
                    E(f"v_pk_fma_f32 {vr(a+2*u,2)}, {vr(CS+4*t+2*u,2)}, {vr(SM+2*tt,2)}, {vr(a+2*u,2)} op_sel_hi:[1,0,1]")
            for t in range(3):
                a = ACC + 16*t + 4*tt
                o = O + 4*tt + 2*t if t < 2 else O + 16 + 2*tt
                for u in range(2): E(f"v_cvt_pk_bf16_f32 v{o+u}, v{a+2*u}, v{a+2*u+1}")
            for t in range(3):
                o = O + 4*tt + 2*t if t < 2 else O + 16 + 2*tt
                for u in range(2): E(f"v_pk_max_i16 v{o+u}, v{o+u}, 0")
            E.vmop(f"buffer_store_dwordx4 {vr(O+4*tt)}, v1, s[8:11], s41 offen offset:{1024*tt}", 'st')
            if tt & 1:
                o = O + 16 + 2*(tt-1)
                E(f"s_nop 0\nv_permlane32_swap_b32 v{o}, v{o+2}\nv_permlane32_swap_b32 v{o+1}, v{o+3}")
                E.vmop(f"buffer_store_dwordx4 {vr(o)}, v6, s[8:11], s42 offen offset:{1024*(tt-1)}", 'st')

    def ffn2(L):
        lb = LBASE + L*LSTR
        HF, ACC = 16, (208, 228)
        for b in range(4): E(f"v_add_u32 v{248+b}, s{48+b}, v1")
        HQ = [(b, kk) for b in range(4) for kk in range(12)]
        def hld():
            b, kk = HQ.pop(0)
            E.vmop(f"buffer_load_dwordx4 {vr(HF+48*b+4*kk)}, v{248+b}, s[8:11], s{52+kk} offen {DS}{NT(4)}", ('h', b, kk))
        RES, PART = 16, 64
        DAF = OPT['daf'] & 1
        issued = []
        hins = lambda b, kk: f"buffer_load_dwordx4 {vr(HF+48*b+4*kk)}, v{248+b}, s[8:11], s{52+kk} offen {DS}"
        chk = lambda b, kk: [f"v_or3_b32 v252, v{HF+48*b+4*kk}, v{HF+48*b+4*kk+1}, v{HF+48*b+4*kk+2}", f"v_or_b32 v252, v252, v{HF+48*b+4*kk+3}", "v_cmp_gt_i32 vcc, 0, v252"]
        if OPT['c1']: chk = lambda b, kk: [f"v_cmp_gt_i32 vcc, 0, v{HF+48*b+4*kk+3}"]
        def retry(b, kk):
            l = lab('hr'); pend = [x for x in [(bb, k2) for bb in range(4) for k2 in range(12)] if x >= (b, kk) and x not in HQ]
            if b >= 2 or (b == 1 and kk > 0): pend = [(b, kk)]
            E(f"s_cbranch_vccnz {l}\n{l}b:")
            OOL.append(f"{l}:\ns_mov_b32 s38, 0\n{l}a:\n" + (f"s_add_u32 s97, s97, {1 if b == 0 else 100}\n" if OPT['stamps'] else '') + '\n'.join(hins(*x) for x in pend) + f"\ns_add_u32 s38, s38, 1\ns_cmp_gt_u32 s38, {SPIN}\ns_cbranch_scc1 {l}b\ns_waitcnt vmcnt(0)\n"
                       + '\n'.join(chk(b, kk)) + f"\ns_cbranch_vccnz {l}a\ns_branch {l}b")
        if DAF:
            l = lab('hs')
            E(f"s_cmp_lg_u32 s27, 0\ns_cbranch_scc1 {l}\n{l}b:")
            def slow():
                E(f"{l}:"); st = OPT['stamps']; OPT['stamps'] = ''
                sync(4*L+2, None); OPT['stamps'] = st
                E(f"s_branch {l}b")
            ool(slow)
            if L == 0:
                l = lab('w2s'); E(f"s_cmp_eq_u32 s18, 3\ns_cbranch_scc1 {l}")
                assert not OPT['hw'] or (5*(12-KS) < 60 and OPT['td'] != 3)
                for kk in range(KS, 12): w2_loads(kk)
                if OPT['hw']: E.waitvm('st'); E(f"s_branch {l}x\n{l}:\ns_waitcnt vmcnt(0)\n{l}x:")
                elif OPT['td'] == 3:
                    E(f"s_branch {l}x\n{l}:"); gpoll(2); E(f"{l}x:")
                else: E(f"{l}:")
            elif OPT['hw']: E.waitvm('st')
            E.stamp('pubh')
        else:
            sync(4*L+2, 'st', post012=(lambda: [w2_loads(kk) for kk in range(KS, 12)]) if L == 0 else None, name='h')
        for i in range(OPT['hpre']): hld()
        E(f"""v_lshrrev_b32 v14, 4, v0
        v_and_b32 v15, 15, v0
        s_mul_i32 s23, s17, 5
        v_add_u32 v8, s23, v14
        v_lshrrev_b32 v9, 2, v8
        v_lshlrev_b32 v9, 12, v9
        v_and_b32 v10, 3, v8
        v_lshl_add_u32 v9, v10, 8, v9
        v_lshlrev_b32 v10, 9, v8
        s_lshl_b32 s38, s18, 10
        v_lshl_add_u32 v11, v15, 4, s38
        v_add_u32 v8, v9, v11
        s_add_u32 s23, s23, 4
        s_lshr_b32 s35, s23, 2
        s_lshl_b32 s35, s35, 12
        s_and_b32 s36, s23, 3
        s_lshl_b32 s36, s36, 8
        s_add_u32 s35, s35, s36
        v_lshl_add_u32 v9, v14, 2, v11
        v_add_u32 v9, s35, v9
        s_lshr_b32 s35, s18, 1
        s_mul_i32 s35, s35, 40960
        s_and_b32 s36, s18, 1
        s_lshl_b32 s36, s36, 8
        s_add_u32 s35, s35, s36
        v_lshl_add_u32 v11, v15, 4, s35
        v_add_u32 v10, v10, v11
        s_lshl_b32 s23, s23, 9
        v_lshl_add_u32 v11, v14, 2, v11
        v_add_u32 v11, s23, v11""")
        if L == 0 and OPT['pr'] & 2:
            E(f"""s_add_u32 s34, s24, {XF2}
            s_add_u32 s35, s34, 20480
            s_lshl_b32 s23, s16, 12
            s_lshl_b32 s38, s17, 9
            s_add_u32 s23, s23, s38
            s_lshl_b32 s38, s18, 7
            s_add_u32 s23, s23, s38
            s_add_u32 s23, s23, {S2B}
            v_and_b32 v14, 31, v0
            v_lshlrev_b32 v14, 2, v14""")
            for (a, n, sr) in (('v10', 4, 's34'), ('v10', 4, 's35'), ('v11', 1, 's34'), ('v11', 1, 's35'), ('v14', 1, 's23')):
                E.vmop(f"buffer_store_dwordx4 v[0:3], {a}, s[8:11], {sr} offen" if n == 4 else f"buffer_store_dword v0, {a}, s[8:11], {sr} offen", 'pr')
        WQ = []
        if L == 0 and OPT['lw']:
            for p in range(3): E(rot(f"s{31+p}", 's29', p, 20, 3072, 's39'))
            E(f"s_mul_i32 s37, s18, 9216\ns_add_u32 s37, s37, {L_X + 40960}")
            WQ = [(p, t) for p in range(3) for t in range(3)]
        if L == 1:
            E(f"""s_sub_u32 s23, 64, s16
            s_cmp_eq_u32 s16, 0
            s_cselect_b32 s23, 32, s23
            s_cmp_lt_u32 s18, 2
            s_cselect_b32 s23, s16, s23
            s_and_b32 s38, s18, 1
            s_lshl_b32 s38, s38, 10
            s_add_u32 s23, s23, s38
            v_and_b32 v14, 15, v0
            v_lshl_add_u32 v14, v14, 6, s23
            v_mul_u32_u24 v14, 1280, v14
            v_lshrrev_b32 v15, 4, v0
            s_mul_i32 s23, s17, 80
            s_add_u32 s38, s23, 2
            v_lshl_add_u32 v2, v15, 4, s38
            v_add_u32 v2, v2, v14
            s_sub_u32 s38, 1264, s23
            v_lshlrev_b32 v3, 4, v15
            v_sub_u32 v3, s38, v3
            v_add_u32 v3, v3, v14
            s_add_u32 s38, s23, 66
            v_lshl_add_u32 v4, v15, 2, s38
            v_add_u32 v4, v4, v14
            s_sub_u32 s38, 1214, s23
            v_lshlrev_b32 v5, 2, v15
            v_sub_u32 v5, s38, v5
            v_add_u32 v6, -2, v5
            v_cmp_eq_u32 vcc, 640, v6
            v_add_u32 v5, v5, v14
            s_nop 0
            v_cndmask_b32 v6, v6, 0, vcc
            v_add_u32 v6, v6, v14""")
            if OPT['pr'] & 4:
                for x in ("dwordx4 v[8:11], v2", "dwordx4 v[8:11], v3", "dword v8, v4", "short v8, v5", "short v8, v6"): E.vmop(f"buffer_store_{x}, s[12:15], 0 offen", 'pr')
        E.waitvm('W2')
        if DAF:
            E.waitvm(('h', 0, 0))
            for c in chk(0, 0): E(c)
            retry(0, 0)
        for b in range(4):
            A = ACC[b & 1]; P = ACC[(b+1) & 1]
            n = 0
            for kk in range(12):
                E.waitvm(('h', b, kk))
                if b == 0 and kk == 0: E.stamp('h0')
                for t in range(5):
                    E(f"v_mfma_f32_16x16x32_bf16 {vr(A+4*t)}, {ar(20*kk+4*t)}, {vr(HF+48*b+4*kk)}, {'0' if kk == 0 else vr(A+4*t)}")
                    n += 1
                    if t == 0 and not HQ and WQ and WQ[0][1] == 0: E(f"s_add_u32 m0, s37, {3072*WQ[0][0]}")
                    if t == 1 and not HQ and WQ:
                        p_, t_ = WQ.pop(0); E.vmop(f"buffer_load_dwordx4 v1, s[8:11], s{31+p_} offen offset:{1024*t_} lds", 'lw')
                    if t == 1 and HQ: hld()
                    if DAF and (b, kk) != (3, 11):
                        nb, nk = (b, kk+1) if kk < 11 else (b+1, 0)
                        if OPT['c1']:
                            if t == 2 + OPT['cw']: E.waitvm(('h', nb, nk)); E(chk(nb, nk)[0])
                        else:
                            if t == 0: E.waitvm(('h', nb, nk))
                            if t == 2: E(chk(nb, nk)[0]); E(chk(nb, nk)[1])
                            if t == 3: E(chk(nb, nk)[2])
                        if t == 4: retry(nb, nk)
                    if b >= 1 and n == 9:
                        E(f"s_add_u32 s23, s18, {b}\ns_and_b32 s23, s23, 3\ns_mul_i32 s23, s23, {3*5120}\ns_add_u32 s23, s23, {L_RED + (b-1)*5120}\nv_add_u32 v14, s23, v1")
                    if b >= 1 and 11 <= n <= 19 and n % 2 == 1:
                        t2 = (n-11)//2
                        E.lgop(f"ds_write_b128 v14, {vr(P+4*t2)} offset:{1024*t2}", 'red')
                    if b == 1 and n == 25:
                        E(f"s_add_u32 s34, s24, {lb+XTMID}\ns_add_u32 s35, s34, 40960")
                        E.vmop(f"buffer_load_dwordx4 {vr(RES)}, v8, s[8:11], s34 offen {DS}", 'res')
                        E.vmop(f"buffer_load_dwordx4 {vr(RES+4)}, v8, s[8:11], s35 offen {DS}", 'res')
                        E.vmop(f"buffer_load_dword v{RES+8}, v9, s[8:11], s34 offen {DS}", 'res')
                        E.vmop(f"buffer_load_dword v{RES+9}, v9, s[8:11], s35 offen {DS}", 'res')
                    if b == 3 and n == 30:
                        E.waitlg(); E(f"s_barrier\ns_mul_i32 s23, s18, {3*5120}\ns_add_u32 s23, s23, {L_RED}\nv_add_u32 v14, s23, v1")
                    if b == 3 and 32 <= n < 47:
                        i = n - 32
                        E.lgop(f"ds_read_b128 {vr(PART+4*i)}, v14 offset:{1024*i}", 'part')
        assert not WQ
        E.stamp('f2end')
        if OPT['stamps']: E.note('cnt', 's97'); E("s_mov_b32 s97, 0")
        A = ACC[1]
        X = 32
        E.waitvm('res')
        pr = lambda u: (8*(u >> 2) + (u & 3), 8*(u >> 2) + (u & 3) + 4) if u < 8 else (2*u, 2*u+1)
        for u in range(10): E(f"v_lshlrev_b32 v{X+pr(u)[0]}, 16, v{RES+u}\nv_and_b32 v{X+pr(u)[1]}, 0xffff0000, v{RES+u}")
        E.waitlg()
        for u in range(10):
            E(f"v_pk_add_f32 {vr(PART+2*u,2)}, {vr(PART+2*u,2)}, {vr(PART+20+2*u,2)}\nv_pk_add_f32 {vr(A+2*u,2)}, {vr(A+2*u,2)}, {vr(PART+40+2*u,2)}")
        for u in range(10):
            E(f"v_pk_add_f32 {vr(A+2*u,2)}, {vr(A+2*u,2)}, {vr(PART+2*u,2)}")
        E("v_mov_b32 v14, v7")
        for u in range(10):
            E(f"v_pk_fma_f32 {vr(X+2*u,2)}, {vr(A+2*u,2)}, v[14:15], {vr(X+2*u,2)} op_sel_hi:[1,0,1]")
        O = 64
        if L == 0:
            nb = LBASE + LSTR
            for u in range(10): E(f"v_cvt_pk_bf16_f32 v{O+u}, v{X+pr(u)[0]}, v{X+pr(u)[1]}")
            EE, OO = 80, 92
            for u in range(4):
                E(f"v_pk_add_f32 {vr(EE+2*u,2)}, {vr(X+2*u,2)}, {vr(X+8+2*u,2)}\nv_pk_add_f32 {vr(OO+2*u,2)}, {vr(X+2*u,2)}, {vr(X+8+2*u,2)} neg_lo:[0,1] neg_hi:[0,1]")
            E(f"""v_pk_add_f32 {vr(EE+8,2)}, {vr(X+16,2)}, {vr(X+18,2)}
            v_pk_add_f32 {vr(OO+8,2)}, {vr(X+16,2)}, {vr(X+18,2)} neg_lo:[0,1] neg_hi:[0,1]
            s_cmp_eq_u32 s17, 7
            s_cselect_b32 s37, 0xffff0000, 0
            s_mov_b32 s36, 0
            s_add_u32 s34, s24, {XF2}
            s_add_u32 s35, s34, 20480
            v_cndmask_b32 v{EE+9}, v{EE+9}, v{X+17}, s[36:37]
            v_cndmask_b32 v{OO+9}, v{OO+9}, v{X+19}, s[36:37]""")
            for u in range(5):
                a, b = (u, u+4) if u < 4 else (8, 9)
                E(f"v_cvt_pk_bf16_f32 v{EE+u}, v{EE+a}, v{EE+b}\nv_cvt_pk_bf16_f32 v{OO+u}, v{OO+a}, v{OO+b}")
            E.vmop(f"buffer_store_dwordx4 {vr(EE)}, v10, s[8:11], s34 offen", 'st')
            E.vmop(f"buffer_store_dwordx4 {vr(OO)}, v10, s[8:11], s35 offen", 'st')
            E.vmop(f"buffer_store_dword v{EE+4}, v11, s[8:11], s34 offen", 'st')
            E.vmop(f"buffer_store_dword v{OO+4}, v11, s[8:11], s35 offen", 'st')
            E(f"v_pk_mul_f32 v[106:107], {vr(X,2)}, {vr(X,2)}\nv_pk_add_f32 v[104:105], {vr(X,2)}, {vr(X+2,2)}\nv_pk_fma_f32 v[106:107], {vr(X+2,2)}, {vr(X+2,2)}, v[106:107]")
            for u in range(2, 10): E(f"v_pk_add_f32 v[104:105], v[104:105], {vr(X+2*u,2)}\nv_pk_fma_f32 v[106:107], {vr(X+2*u,2)}, {vr(X+2*u,2)}, v[106:107]")
            E(f"""v_add_f32 v104, v104, v105
            v_add_f32 v105, v106, v107
            s_lshl_b32 s23, s16, 12
            s_lshl_b32 s38, s17, 9
            s_add_u32 s23, s23, s38
            v_permlane32_swap_b32 v104, v105
            s_lshl_b32 s38, s18, 7
            s_add_u32 s23, s23, s38
            v_add_f32 v104, v104, v105
            s_add_u32 s23, s23, {S2B}
            v_mov_b32 v105, v104
            v_and_b32 v106, 15, v0
            v_lshrrev_b32 v107, 5, v0
            v_permlane16_swap_b32 v104, v105
            v_lshlrev_b32 v106, 3, v106
            v_lshl_add_u32 v106, v107, 2, v106
            v_add_f32 v104, v104, v105""")
            E.vmop("buffer_store_dword v104, v106, s[8:11], s23 offen", 'st')
            E(f"s_add_u32 s34, s24, {nb+XTIN}\ns_add_u32 s35, s34, 40960")
            E.vmop(f"buffer_store_dwordx4 {vr(O)}, v8, s[8:11], s34 offen", 'st')
            E.vmop(f"buffer_store_dwordx4 {vr(O+4)}, v8, s[8:11], s35 offen", 'st')
            E.vmop(f"buffer_store_dword v{O+8}, v9, s[8:11], s34 offen", 'st')
            E.vmop(f"buffer_store_dword v{O+9}, v9, s[8:11], s35 offen", 'st')
        else:
            for u in range(4): E(f"v_cvt_pk_bf16_f32 v{O+u}, v{X+u}, v{X+4+u}\nv_cvt_pk_bf16_f32 v{O+4+u}, v{X+15-u}, v{X+11-u}")
            OS = 'sc1' if OPT['outsc'] else ''
            E(f"""buffer_store_dwordx4 {vr(O)}, v2, s[12:15], 0 offen {OS}
            v_cvt_pk_bf16_f32 v{O+8}, v{X+16}, v{X+17}
            v_cvt_pk_bf16_f32 v{O+9}, v{X+18}, v{X+19}
            buffer_store_dwordx4 {vr(O+4)}, v3, s[12:15], 0 offen {OS}
            buffer_store_dword v{O+8}, v4, s[12:15], 0 offen {OS}
            buffer_store_short v{O+9}, v5, s[12:15], 0 offen {OS}
            buffer_store_short_d16_hi v{O+9}, v6, s[12:15], 0 offen {OS}""")

    def p4():
        LW = OPT['lw']
        def one(i):
            p, t = 3 + i//3, i % 3
            if t == 0: E(rot('s47', 's29', p, 20, 3072, 's39') + f"\ns_mul_i32 s38, s18, 15360\ns_add_u32 m0, s38, {L_RED + 3072*(p-3)}\ns_nop 0")
            E(f"buffer_load_dwordx4 v1, s[8:11], s47 offen offset:{1024*t} lds")
        def g():
            l = lab('nog')
            E(f"s_cmp_ge_u32 s18, s22\ns_cbranch_scc1 {l}")
            GS = OPT['gs']
            gen_G(E, 's21', step=lambda k: one(k-max(GS, 2)) if k-max(GS, 2) < 3*LW else None, part=(GS, 20) if GS else None)
            if LW:
                E(f"s_branch {l}x\n{l}:")
                for i in range(3*LW): one(i)
                E(f"{l}x:")
            else: E(f"{l}:")
            E.stamp('gen')
        if OPT['xp']: E(f"s_mul_i32 s34, s19, 40960\ns_add_u32 s34, s34, s24\ns_lshl_b32 s36, s18, 10\ns_add_u32 s34, s34, s36\ns_add_u32 s34, s34, {XF2}\ns_add_u32 s35, s34, 20480")
        def g0():
            l = lab('g0'); E(f"s_cmp_ge_u32 s18, s22\ns_cbranch_scc1 {l}"); gen_G(E, 's21', part=(0, OPT['gs'])); E(f"{l}:")
        assert OPT['gs'] <= 5
        sync(3, None, pre012=g0 if OPT['gs'] else None, post012=g, name='xf', pre3=(lambda: [one(i) for i in range(3*OPT['l3'])]))
        if OPT['xp']:
            E(f"s_add_u32 m0, s36, {L_X}\ns_nop 0")
            for c in range(5):
                E.vmop(f"buffer_load_dwordx4 v1, s[8:11], s34 offen {DS}{NT(4)} lds", ('XF', c))
                E(f"s_add_u32 m0, s36, {L_X + 20480 + 4096*c}\ns_add_u32 s34, s34, 4096")
                E.vmop(f"buffer_load_dwordx4 v1, s[8:11], s35 offen {DS}{NT(4)} lds", ('XF', c))
                if c < 4: E(f"s_add_u32 m0, s36, {L_X + 4096*(c+1)}\ns_add_u32 s35, s35, 4096")
            if OPT['daf'] & 1 and OPT['hpl'] == 2: hpoison(1)
            E.stamp('yi')
            sv = list(E.vm)
            l = lab('nou'); l3 = lab('xw3'); lx = lab('xend')
            E(f"""s_cmp_ge_u32 s18, s22
            s_cbranch_scc1 {l}
            v_mov_b32 v10, v13
            v_lshrrev_b32 v9, 5, v0
            v_lshlrev_b32 v9, 4, v9
            v_add_u32 v9, {L_R}, v9
            s_mul_i32 s32, s21, 8192
            s_lshl_b32 s33, s20, 7
            s_add_u32 s32, s32, s33
            s_add_u32 s32, s32, {LBASE + TSTR + TT}""")
            def chunk(c):
                E.waitvm(('XF', c)); E("s_barrier")
                if c == 0: E.stamp('xf')
            dft_unit(E, L_X, 512, L_M1, 'v9', 's32', 'sc1', chunk=chunk, mid=lambda: E.stamp('ym'))
            E(f"v_mov_b32 v13, v10\ns_branch {lx}\n{l}:")
            sv2 = list(E.vm); E.vm = sv
            E(f"""s_cmp_lg_u32 s18, 3
            s_cbranch_scc1 {l3}
            v_and_b32 v14, 31, v0
            v_lshlrev_b32 v14, 3, v14
            s_lshl_b32 s23, s16, 12
            s_lshl_b32 s38, s19, 8
            s_add_u32 s23, s23, s38
            s_add_u32 s23, s23, {S2B}""")
            for m in range(8): E.vmop(f"buffer_load_dwordx2 {vr(224+2*m,2)}, v14, s[8:11], s23 offen offset:{512*m} {DS}", 'S')
            for c in range(4): E.waitvm(('XF', c)); E("s_barrier")
            E.waitvm('S')
            for m in range(1, 8): E(f"v_pk_add_f32 v[224:225], v[224:225], {vr(224+2*m,2)}")
            E(f"""v_mul_f32 v224, {f2h(1/640)}, v224
            v_mul_f32 v225, {f2h(1/640)}, v225
            v_fma_f32 v225, -v224, v224, v225
            v_max_f32 v225, 0, v225
            v_add_f32 v225, {f2h(1e-5)}, v225
            v_rsq_f32 v225, v225
            v_lshlrev_b32 v14, 2, v0
            v_add_u32 v14, {L_R}, v14
            ds_write_b32 v14, v225
            s_waitcnt lgkmcnt(0)
            s_barrier
            s_branch {lx}
            {l3}:""")
            E.vm = list(sv)
            for c in range(5): E.waitvm(('XF', c)); E("s_barrier")
            E(f"{lx}:"); E.vm = sv2
            return
        E(f"""s_mul_i32 s23, s19, 40960
        s_add_u32 s23, s23, s24
        s_mul_i32 s38, s18, 10240
        s_add_u32 s23, s23, s38
        s_add_u32 s23, s23, {XF2}""")
        for i in range(10):
            if i % 4 == 0: E(f"s_add_u32 m0, s38, {L_X + 1024*i}\ns_add_u32 s34, s23, {1024*i}")
            E.vmop(f"buffer_load_dwordx4 v1, s[8:11], s34 offen offset:{1024*(i%4)} {DS} lds", 'XF')
        E(f"""v_and_b32 v14, 31, v0
        v_lshlrev_b32 v14, 3, v14
        s_lshl_b32 s23, s16, 12
        s_lshl_b32 s38, s19, 8
        s_add_u32 s23, s23, s38
        s_add_u32 s23, s23, {S2B}""")
        for m in range(8): E.vmop(f"buffer_load_dwordx2 {vr(224+2*m,2)}, v14, s[8:11], s23 offen offset:{512*m} {DS}", 'S')
        E.stamp('yi')
        if OPT['daf'] & 1: hpoison(1)
        E.stamp('yp')
        E.waitvm('XF'); E.stamp('yx')
        E.waitvm('S'); E.stamp('ys')
        for m in range(1, 8): E(f"v_pk_add_f32 v[224:225], v[224:225], {vr(224+2*m,2)}")
        E(f"""v_mul_f32 v224, {f2h(1/640)}, v224
        v_mul_f32 v225, {f2h(1/640)}, v225
        v_fma_f32 v225, -v224, v224, v225
        v_max_f32 v225, 0, v225
        v_add_f32 v225, {f2h(1e-5)}, v225
        v_rsq_f32 v225, v225
        s_lshl_b32 s23, s18, 8
        s_add_u32 s23, s23, {L_R}
        v_lshl_add_u32 v14, v0, 2, s23
        ds_write_b32 v14, v225
        v_lshrrev_b32 v9, 5, v0
        v_lshl_add_u32 v9, v9, 4, s23
        s_waitcnt lgkmcnt(0)
        s_barrier""")
        E.stamp('xf')
        l = lab('nou')
        E(f"""s_cmp_ge_u32 s18, s22
        s_cbranch_scc1 {l}
        v_mov_b32 v10, v13
        s_mul_i32 s32, s21, 8192
        s_lshl_b32 s33, s20, 7
        s_add_u32 s32, s32, s33
        s_add_u32 s32, s32, {LBASE + TSTR + TT}""")
        dft_unit(E, L_X, 512, L_M1, 'v9', 's32', 'sc1')
        E(f"v_mov_b32 v13, v10\n{l}:")

    NA, NB = OPT['na'], OPT['nb']
    E(f"""s_cmp_eq_u32 s18, 3
    s_cbranch_scc1 k2_w3a
    s_cmp_ge_u32 s18, s22
    s_cbranch_scc1 k2_nou0
    s_mul_i32 s32, s21, 8192
    s_lshl_b32 s33, s20, 7
    s_add_u32 s32, s32, s33
    s_add_u32 s32, s32, {LBASE + TT}""")
    E("s_cmp_lg_u32 s18, 2\ns_cbranch_scc1 k2_nf2"); gflag(1, 16); E("k2_nf2:")
    if OPT['td']: assert OPT['daf'] & 2 and OPT['ord'] == 0 and not OPT['daf'] & 4
    if OPT['td'] == 1: tpoison(E, 1)
    dft_unit(E, L_X, XFS, L_M1, 'v9', 's32', 'sc1', mid=(lambda: E("s_waitcnt vmcnt(0)")) if OPT['daf'] & 4 else None)
    E("s_branch k2_nou1\nk2_nou0:")
    w2finish(); E("s_waitcnt vmcnt(0)"); gflag(1, 16)
    E("k2_nou1:"); E.stamp('dft')
    if not OPT['daf'] & 4: E.waitvm()
    gflag(1); E.stamp('gpub0')
    if OPT['ord'] == 0:
        if OPT['daf'] & 2 and OPT['td'] in (0, 3): tpoison(E, 1)
        setup()
        if OPT['daf'] & 1: hpoison(0)
        res_loads(0); gen_M2()
        E("s_barrier"); E.stamp('w1ok')
        w1_loads(0, NA)
    else:
        setup()
        if OPT['ord'] == 2: res_loads(0)
        E("s_barrier"); E.stamp('w1ok')
        w1_loads(0, NA)
        if OPT['ord'] == 1: res_loads(0)
        gen_M2()
        if OPT['daf'] & 1: hpoison(0)
        if OPT['daf'] & 2: tpoison(E, 1)
    sv = list(E.vm)
    E("s_branch k2_B2\nk2_w3a:")
    w2finish(); E.stamp('w2st')
    if OPT['td'] == 2:
        E(f"""s_sub_u32 s40, s21, 3
        s_mul_i32 s40, s40, 8192
        s_lshl_b32 s41, s20, 7
        s_add_u32 s40, s40, s41
        s_add_u32 s40, s40, {LBASE + TSTR + TT}
        v_lshrrev_b32 v14, 3, v0
        v_mul_u32_u24 v14, 81920, v14
        v_and_b32 v15, 7, v0
        v_lshl_add_u32 v14, v15, 4, v14""")
        for u in range(4): E(f"v_mov_b32 v{248+u}, -1")
        for u in range(3):
            if u == 2: E("s_cmp_lt_u32 s22, 3\ns_cbranch_scc1 k2_tp3")
            for i in range(4): E(f"s_add_u32 s41, s40, {u*8192 + i*8*81920}\nbuffer_store_dwordx4 v[248:251], v14, s[8:11], s41 offen sc1")
        E("k2_tp3:")
    setup()
    E(f"v_mov_b32 v14, s45\nv_mov_b32 v15, s26\ns_mov_b64 exec, 1\nbuffer_store_dword v15, v14, s[8:11], 0 offen offset:{FLAGC+IDO-12} sc1\ns_mov_b64 exec, -1")
    gen_M2()
    E("s_waitcnt vmcnt(0)"); gflag(1, 16)
    if OPT['td'] == 2: gflag(1)
    E.stamp('w2pub')
    if OPT['daf'] & 1: hpoison(0)
    wpoll(1, 0); E.stamp('pkpoll')
    N3 = OPT['n3']
    w1_loads(0, N3)
    E("s_barrier")
    w1_loads(N3, OPT['n3b'])
    wpoll(1, 1); E.stamp('pk2')
    W2A = list(range(NW2)) + list(range(KS, 12))
    for kk in W2A[:OPT['w2e']]: w2_loads(kk)
    gpoll(1)
    E("k2_B2:\ns_waitcnt lgkmcnt(0)\ns_barrier"); E.lg = []; E.stamp('gpoll0')
    E.vm = sv
    E.pre = 'k2_a_'
    E("s_cmp_eq_u32 s18, 3\ns_cbranch_scc1 k2_w3b")
    p2a(0)
    E.stamp('p2a')
    E.waitvm(); idcheck(); publish(1); E.stamp('pub1')
    if OPT['td'] == 3: gflag(2)
    w1_loads(NA, NS)
    for kk in range(NW2): w2_loads(kk)
    ffn1_pre(0)
    sv = list(E.vm)
    E("s_branch k2_sb1\nk2_w3b:")
    idload(); E.waitvm(); idcheck(); publish(1)
    w1_loads(OPT['n3b'], NS)
    for kk in W2A[OPT['w2e']:]: w2_loads(kk)
    ffn1_pre(0)
    poll(1)
    E("k2_sb1:\ns_barrier"); acquire(); E.stamp('poll1')
    E.vm = sv
    ffn1(0)
    ffn2(0)
    p4()
    E("s_cmp_eq_u32 s18, 3\ns_cbranch_scc1 k2_gpoll")
    if not OPT['daf'] & 2: E.waitvm()
    if not OPT['td']: gflag(2)
    E.stamp('gpub')
    res_loads(1)
    HP = OPT['xp'] and OPT['daf'] & 1
    if HP and OPT['hpl'] == 0: hpoison(1)
    def w1_copy(n):
        E(f"s_mul_i32 s23, s18, 9216\ns_add_u32 s23, s23, {L_X + 40960}\nv_add_u32 v14, s23, v1\ns_mul_i32 s23, s18, 15360\ns_add_u32 s23, s23, {L_RED}\nv_add_u32 v15, s23, v1")
        for p in range(n):
            for t in range(3): E(f"ds_read_b128 {vr(16+12*p+4*t)}, {'v14' if p < 3 else 'v15'} offset:{3072*(p if p < 3 else p-3)+1024*t}")
    P0 = 3 + OPT['lw'] if OPT['lw'] else 0
    if P0: w1_copy(P0)
    w1_loads(P0, max(NB, P0)); NB = max(NB, P0)
    sv = list(E.vm)
    E("s_branch k2_gdone\nk2_gpoll:")
    if HP and OPT['hpl'] == 0: hpoison(1)
    P3 = 3 + OPT['l3'] if P0 else 0
    if P0: w1_copy(P3)
    OPT['n3l'] = max(OPT['n3l'], P3)
    w1_loads(P3, OPT['n3l'])
    if OPT['td']: E("k2_gdone:\ns_waitcnt lgkmcnt(0)")
    else:
        gpoll(2)
        E("k2_gdone:\ns_waitcnt lgkmcnt(0)\ns_barrier")
    E.vm = sv
    E.stamp('gpoll')
    E.pre = 'k2_b_'
    if OPT['n3l'] < NS:
        E("s_cmp_lg_u32 s18, 3\ns_cbranch_scc1 k2_n3l"); w1_loads(OPT['n3l'], NS); E("k2_n3l:"); E.vm = list(sv)
    p2a(1)
    if HP and OPT['hpl'] == 1: hpoison(1)
    E.stamp('p2a')
    ffn1_pre(1)
    sync(5, None, post012=lambda: w1_loads(NB, NS), name='1')
    ffn1(1)
    ffn2(1)
    if OPT['stamps']: E("s_waitcnt vmcnt(0)"); E.stamp('end')
    E.dump_stamps('s18'); E.dump_dbg()
    E("k2_done:\ns_endpgm")
    for o in OOL: E(o)
    E("k2_end:")
    return head(KN) + E.text()

src = f"""; FNet (folded hidden DFT + 2-stage sequence DFT on MFMA) + ReLU FFN, two layers, one persistent kernel.  Generated by hand-written generator scripts.
; @launch grid=(256,1,1) block=(256,1,1) lds={LDS2}
.amdgcn_target "amdgcn-amd-amdhsa--gfx950"
.text
""" + kern() + '.section .rodata,"a"\n.p2align 6\n' + desc(KN, 512, 256)
print(src + '\n'.join(NAMES))
```

```python
import sys, struct
import re
OPT = dict(stamps='', fast=1, pf=1, reuse=1, dbg=0, ns=11, na=8, nb=8, touch=0, p4s=11, nw2a=2, ks=8, dsc=1, outsc=0, hpre=10, xsc=0, wso=0, daf=3, hw=0, c1=1, cw=0, pr=2, xp=1, pk=1, fst=2176, rep=1, gh=2, xm=1, n3=5, w2e=0, n3b=5, ord=0, n3l=11, hpl=0, nt=0, lw=0, l3=0, gs=5, td=3, wp=0, m2l=1, tl=1)
for a in sys.argv[1:]:
    k, v = a.split('='); OPT[k] = v if k == 'stamps' else int(v)
NAMES = []
f2h = lambda x: hex(struct.unpack('<I', struct.pack('<f', x))[0])
KB = 1024
NT = lambda b: ' nt' if OPT['nt'] & b else ''
FLAGC = 0
FLAGG = 32*KB
FLAGT = 384*KB
FST = OPT['fst']
FLAGP = FLAGT + 32*FST
STAMP = 64*KB
S2B   = 256*KB
W1P   = 512*KB
W2P   = W1P + 1920*KB
XF2   = W2P + 1920*KB
LBASE = XF2 + 2560*KB
XTIN, XTMID, TT, HH, SS = 0, 2560*KB, 5120*KB, 7680*KB, 13824*KB
LSTR  = 14336*KB
TSTR = LSTR
if OPT['reuse']:
    XTIN, XTMID, TT, HH, SS, LSTR, TSTR = 0, 0, 2560*KB, 7680*KB, 13824*KB, 0, 2560*KB
WS_BYTES = 268435456
REP = OPT['rep']; RST = 32*KB + 128
if REP > 1: FLAGG = LBASE + 2*14336*KB
L_X = 0
L_RED = 80*KB
L_M1 = 140*KB
L_M2 = 148*KB
L_R = 156*KB
LDS2 = 157*KB
XFS = 528
L1_XF = 0
L1_M1 = 44*KB
L1_R = 52*KB
LDS1 = 53*KB

class Asm:
    def __init__(s, kn): s.l = []; s.vm = []; s.lg = []; s.nst = 0; s.kn = kn; s.pre = kn + '_'
    def __call__(s, t):
        for x in [y for y in t.split('\n') if y.strip()]: s.l.append('    ' + x.strip() if not x.strip().endswith(':') else x.strip())
    def vmop(s, t, tag): s(t); s.vm.append(tag)
    def lgop(s, t, tag): s(t); s.lg.append(tag)
    def waitvm(s, tag=None):
        n = 0
        if tag is not None:
            if tag not in s.vm: return
            idx = max(i for i, t in enumerate(s.vm) if t == tag); n = len(s.vm) - 1 - idx
        n = min(n, 63); s(f's_waitcnt vmcnt({n})'); s.vm = s.vm[len(s.vm)-n:] if n else []
    def waitlg(s, tag=None):
        n = 0
        if tag is not None:
            if tag not in s.lg: return
            idx = max(i for i, t in enumerate(s.lg) if t == tag); n = len(s.lg) - 1 - idx
        n = min(n, 15); s(f's_waitcnt lgkmcnt({n})'); s.lg = s.lg[len(s.lg)-n:] if n else []
    def stamp(s, name):
        name = s.pre + name
        if OPT['stamps'] and re.search(OPT['stamps'], name):
            s(f's_memrealtime s[{64+2*s.nst}:{65+2*s.nst}]'); NAMES.append(f'; @stamp {s.kn} {s.nst} {name}'); s.nst += 1; assert s.nst <= 16, name
    def note(s, name, reg):
        name = s.pre + name
        if OPT['stamps'] and re.search(OPT['stamps'], name):
            s(f's_mov_b32 s{64+2*s.nst}, {reg}'); NAMES.append(f'; @stamp {s.kn} {s.nst} {name}'); s.nst += 1; assert s.nst <= 16, name
    def dump_stamps(s, wsreg):
        if OPT['stamps']:
            s('s_waitcnt lgkmcnt(0)')
            s(f's_lshl_b32 s40, s2, 9\ns_lshl_b32 s41, {wsreg}, 6\ns_add_u32 s40, s40, s41\ns_add_u32 s40, s40, {STAMP + s.stamp_off}\nv_mov_b32 v14, s40')
            for i in range(s.nst):
                s(f'v_mov_b32 v15, s{64+2*i}\nbuffer_store_dword v15, v14, s[8:11], 0 offen offset:{4*i}')
    def dump_dbg(s):
        if OPT['dbg'] and s.kn == 'k2':
            s(f"""s_cmp_lg_u32 s2, 37
            s_cbranch_scc1 k2_nodbg
            s_cmp_lg_u32 s18, 0
            s_cbranch_scc1 k2_nodbg
            s_load_dwordx2 s[40:41], s[0:1], 72
            s_mov_b32 s44, s64
            s_mov_b32 s42, 256
            s_mov_b32 s43, 0x20000
            v_mov_b32 v14, 0
            s_waitcnt lgkmcnt(0)""")
            for i in range(1, s.nst):
                s(f's_sub_u32 s45, s{64+2*i}, s44\nv_mov_b32 v15, s45\nbuffer_store_dword v15, v14, s[40:43], 0 offen offset:{4*i}')
            s('k2_nodbg:')
    def text(s): return '\n'.join(s.l) + '\n'
vr = lambda a, n=4: f'v[{a}:{a+n-1}]'
ar = lambda a, n=4: f'a[{a}:{a+n-1}]'

def head(name): return f".globl {name}\n.p2align 8\n.type {name},@function\n{name}:\n"
def desc(name, nfv, acc):
    return f""".amdhsa_kernel {name}
  .amdhsa_next_free_vgpr {nfv}
  .amdhsa_next_free_sgpr 100
  .amdhsa_accum_offset {acc}
  .amdhsa_group_segment_fixed_size 0
  .amdhsa_kernarg_size 88
  .amdhsa_user_sgpr_count 2
  .amdhsa_user_sgpr_kernarg_segment_ptr 1
  .amdhsa_system_sgpr_workgroup_id_x 1
.end_amdhsa_kernel
"""
def ids(E):
    E("""s_and_b32 s16, s2, 7
    s_lshr_b32 s23, s2, 6
    s_lshl_b32 s23, s23, 3
    s_or_b32 s16, s16, s23
    s_lshr_b32 s17, s2, 3
    s_and_b32 s17, s17, 7
    s_lshr_b32 s19, s17, 2
    s_sub_u32 s20, 64, s16
    s_cmp_eq_u32 s16, 0
    s_cselect_b32 s20, 32, s20
    s_cmp_eq_u32 s19, 0
    s_cselect_b32 s20, s16, s20
    s_and_b32 s23, s17, 3
    s_mul_i32 s21, s23, 5
    s_add_u32 s21, s21, 1
    s_lshr_b32 s21, s21, 1
    s_and_b32 s23, s23, 1
    s_sub_u32 s22, 3, s23""")

def gen_G(E, sE, hook=None, step=None, part=None):
    A, B, K2, F, PH = 176, 192, 208, 210, 211
    k0, k1 = part or (0, 20)
    sl = E.l
    if k0: E.l = []
    E(f"""s_lshl_b32 s23, {sE}, 5
    s_add_u32 s23, s23, 1
    v_and_b32 v{F}, 31, v0
    v_add_u32 v{F}, s23, v{F}
    v_cvt_f32_u32 v{F}, v{F}
    v_mul_f32 v{F}, {f2h(1/640)}, v{F}
    v_lshrrev_b32 v{PH}, 5, v0
    v_lshlrev_b32 v{PH}, 3, v{PH}
    v_add_u32 v{PH}, 1, v{PH}
    v_cvt_f32_u32 v{PH}, v{PH}
    v_mul_f32 v{PH}, v{PH}, v{F}
    v_mul_f32 v{PH+1}, {f2h(16.0)}, v{F}
    v_cos_f32 v{K2}, v{PH+1}
    v_add_f32 v{PH+2}, v{PH}, v{PH+1}
    v_add_f32 v{K2}, v{K2}, v{K2}""")
    for s in range(8):
        E(f"""v_cos_f32 v{A+2*s}, v{PH}
        v_sin_f32 v{A+2*s+1}, v{PH}
        v_cos_f32 v{B+2*s}, v{PH+2}
        v_sin_f32 v{B+2*s+1}, v{PH+2}""")
        if s < 7: E(f"v_add_f32 v{PH}, v{PH}, v{F}\nv_add_f32 v{PH+2}, v{PH+2}, v{F}")
    E(f"v_mov_b32 v{K2+1}, v{K2}")
    def pack(k, S):
        for u in range(4):
            E(f"v_cvt_pk_bf16_f32 v{16+8*k+u}, v{S+4*u}, v{S+4*u+2}\nv_cvt_pk_bf16_f32 v{20+8*k+u}, v{S+4*u+1}, v{S+4*u+3}")
    pack(0, A); pack(1, B)
    E.l = sl
    for k in range(2, 20):
        if not (k0 <= k < k1):
            A, B = B, A; continue
        if hook and k == max(OPT['gh'], 2): hook()
        if step: step(k)
        for s in range(8):
            E(f"v_pk_fma_f32 v[{A+2*s}:{A+2*s+1}], v[{B+2*s}:{B+2*s+1}], v[{K2}:{K2+1}], v[{A+2*s}:{A+2*s+1}] neg_lo:[0,0,1] neg_hi:[0,0,1]")
        pack(k, A); A, B = B, A

def gen_M1(E, sw, lbase, t0):
    E(f"""v_and_b32 v{t0+1}, 15, v0
    v_bfe_u32 v{t0}, v0, 4, 1
    s_lshr_b32 s23, {sw}, 1
    v_add_u32 v{t0}, s23, v{t0}
    v_lshlrev_b32 v{t0}, 3, v{t0}
    v_lshrrev_b32 v{t0+2}, 5, v0
    v_lshlrev_b32 v{t0+2}, 2, v{t0+2}
    s_and_b32 s23, {sw}, 1
    s_lshl_b32 s23, s23, 4
    v_add_u32 v{t0+2}, s23, v{t0+2}
    s_lshl_b32 s23, {sw}, 10
    s_add_u32 s23, s23, {lbase}
    v_lshl_add_u32 v{t0+3}, v0, 4, s23""")
    for mt in range(2):
        E(f"""v_mad_u32_u24 v{t0+4}, v{t0+2}, v{t0+1}, v{t0}
        v_cvt_f32_u32 v{t0+5}, v{t0+1}
        v_cvt_f32_u32 v{t0+4}, v{t0+4}
        v_mul_f32 v{t0+5}, {f2h(1/32)}, v{t0+5}
        v_mul_f32 v{t0+4}, {f2h(1/32)}, v{t0+4}""")
        for s in range(1, 8): E(f"v_fmamk_f32 v{t0+8+s}, v{t0+5}, {f2h(float(8*(s>>2)+(s&3)))}, v{t0+4}")
        for s in range(8): E(f"v_cos_f32 v{t0+8+s}, v{t0+8+s if s else t0+4}")
        E("s_nop 0")
        for u in range(4): E(f"v_cvt_pk_bf16_f32 v{t0+8+u}, v{t0+8+2*u}, v{t0+9+2*u}")
        E(f"ds_write_b128 v{t0+3}, {vr(t0+8)} offset:{mt*4096}")
        if mt == 0: E(f"v_add_u32 v{t0+1}, 16, v{t0+1}\ns_nop 0")

def dft_unit(E, lx, ps, lm1, vR, sT, stf, mid=None, chunk=None):
    AC, AS, AB, R, Z = 176, 192, 208, 224, 240
    E(f"""v_and_b32 v14, 31, v0
    v_lshlrev_b32 v14, 4, v14
    v_lshrrev_b32 v15, 5, v0
    v_mul_u32_u24 v13, {ps}, v15
    v_add_u32 v14, v14, v13""")
    def rd(k):
        b = AB + 8*(k & 1)
        E.lgop(f"ds_read_b128 {vr(b)}, v14 offset:{lx + 2*k*ps}", ('A', k))
        E.lgop(f"ds_read_b128 {vr(b+4)}, v14 offset:{lx + (40+2*k)*ps}", ('A', k))
    if chunk: chunk(0)
    rd(0); rd(1)
    E(f"""v_mov_b32 v{Z}, 0
    v_mov_b32 v{Z+1}, 0
    v_mov_b32 v{Z+2}, 0
    v_mul_u32_u24 v{Z+3}, 0x3f8000, v15
    v_lshlrev_b32 v{Z+3}, 8, v{Z+3}""")
    for k in range(20):
        b = AB + 8*(k & 1)
        E.waitlg(('A', k))
        c0 = '0' if k == 0 else vr(AC, 16); c1 = '0' if k == 0 else vr(AS, 16)
        E(f"v_mfma_f32_32x32x16_bf16 {vr(AC,16)}, {vr(b)}, {vr(16+8*k)}, {c0}")
        E(f"v_mfma_f32_32x32x16_bf16 {vr(AS,16)}, {vr(b+4)}, {vr(20+8*k)}, {c1}")
        if k == 19: E(f"v_mfma_f32_32x32x16_bf16 {vr(AC,16)}, {vr(b+4)}, {vr(Z)}, {vr(AC,16)}")
        if chunk and k + 2 < 20 and (k+2) % 4 == 0: chunk((k+2)//4)
        if k + 2 < 20: rd(k+2)
        if k == 17:
            for g4 in range(4): E.lgop(f"ds_read_b128 {vr(R+4*g4)}, {vR} offset:{32*g4}", 'R')
    m1reg = lambda i: (160 + 4*i) if i < 4 else (208 + 4*(i-4))
    E(f"v_lshlrev_b32 v13, 4, v0\nv_add_u32 v13, {lm1}, v13")
    for i in range(4): E.lgop(f"ds_read_b128 {vr(m1reg(i))}, v13 offset:{1024*i}", 'M1')
    if mid: mid()
    E("s_nop 7")
    for i in range(4, 8): E.lgop(f"ds_read_b128 {vr(m1reg(i))}, v13 offset:{1024*i}", 'M1')
    E.waitlg('R')
    for p in range(8): E(f"v_pk_mul_f32 {vr(AS+2*p,2)}, {vr(AS+2*p,2)}, {vr(R+2*p,2)}")
    for p in range(8): E(f"v_cvt_pk_bf16_f32 v{Z+8+p}, v{AS+2*p}, v{AS+2*p+1}")
    for p in range(8): E(f"v_pk_mul_f32 {vr(AC+2*p,2)}, {vr(AC+2*p,2)}, {vr(R+2*p,2)}")
    for p in range(8): E(f"v_cvt_pk_bf16_f32 v{Z+p}, v{AC+2*p}, v{AC+2*p+1}")
    E.waitlg()
    E(f"""v_and_b32 v14, 15, v0
    v_mul_u32_u24 v14, 81920, v14
    v_bfe_u32 v13, v0, 4, 1
    v_lshl_add_u32 v14, v13, 5, v14
    v_lshl_add_u32 v14, v15, 4, v14""")
    for mt in range(2):
        D = AS if mt == 0 else AC
        for ks in range(4):
            E(f"v_mfma_f32_32x32x16_bf16 {vr(D,16)}, {vr(Z+4*ks)}, {vr(m1reg(4*mt+ks))}, {'0' if ks == 0 else vr(D,16)}")
    E(f"s_add_u32 s23, {sT}, {16*81920}"); E.stamp('yt')
    for mt in range(2):
        D = AS if mt == 0 else AC
        E("s_nop 6" if mt == 0 else "s_nop 0")
        for r in range(8): E(f"v_permlane16_swap_b32 v{D+r}, v{D+8+r}")
        for r in range(8):
            E(f"v_cvt_pk_bf16_f32 v{R+8*mt+r}, v{D+r}, v{D+8+r}")
            if r & 3 == 3: E.vmop(f"buffer_store_dwordx4 {vr(R+8*mt+r-3)}, v14, s[8:11], {sT if mt == 0 else 's23'} offen offset:{16*(r-3)} {stf}", 'Tst')

def w2job_loads(E):
    E(f"""s_mul_i32 s33, s57, 43
    s_lshr_b32 s33, s33, 8
    s_mul_i32 s32, s33, 6
    s_sub_u32 s32, s57, s32
    s_mul_i32 s33, s33, 12
    s_mul_i32 s34, s32, 3
    s_add_u32 s34, s34, s33
    s_mul_i32 s35, s32, 6
    s_add_u32 s35, s35, s33
    s_sub_u32 s35, s35, 22
    v_lshrrev_b32 v4, 1, v2
    v_mul_u32_u24 v4, 3, v4
    v_add_u32 v4, s35, v4
    v_and_b32 v5, 1, v2
    s_and_b32 s36, s34, 3
    s_cmp_eq_u32 s36, 3
    s_cselect_b32 s36, 61, 1
    s_cmp_ge_u32 s32, 4
    s_cselect_b32 s36, 32, s36
    s_cselect_b64 vcc, -1, 0
    v_mov_b32 v7, s34
    v_cndmask_b32 v4, v7, v4, vcc
    v_cndmask_b32 v5, v2, v5, vcc
    v_lshrrev_b32 v7, 2, v4
    v_and_b32 v4, 3, v4
    v_lshl_add_u32 v4, v7, 6, v4
    v_lshl_add_u32 v4, v5, 4, v4
    v_mul_u32_u24 v4, 1280, v4
    s_mul_i32 s36, s36, 1280
    s_mul_i32 s33, s58, 80
    s_add_u32 s34, s33, 2
    v_lshl_add_u32 v5, v1, 2, s34
    v_add_u32 v5, v5, v4
    s_sub_u32 s34, 1276, s33
    v_lshlrev_b32 v7, 2, v1
    v_sub_u32 v7, s34, v7
    v_add_u32 v7, v7, v4
    v_lshrrev_b32 v9, 2, v1
    v_and_b32 v13, 1, v1
    v_lshl_add_u32 v9, v9, 1, v13
    s_mul_i32 s33, s58, 40
    s_add_u32 s33, s33, 32
    v_add_u32 v9, s33, v9
    v_add_u32 v13, 1, v9
    v_cmp_eq_u32 vcc, 319, v9
    v_sub_u32 v9, 639, v9
    v_and_b32 v14, 2, v1
    v_cndmask_b32 v9, v9, 0, vcc
    v_cmp_eq_u32 vcc, 0, v14
    s_nop 1
    v_cndmask_b32 v9, v9, v13, vcc
    v_lshl_add_u32 v9, v9, 1, v4""")
    for s in range(8):
        E(f"""s_mul_i32 s37, s36, {s>>2}
            s_add_u32 s37, s37, {(s&3)*4*1280}
            buffer_load_dword a{s}, v5, s[48:51], s37 offen{NT(2)}
            buffer_load_dword a{8+s}, v7, s[48:51], s37 offen{NT(2)}
            buffer_load_ushort a{16+s}, v9, s[48:51], s37 offen{NT(2)}""")

def tpoison(E, L, P=248):
    l = f'k2_tp{L}'
    E(f"""s_cmp_ge_u32 s18, s22
    s_cbranch_scc1 {l}
    s_mul_i32 s40, s21, 8192
    s_lshl_b32 s41, s20, 7
    s_add_u32 s40, s40, s41
    s_add_u32 s40, s40, {LBASE + L*TSTR + TT}
    s_add_u32 s41, s40, {8*81920}
    s_add_u32 s42, s40, {16*81920}
    s_add_u32 s43, s40, {24*81920}
    v_lshrrev_b32 v14, 3, v0
    v_mul_u32_u24 v14, 81920, v14
    v_and_b32 v15, 7, v0
    v_lshl_add_u32 v14, v15, 4, v14""")
    for u in range(4): E(f"v_mov_b32 v{P+u}, -1")
    for i in range(4): E(f"buffer_store_dwordx4 {vr(P)}, v14, s[8:11], s{40+i} offen sc1")
    E(f"s_nop 1\n{l}:")

SPIN = 60000
KN = "interleave_layers__spectral_fnet__dense_activation_relu__prompt_kernel"
def kern():
    DS = 'sc1' if OPT['dsc'] else ''
    OOL = []
    E = Asm('k2'); E.stamp_off = 0
    uid = [0]
    def lab(p): uid[0] += 1; return f"k2_{p}{uid[0]}"
    NS = OPT['ns']; NW2 = OPT['nw2a']; KS = OPT['ks']; assert KS - NW2 <= 7
    E("""s_cmp_ge_u32 s2, 256
    s_cbranch_scc1 k2_done""")
    E.stamp('start')
    if OPT['pf']:
        E(f"""s_getpc_b64 s[40:41]
        k2_pc:
        s_sub_u32 s40, s40, k2_pc-{KN}
        s_subb_u32 s41, s41, 0
        s_mov_b32 s42, k2_end-{KN}
        s_mov_b32 s43, 0x20000
        s_lshr_b32 s23, s2, 3
        s_lshl_b32 s23, s23, 10
        v_lshl_add_u32 v14, v0, 2, s23
        v_add_u32 v15, 0x8000, v14
        buffer_load_dword v12, v14, s[40:43], 0 offen
        buffer_load_dword v12, v15, s[40:43], 0 offen""")
    E(f"""s_load_dwordx2 s[4:5], s[0:1], 0
    s_load_dwordx4 s[60:63], s[0:1], 48
    s_load_dwordx2 s[12:13], s[0:1], 64
    s_load_dwordx2 s[52:53], s[0:1], 72
    s_load_dwordx2 s[8:9], s[0:1], 80
    s_memrealtime s[46:47]
    v_lshrrev_b32 v1, 6, v0
    s_mov_b32 s6, {2048*1280}
    s_mov_b32 s7, 0x20000
    v_readfirstlane_b32 s18, v1
    s_mov_b32 s10, {WS_BYTES - OPT['wso']*KB*KB}
    s_mov_b32 s11, 0x20000
    s_mov_b32 s14, {2048*1280}
    s_mov_b32 s15, 0x20000
    s_mov_b32 s54, 256
    s_mov_b32 s55, 0x20000""")
    ids(E)
    E(f"""v_lshrrev_b32 v1, 3, v0
    v_and_b32 v2, 7, v0
    v_lshlrev_b32 v3, 6, v1
    v_add_u32 v3, s20, v3
    v_mul_u32_u24 v3, 1280, v3
    v_lshl_add_u32 v4, v2, 4, v3
    v_add_u32 v4, 2, v4
    v_lshlrev_b32 v5, 4, v2
    v_sub_u32 v5, v3, v5
    v_add_u32 v5, {1264-512}, v5
    v_mov_b32 v10, 0
    s_waitcnt lgkmcnt(0)""")
    if OPT['wso']: E(f"s_add_u32 s8, s8, {OPT['wso']*KB*KB}\ns_addc_u32 s9, s9, 0")
    LD = 216
    for k in range(5):
        E.vmop(f"buffer_load_dwordx4 {vr(LD+8*k)}, v4, s[4:7], 0 offen offset:{128*k}", ('x', k))
        E.vmop(f"buffer_load_dwordx4 {vr(LD+8*k+4)}, v5, s[4:7], 0 offen offset:{128*(4-k)}", ('x', k))
    E.vmop("buffer_load_ushort v12, v3, s[4:7], 0 offen", ('x', 4))
    E.stamp('xiss')
    if OPT['stamps']: E("s_mov_b32 s97, 0")
    E(f"""s_lshl_b32 s56, s2, 2
    s_add_u32 s56, s56, s18
    s_cmp_lg_u32 s56, 0
    s_cbranch_scc1 k2_non
    s_or_b32 s46, s46, 1
    v_mov_b32 v11, s46
    s_mov_b64 exec, 1
    buffer_store_dword v11, v10, s[52:55], 0 offen sc1
    s_mov_b64 exec, -1
    k2_non:
    v_mul_u32_u24 v6, {XFS}, v2
    v_lshl_add_u32 v6, v1, 4, v6
    v_cmp_eq_u32 s[30:31], 7, v2
    v_lshlrev_b32 v8, 2, v1
    v_and_b32 v0, 63, v0
    s_add_u32 s21, s21, s18
    v_and_b32 v1, 15, v0
    v_lshrrev_b32 v2, 4, v0
    v_lshlrev_b32 v3, 4, v0
    s_mov_b32 s51, 0x20000
    s_lshr_b32 s59, s2, 5
    s_and_b32 s56, s2, 31
    s_lshl_b32 s57, s56, 1
    s_add_u32 s57, s57, s18
    s_min_u32 s57, s57, 60
    s_lshr_b32 s23, s56, 4
    s_lshl_b32 s23, s23, 3
    s_and_b32 s38, s56, 7
    s_add_u32 s23, s23, s38
    s_add_u32 s23, s23, 32
    s_cmp_eq_u32 s18, 3
    s_cselect_b32 s56, s56, s23
    s_add_u32 s56, s56, 61
    s_cmp_lt_u32 s18, s22
    s_cselect_b32 s56, 60, s56
    s_cmp_lt_u32 s18, 2
    s_cselect_b32 s56, s57, s56""")
    PKC, PKG = OPT['pk'] & 1, OPT['pk'] & 2
    IDO = 128 if PKC else 16
    E("s_lshl_b32 s23, s18, 2")
    if PKC: E("s_lshl_b32 s45, s16, 8\ns_lshl_b32 s38, s17, 4\ns_add_u32 s45, s45, s38\ns_add_u32 s45, s45, s23")
    else: E("s_lshl_b32 s45, s2, 7\ns_add_u32 s45, s45, s23")
    if PKG: E(f"""s_and_b32 s98, s17, 3
    s_lshl_b32 s98, s98, 3
    s_lshr_b32 s38, s20, 3
    s_add_u32 s98, s98, s38
    s_mul_i32 s98, s98, {FST}
    s_and_b32 s38, s20, 7
    s_lshl_b32 s38, s38, 4
    s_add_u32 s98, s98, s38
    s_add_u32 s98, s98, s23
    s_add_u32 s98, s98, {FLAGT}
    s_mul_i32 s38, s59, {FST - 27*4}
    s_lshl_b32 s23, s2, 2
    s_add_u32 s38, s38, s23
    s_add_u32 s38, s38, {FLAGP}
    s_cmp_eq_u32 s18, 3
    s_cselect_b32 s98, s38, s98""")
    else: E(f"s_lshl_b32 s98, s2, 7\ns_add_u32 s98, s98, s23\ns_add_u32 s98, s98, {FLAGG}")
    E(f"""s_mov_b64 exec, 1
    buffer_store_dword v10, v10, s[8:11], s45 offen offset:{FLAGC}
    s_mov_b64 exec, 3
    v_lshlrev_b32 v13, 4, v0
    buffer_store_dword v10, v13, s[8:11], s98 offen sc1
    s_mov_b64 exec, -1
    buffer_load_dword v11, v10, s[52:55], 0 offen sc1""")
    assert REP == 1 and not PKG
    E(f"""s_mov_b32 s48, s60
    s_mov_b32 s49, s61
    s_mov_b32 s50, {640*3072}
    s_mul_i32 s57, s56, 171
    s_lshr_b32 s57, s57, 9
    s_sub_u32 s58, s59, s57
    s_mul_i32 s58, s58, 3
    s_add_u32 s58, s58, s56
    s_cmp_ge_u32 s57, 10
    s_cselect_b32 s33, 10, 0
    s_sub_u32 s33, s57, s33
    s_lshl_b32 s33, s33, 5
    v_lshl_add_u32 v4, v2, 3, s33
    v_add_u32 v5, 1, v4
    v_sub_u32 v7, 632, v4
    s_cmp_ge_u32 s57, 10
    s_cselect_b64 s[34:35], -1, 0
    s_cselect_b32 s36, 7, 0
    v_cndmask_b32 v5, v5, v7, s[34:35]
    v_mul_u32_u24 v5, 3072, v5
    s_lshl_b32 s33, s58, 7
    v_lshl_add_u32 v7, v1, 3, s33
    v_add_u32 v5, v5, v7
    v_cmp_eq_u32 vcc, 312, v4
    s_and_b64 vcc, vcc, s[34:35]
    s_nop 1
    v_cndmask_b32 v7, v5, v7, vcc""")
    E("k2_pk2:"); E.stamp('piss')
    def hook():
        if OPT['daf'] & 4: tpoison(E, 0, 212)
        E("s_cmp_ge_u32 s56, 60\ns_cbranch_scc1 k2_nw1")
        for s in range(8):
            E(f"s_xor_b32 s37, s36, {s}\ns_mul_i32 s37, s37, 3072\nbuffer_load_dwordx2 {ar(2*s,2)}, {'v7' if s == 7 else 'v5'}, s[48:51], s37 offen{NT(2)}")
        E("k2_nw1:")
    E("s_cmp_ge_u32 s18, s22\ns_cbranch_scc1 k2_nog")
    gen_G(E, 's21', hook)
    TP = 4 if OPT['daf'] & 4 else 0
    E(f"s_cmp_ge_u32 s56, 60\ns_cbranch_scc1 k2_xw0\ns_waitcnt vmcnt({8+TP})\ns_branch k2_xw\nk2_xw0:\ns_waitcnt vmcnt({TP})\ns_branch k2_xw")
    E("k2_nog:\ns_cmp_lg_u32 s18, 3\ns_cbranch_scc1 k2_nw3")
    E("s_mov_b32 s38, 0\nk2_m1l:")
    gen_M1(E, 's38', L_M1, 176)
    E("s_add_u32 s38, s38, 1\ns_cmp_lt_u32 s38, 4\ns_cbranch_scc1 k2_m1l\nk2_nw3:")
    E(f"""s_mov_b32 s48, s62
    s_mov_b32 s49, s63
    s_mov_b32 s50, {1536*1280}
    s_sub_u32 s57, s56, 61
    s_mov_b32 s58, s59""")
    w2job_loads(E)
    E("s_waitcnt vmcnt(24)\nk2_xw:"); E.stamp('gen')
    E(f"""
    v_readfirstlane_b32 s46, v11
    s_mov_b32 s32, 0x05040100
    s_mov_b32 s33, 0x07060302
    s_cmp_eq_u32 s46, 0
    s_cbranch_scc1 k2_nonw
    k2_nonb:""")
    E.vm = []
    OOL.append(f"""k2_nonw:
    s_mov_b32 s38, 0
    k2_nonl:
    buffer_load_dword v11, v10, s[52:55], 0 offen sc1
    s_add_u32 s38, s38, 1
    s_cmp_gt_u32 s38, {SPIN}
    s_cbranch_scc1 k2_nonb
    s_waitcnt vmcnt(0)
    v_readfirstlane_b32 s46, v11
    s_nop 0
    s_cmp_eq_u32 s46, 0
    s_cbranch_scc1 k2_nonl
    s_branch k2_nonb""")
    E.stamp('x0')
    E("s_cmp_ge_u32 s56, 60\ns_cbranch_scc1 k2_pkd\ns_waitcnt vmcnt(0)")
    A0, P0 = 176, 200
    for i in range(16): E(f"v_accvgpr_read_b32 v{A0+i}, a{i}")
    for u in range(4):
        for v in range(4): E(f"v_perm_b32 v{P0+4*u+v}, v{A0+4*v+2+(u>>1)}, v{A0+4*v+(u>>1)}, s{32+(u&1)}")
        E(f"""s_lshl_b32 s34, s58, 2
        s_add_u32 s34, s34, {u}
        s_mul_i32 s35, s34, 171
        s_lshr_b32 s35, s35, 9
        s_mul_i32 s36, s35, 57
        s_add_u32 s36, s36, s34
        s_mul_i32 s37, s57, 3
        s_add_u32 s36, s36, s37
        s_lshl_b32 s36, s36, 10
        s_add_u32 s36, s36, {W1P}
        buffer_store_dwordx4 {vr(P0+4*u)}, v3, s[8:11], s36 offen sc1""")
    E("s_nop 1\nk2_pkd:"); E.stamp('pkst')
    LO, HI, EE, OO, SM, SQ = 180, 188, 196, 204, 212, 214
    E(f"v_mov_b32 v{SM}, 0\nv_mov_b32 v{SM+1}, 0\nv_mov_b32 v{SQ}, 0\nv_mov_b32 v{SQ+1}, 0")
    for k in range(5):
        lo, hi = LD+8*k, LD+8*k+4
        for u in range(4):
            E(f"""v_lshlrev_b32 v{LO+2*u}, 16, v{lo+u}
            v_and_b32 v{LO+2*u+1}, 0xffff0000, v{lo+u}
            v_and_b32 v{HI+2*u}, 0xffff0000, v{hi+3-u}
            v_lshlrev_b32 v{HI+2*u+1}, 16, v{hi+3-u}""")
        if k == 4:
            E(f"v_lshlrev_b32 v12, 16, v12\nv_cndmask_b32 v{HI+7}, v{HI+7}, v12, s[30:31]")
        for u in range(4):
            E(f"""v_pk_add_f32 {vr(EE+2*u,2)}, {vr(LO+2*u,2)}, {vr(HI+2*u,2)}
            v_pk_add_f32 {vr(OO+2*u,2)}, {vr(LO+2*u,2)}, {vr(HI+2*u,2)} neg_lo:[0,1] neg_hi:[0,1]
            v_pk_fma_f32 {vr(SQ,2)}, {vr(LO+2*u,2)}, {vr(LO+2*u,2)}, {vr(SQ,2)}
            v_pk_add_f32 {vr(SM,2)}, {vr(SM,2)}, {vr(EE+2*u,2)}
            v_pk_fma_f32 {vr(SQ,2)}, {vr(HI+2*u,2)}, {vr(HI+2*u,2)}, {vr(SQ,2)}""")
        if k == 4:
            E(f"v_cndmask_b32 v{EE+7}, v{EE+7}, v{LO+7}, s[30:31]\nv_cndmask_b32 v{OO+7}, v{OO+7}, v{HI+7}, s[30:31]")
        for u in range(4): E(f"v_cvt_pk_bf16_f32 v{EE+u}, v{EE+2*u}, v{EE+2*u+1}")
        for u in range(4): E(f"v_cvt_pk_bf16_f32 v{OO+u}, v{OO+2*u}, v{OO+2*u+1}")
        E(f"ds_write_b128 v6, {vr(EE)} offset:{L_X + 8*k*XFS}\nds_write_b128 v6, {vr(OO)} offset:{L_X + (40+8*k)*XFS}")
    E(f"""v_add_f32 v{SM}, v{SM}, v{SM+1}
    v_add_f32 v{SQ}, v{SQ}, v{SQ+1}
    v_add_u32 v8, {L_R}, v8
    s_nop 0""")
    for d in ["quad_perm:[1,0,3,2]", "quad_perm:[2,3,0,1]", "row_half_mirror"]:
        E(f"""v_add_f32_dpp v{SM}, v{SM}, v{SM} {d} row_mask:0xf bank_mask:0xf
        v_add_f32_dpp v{SQ}, v{SQ}, v{SQ} {d} row_mask:0xf bank_mask:0xf
        s_nop 1""")
    E(f"""v_mul_f32 v{SM}, {f2h(1/640)}, v{SM}
    v_mul_f32 v{SQ}, {f2h(1/640)}, v{SQ}
    v_fma_f32 v{SQ}, -v{SM}, v{SM}, v{SQ}
    v_max_f32 v{SQ}, 0, v{SQ}
    v_add_f32 v{SQ}, {f2h(1e-5)}, v{SQ}
    v_rsq_f32 v{SQ}, v{SQ}
    v_lshrrev_b32 v9, 5, v0
    ds_write_b32 v8, v{SQ}
    v_lshlrev_b32 v9, 4, v9
    v_add_u32 v9, {L_R}, v9""")
    E.stamp('ln')
    E(f"""s_cmp_ge_u32 s18, 2
    s_cbranch_scc1 k2_nf1
    s_add_u32 s23, s46, 1
    v_mov_b32 v15, s23
    s_waitcnt vmcnt(0)
    s_mov_b64 exec, 1
    buffer_store_dword v15, off, s[8:11], s98 offset:16 sc1
    s_mov_b64 exec, -1
    k2_nf1:""")
    E("s_waitcnt lgkmcnt(0)\ns_barrier")
    E.stamp('bar')

    def w2finish():
        E("s_waitcnt vmcnt(0)")
        E(f"""s_mul_i32 s34, s58, 48
    s_add_u32 s34, s34, s57
    s_mul_i32 s34, s34, 5120
    s_add_u32 s34, s34, {W2P}
    s_add_u32 s35, s34, 4096""")
        for i in range(24): E(f"v_accvgpr_read_b32 v{A0+i}, a{i}")
        for t in range(4):
            for v in range(4): E(f"v_perm_b32 v{P0+4*t+v}, v{A0+8*(t>>1)+2*v+1}, v{A0+8*(t>>1)+2*v}, s{32+((t&1)^(t>>1))}")
            E(f"buffer_store_dwordx4 {vr(P0+4*t)}, v3, s[8:11], s34 offen offset:{1024*t} sc1")
        for v in range(4): E(f"v_perm_b32 v{A0+v}, v{A0+16+2*v+1}, v{A0+16+2*v}, s32")
        E(f"buffer_store_dwordx4 {vr(A0)}, v3, s[8:11], s35 offen sc1")
        E("s_nop 0")
    def setup():
        E(f"""s_mul_i32 s24, s16, 81920
        s_and_b32 s25, s20, 31
        s_mul_i32 s25, s25, 10
        s_add_u32 s25, s25, s21
        s_lshl_b32 s25, s25, 13
        s_getreg_b32 s26, hwreg(HW_REG_XCC_ID)
        s_and_b32 s26, s26, 15
        s_add_u32 s26, s26, 16
        s_add_u32 s26, s26, s46
        s_mul_i32 s28, s16, 196608
        s_mul_i32 s29, s17, 5
        s_lshr_b32 s29, s29, 1
        s_mul_i32 s30, s17, 3
        s_lshr_b32 s30, s30, 1
        s_lshl_b32 s39, s17, 2
        s_add_u32 s39, s39, s18
        s_mul_i32 s44, s39, {60*KB}
        s_add_u32 s39, s44, {W1P}
        s_add_u32 s44, s44, {W2P}
        v_lshlrev_b32 v1, 4, v0
        v_and_b32 v14, 31, v0
        v_lshrrev_b32 v15, 5, v0
        v_and_b32 v2, 3, v14
        v_bfe_u32 v3, v14, 2, 1
        v_lshl_add_u32 v2, v3, 4, v2
        v_bfe_u32 v3, v14, 3, 2
        v_lshl_add_u32 v2, v3, 2, v2
        v_lshlrev_b32 v2, 2, v2
        v_lshl_add_u32 v2, v15, 9, v2
        s_lshl_b32 s23, s19, 5
        v_add_u32 v5, s23, v14
        v_sub_u32 v6, 63, v5
        v_sub_u32 v7, 32, v14
        v_and_b32 v7, 31, v7
        v_sub_u32 v8, 95, v5
        s_cmp_eq_u32 s19, 0
        s_cselect_b64 s[36:37], -1, 0
        v_cndmask_b32 v7, v8, v7, s[36:37]
        s_cmp_eq_u32 s16, 0
        s_cselect_b64 s[36:37], -1, 0
        v_cndmask_b32 v6, v6, v7, s[36:37]
        v_lshrrev_b32 v3, 4, v5
        v_lshlrev_b32 v3, 10, v3
        v_and_b32 v7, 15, v5
        v_lshl_add_u32 v3, v7, 4, v3
        v_lshl_add_u32 v3, v15, 8, v3
        v_lshrrev_b32 v4, 4, v6
        v_lshlrev_b32 v4, 10, v4
        v_and_b32 v7, 15, v6
        v_lshl_add_u32 v4, v7, 4, v4
        v_lshl_add_u32 v4, v15, 8, v4
        v_mov_b32 v9, v6
        v_add_u32 v6, 640, v6
        v_cmp_eq_u32 vcc, 0, v15
        s_and_b32 s23, s2, 0xc7
        v_and_b32 v12, 7, v0
        v_cndmask_b32 v5, v6, v5, vcc
        v_lshlrev_b32 v5, 3, v5
        """)
        if PKC: E("s_lshl_b32 s23, s16, 8\nv_lshl_add_u32 v12, v12, 4, s23")
        else: E("v_lshl_add_u32 v12, v12, 3, s23\nv_lshlrev_b32 v12, 7, v12")
        if PKG: E(f"""s_and_b32 s23, s17, 3
        s_mul_i32 s23, s23, {8*FST}
        s_add_u32 s23, s23, {FLAGT}
        v_lshrrev_b32 v7, 3, v0
        v_mul_u32_u24 v7, {FST}, v7
        v_and_b32 v13, 7, v0
        v_lshl_add_u32 v13, v13, 4, s23
        v_add_u32 v13, v13, v7""")
        else: E(f"""v_and_b32 v13, 7, v14
        v_lshrrev_b32 v7, 3, v14
        v_lshl_add_u32 v13, v7, 6, v13
        v_lshl_add_u32 v13, v15, 5, v13
        s_and_b32 s23, s17, 3
        s_lshl_b32 s23, s23, 3
        v_add_u32 v13, s23, v13
        v_lshlrev_b32 v13, 7, v13
        s_and_b32 s23, s16, {REP-1}
        s_mul_i32 s23, s23, {RST}
        s_add_u32 s23, s23, {FLAGG}
        v_add_u32 v13, s23, v13""")
        E(f"""
        v_lshrrev_b32 v7, 4, v0
        v_and_b32 v8, 15, v0
        v_and_b32 v6, 1, v7
        s_and_b32 s23, s18, 1
        s_lshl_b32 s23, s23, 1
        v_add_u32 v6, s23, v6
        v_lshlrev_b32 v6, 8, v6
        v_lshl_add_u32 v6, v8, 4, v6
        v_lshl_add_u32 v6, v15, 10, v6""")
    def gen_M2():
        E(f"""v_and_b32 v224, 31, v0
        v_lshlrev_b32 v224, 6, v224
        v_add_u32 v224, s20, v224
        s_lshl_b32 s23, s18, 4
        v_lshrrev_b32 v225, 5, v0
        v_lshl_add_u32 v225, v225, 2, s23
        v_mul_u32_u24 v225, v225, v224
        s_lshl_b32 s23, s18, 11
        s_add_u32 s23, s23, {L_M2}
        v_add_u32 v226, s23, v1""")
        for kk in range(2):
            for u in range(4):
                E(f"""v_and_b32 v227, 2047, v225
                v_cvt_f32_u32 v227, v227
                v_mul_f32 v227, {f2h(1/2048)}, v227
                v_cos_f32 v228, v227
                v_sin_f32 v229, v227
                v_add_u32 v225, v225, v224
                v_cvt_pk_bf16_f32 v{232+4*kk+u}, v228, v229""")
            if kk == 0: E("v_lshl_add_u32 v225, v224, 2, v225")
            E(f"ds_write_b128 v226, {vr(232+4*kk)} offset:{1024*kk}")
    def res_loads(L):
        l = lab('nor'); E(f"s_cmp_ge_u32 s18, s22\ns_cbranch_scc1 {l}")
        E("s_lshl_b32 s33, s21, 12\ns_add_u32 s33, s33, s24")
        if L == 0:
            E(f"""s_sub_u32 s23, 64, s16
            s_cmp_eq_u32 s16, 0
            s_cselect_b32 s23, 32, s23
            v_mov_b32 v7, s23
            v_mov_b32 v8, s16
            v_cmp_gt_u32 vcc, 32, v9
            v_and_b32 v9, 31, v9
            v_and_b32 v10, 31, v0
            v_cndmask_b32 v7, v7, v8, vcc
            v_lshl_add_u32 v9, v9, 6, v7
            v_mul_u32_u24 v9, 1280, v9
            v_lshl_add_u32 v10, v10, 6, s20
            v_mul_u32_u24 v10, 1280, v10
            v_lshrrev_b32 v7, 5, v0
            v_lshlrev_b32 v7, 4, v7
            s_lshl_b32 s23, s21, 6
            s_add_u32 s38, s23, 2
            v_add3_u32 v10, v10, v7, s38
            s_sub_u32 s38, 1232, s23
            v_sub_u32 v7, s38, v7
            v_add_u32 v7, v7, v9""")
            for rh in range(2): E.vmop(f"buffer_load_dwordx4 {vr(192+4*rh)}, v10, s[4:7], 0 offen offset:{32*rh}", 'res')
            for rh in range(2): E.vmop(f"buffer_load_dwordx4 {vr(200+4*rh)}, v7, s[4:7], 0 offen offset:{32*(1-rh)}", 'res')
            E.vmop("buffer_load_ushort v8, v9, s[4:7], 0 offen", 'res')
            if OPT['pr'] & 1:
                E(f"s_add_u32 s34, s33, {LBASE+XTMID}\ns_add_u32 s35, s34, 40960\ns_mul_i32 s23, s16, 10240\ns_lshl_b32 s38, s21, 9\ns_add_u32 s23, s23, s38\ns_add_u32 s23, s23, {LBASE+SS}")
                for rh in range(2): E.vmop(f"buffer_store_dwordx4 v[0:3], v3, s[8:11], s34 offen offset:{512*rh}", 'pr')
                for rh in range(2): E.vmop(f"buffer_store_dwordx4 v[0:3], v4, s[8:11], s35 offen offset:{512*rh}", 'pr')
                E.vmop("buffer_store_dwordx2 v[0:1], v5, s[8:11], s23 offen", 'pr')
        else:
            E(f"s_add_u32 s34, s33, {LBASE+LSTR+XTIN}\ns_add_u32 s35, s34, 40960")
            for rh in range(2): E.vmop(f"buffer_load_dwordx4 {vr(192+4*rh)}, v3, s[8:11], s34 offen offset:{512*rh} {DS}", 'res')
            for rh in range(2): E.vmop(f"buffer_load_dwordx4 {vr(200+4*rh)}, v4, s[8:11], s35 offen offset:{512*rh} {DS}", 'res')
        E(f"{l}:")
    def t_loads(L):
        E(f"s_add_u32 s31, s25, {LBASE+TT+L*TSTR}\ns_add_u32 s32, s31, 4096")
        for k in range(8):
            for u in range(4):
                E.vmop(f"buffer_load_dword v{160+4*k+u}, v2, s[8:11], s{31 if k < 4 else 32} offen offset:{(k%4)*1024+u*128} sc1", ('T', k))
    def w1_loads(p0, p1, tagp='W1'):
        for p in range(p0, p1):
            E(f"s_add_u32 s23, s29, {p}\ns_cmp_ge_u32 s23, 20\ns_cselect_b32 s38, 20, 0\ns_sub_u32 s23, s23, s38\ns_mul_i32 s23, s23, 3072\ns_add_u32 s23, s23, s39")
            for t in range(3):
                E.vmop(f"buffer_load_dwordx4 {vr(16+12*(p%12)+4*t)}, v1, s[8:11], s23 offen offset:{1024*t}", (tagp, p))
    def w2_loads(kk):
        E(f"s_add_u32 s23, s30, {kk}\ns_cmp_ge_u32 s23, 12\ns_cselect_b32 s38, 12, 0\ns_sub_u32 s23, s23, s38\ns_mul_i32 s23, s23, 5120\ns_add_u32 s23, s23, s44\ns_add_u32 s38, s23, 4096")
        for t in range(5):
            E.vmop(f"buffer_load_dwordx4 {ar(20*kk+4*t)}, v1, s[8:11], {'s23' if t < 4 else 's38'} offen offset:{1024*(t%4)}{NT(1)}", 'W2')
    def gflag(val, off=0):
        E(f"""s_add_u32 s23, s46, {val}
        v_mov_b32 v15, s23
        s_mov_b64 exec, 1
        buffer_store_dword v15, off, s[8:11], s98 offset:{off} sc1
        s_mov_b64 exec, -1""")
    def spin(loads, n, val, t=252, mask=False):
        l = lab('poll'); l2 = lab('pout')
        E(f"""s_mov_b32 s38, 0
        s_add_u32 s23, s46, {val}
        {l}:
        {loads}
        s_add_u32 s38, s38, 1
        s_cmp_gt_u32 s38, {SPIN}
        s_cbranch_scc1 {l2}
        s_waitcnt vmcnt(0)""")
        for i in range(n): E(f"v_subrev_u32 v{t+i}, s23, v{t+i}")
        if n == 2: E(f"v_max_u32 v{t}, v{t}, v{t+1}")
        if n > 2: E(f"v_max3_u32 v{t}, v{t}, v{t+1}, v{t+2}")
        if n == 4: E(f"v_max_u32 v{t}, v{t}, v{t+3}")
        if mask and OPT['xm']: E(f"v_cmp_lt_u32 vcc, 15, v{t}\ns_cbranch_vccz {l2}\ns_mov_b64 exec, vcc\ns_branch {l}\n{l2}:\ns_mov_b64 exec, -1")
        else: E(f"v_cmp_lt_u32 vcc, 15, v{t}\ns_cbranch_vccnz {l}\n{l2}:")
    poll = lambda val: spin(f"buffer_load_dwordx4 v[252:255], v12, s[8:11], 0 offen offset:{FLAGC} sc1", 4, val)
    gpoll = lambda val: spin("buffer_load_dwordx4 v[252:255], v13, s[8:11], 0 offen sc1", 4, val, mask=True) if OPT['td'] == 2 else spin("buffer_load_dwordx3 v[252:254], v13, s[8:11], 0 offen sc1", 3, val, mask=True)
    def publish(val):
        l = lab('pub'); l2 = lab('pubs')
        E(f"""s_add_u32 s23, s46, {val}
        v_mov_b32 v14, s45
        v_mov_b32 v15, s23
        s_cmp_lg_u32 s27, 0
        s_cbranch_scc1 {l2}
        s_mov_b64 exec, 1
        buffer_store_dword v15, v14, s[8:11], 0 offen offset:{FLAGC}
        s_mov_b64 exec, -1
        {l}:""")
        OOL.append(f"""{l2}:
        buffer_wbl2 sc1
        s_waitcnt vmcnt(0)
        s_mov_b64 exec, 1
        buffer_store_dword v15, v14, s[8:11], 0 offen offset:{FLAGC} sc1
        s_mov_b64 exec, -1
        s_branch {l}""")
    def acquire():
        l = lab('acq'); l2 = lab('acqs')
        E(f"s_cmp_lg_u32 s27, 0\ns_cbranch_scc1 {l2}\n{l}:")
        OOL.append(f"{l2}:\nbuffer_inv sc1\ns_waitcnt vmcnt(0)\ns_branch {l}")
    def idload(): E.vmop(f"buffer_load_dword v11, v12, s[8:11], 0 offen offset:{FLAGC+IDO} sc1", 'id')
    def idcheck():
        d = lab('idd'); l = lab('idv')
        E(f"""v_cmp_ne_u32 vcc, s26, v11
        s_mov_b32 s27, {0 if OPT['fast'] else 1}
        s_cbranch_vccnz {l}
        {d}:""")
        OOL.append(f"""{l}:
        s_mov_b32 s38, 0
        s_add_u32 s23, s46, 16
        {l}a:
        buffer_load_dword v11, v12, s[8:11], 0 offen offset:{FLAGC+IDO} sc1
        s_add_u32 s38, s38, 1
        s_cmp_gt_u32 s38, {SPIN}
        s_cbranch_scc1 {l}b
        s_waitcnt vmcnt(0)
        v_subrev_u32 v14, s23, v11
        v_cmp_lt_u32 vcc, 15, v14
        s_cbranch_vccnz {l}a
        {l}b:
        v_cmp_ne_u32 vcc, s26, v11
        s_nop 1
        s_cmp_lg_u64 vcc, 0
        s_cselect_b32 s27, 1, s27
        s_branch {d}""")
    def sync(val, tag, post012=None, name='', pre3=None, pre012=None):
        l3 = lab('w3'); lb = lab('sb')
        E(f"s_cmp_eq_u32 s18, 3\ns_cbranch_scc1 {l3}")
        if pre012: pre012()
        E.waitvm(tag); publish(val); E.stamp('pub'+name)
        if post012: post012()
        E(f"s_branch {lb}\n{l3}:\ns_waitcnt vmcnt(0)")
        publish(val)
        if pre3: pre3()
        poll(val)
        E(f"{lb}:\ns_waitcnt lgkmcnt(0)\ns_barrier"); E.lg = []; acquire(); E.stamp('poll'+name)
    def wpoll(val, half):
        if half == 0: E(f"v_and_b32 v10, 31, v0\ns_lshl_b32 s23, s17, 5\nv_add_u32 v10, s23, v10\nv_lshlrev_b32 v10, 7, v10\nv_add_u32 v10, {FLAGG+16}, v10")
        spin(f"buffer_load_dwordx2 v[252:253], v10, s[8:11], 0 offen offset:{8*half} sc1", 2, val, mask=True)
    def touch():
        E(f"v_lshlrev_b32 v14, 7, v0")
        for (base, sb, ms, n) in ((LBASE+XTMID, 's24', 10240, 80), (LBASE+HH, 's28', 24576, 192), (XF2, 's24', 10240, 80)):
            E(f"s_mul_i32 s38, s17, {ms}\ns_add_u32 s23, {sb}, s38\ns_add_u32 s23, s23, {base}")
            for i in range(0, n, 64):
                if n - i < 64: E(f"s_mov_b64 exec, {hex((1 << (n-i)) - 1)}")
                E.vmop("buffer_load_dword v255, v14, s[8:11], s23 offen sc1", 'tch'); E("s_add_u32 s23, s23, 8192")
            E("s_mov_b64 exec, -1")
        E(f"s_mul_i32 s23, s16, 10240\ns_mul_i32 s38, s17, 1280\ns_add_u32 s23, s23, s38\ns_add_u32 s23, s23, {LBASE+SS}\ns_mov_b64 exec, 0x3ff")
        E.vmop("buffer_load_dword v255, v14, s[8:11], s23 offen sc1", 'tch')
        E(f"s_lshl_b32 s23, s16, 12\ns_lshl_b32 s38, s17, 9\ns_add_u32 s23, s23, s38\ns_add_u32 s23, s23, {S2B}\ns_mov_b64 exec, 0xf")
        E.vmop("buffer_load_dword v255, v14, s[8:11], s23 offen sc1", 'tch')
        E("s_mov_b64 exec, -1")
    def hpoison(L):
        E(f"s_mul_i32 s23, s17, 24576\ns_mul_i32 s38, s18, 6144\ns_add_u32 s23, s23, s38\ns_add_u32 s23, s23, s28\ns_add_u32 s23, s23, {LBASE+L*LSTR+HH}\ns_add_u32 s38, s23, 4096")
        for u in range(4): E(f"v_mov_b32 v{248+u}, -1")
        for i in range(6): E.vmop(f"buffer_store_dwordx4 v[248:251], v1, s[8:11], {'s23' if i < 4 else 's38'} offen offset:{1024*(i%4)}", 'psn')
        E("s_nop 1")
    def ool(fn):
        sl, sv, sg = E.l, list(E.vm), list(E.lg); E.l = []
        fn(); OOL.append('\n'.join(E.l)); E.l, E.vm, E.lg = sl, sv, sg
    def p2a(L):
        lb = LBASE + L*LSTR
        l = lab('nou')
        E(f"s_cmp_ge_u32 s18, s22\ns_cbranch_scc1 {l}")
        TV = OPT['daf'] & (4 if L == 0 else 2)
        lr = lab('tr')
        TD = OPT['td'] and L == 1
        if TV: E(f"s_mov_b32 s47, 0" + ('' if TD else f"\n{lr}:"))
        t_loads(L)
        E(f"v_add_u32 v14, {L_M2}, v1")
        for k in range(8): E.lgop(f"ds_read_b128 {vr(224+4*k)}, v14 offset:{1024*k}", ('M2', k))
        E(f"""s_cmp_eq_u32 s21, 9
        s_cselect_b32 s37, -1, 0
        s_mov_b32 s36, 0""")
        if TD: E(f"{lr}:")
        for k in range(8):
            E.waitvm(('T', k)); E.waitlg(('M2', k))
            if k == 0: E.stamp('T0')
            E(f"v_mfma_f32_32x32x16_bf16 {vr(208,16)}, {vr(160+4*k)}, {vr(224+4*k)}, {'0' if k == 0 else vr(208,16)}")
            if TV: E((f"v_max_u32 v15, v160, v161" if k == 0 else f"v_max3_u32 v15, v15, v{160+4*k}, v{161+4*k}") + f"\nv_max3_u32 v15, v15, v{162+4*k}, v{163+4*k}")
        if TV:
            E(f"v_cmp_eq_u32 vcc, -1, v15\ns_cbranch_vccnz {lr}a\n{lr}b:")
            OOL.append(f"{lr}a:\ns_add_u32 s47, s47, 1\n" + ("s_add_u32 s97, s97, 1\n" if OPT['stamps'] else '') + f"s_cmp_gt_u32 s47, {SPIN}\ns_cbranch_scc1 {lr}b\n" + ("s_mov_b32 s48, 0\n" + ''.join(
                f"v_max_u32 v15, v{160+4*k}, v{161+4*k}\nv_max3_u32 v15, v15, v{162+4*k}, v{163+4*k}\nv_cmp_eq_u32 vcc, -1, v15\ns_cbranch_vccz {lr}s{k}\ns_mov_b32 s48, 1\n"
                + ''.join(f"buffer_load_dword v{160+4*k+u}, v2, s[8:11], s{31 if k < 4 else 32} offen offset:{(k%4)*1024+u*128} sc1\n" for u in range(4)) + f"{lr}s{k}:\n" for k in range(8))
                + "s_waitcnt vmcnt(0)\n" + (f"s_cmp_lg_u32 s48, 0\ns_cbranch_scc1 {lr}a\n" if OPT['tl'] else '') if TD else '') + f"s_branch {lr}")
        E.stamp('Tok')
        if L == 0: idload()
        E.waitvm('res')
        LO, HI, D = 160, 176, 208
        for u in range(8):
            E(f"""v_lshlrev_b32 v{LO+2*u}, 16, v{192+u}
            v_and_b32 v{LO+2*u+1}, 0xffff0000, v{192+u}""")
            if L: E(f"v_lshlrev_b32 v{HI+2*u}, 16, v{200+u}\nv_and_b32 v{HI+2*u+1}, 0xffff0000, v{200+u}")
            else: E(f"v_and_b32 v{HI+2*u}, 0xffff0000, v{200+(u^3)}\nv_lshlrev_b32 v{HI+2*u+1}, 16, v{200+(u^3)}")
        if L == 0: E(f"v_lshlrev_b32 v8, 16, v8\nv_cndmask_b32 v{HI+15}, v{HI+15}, v8, s[36:37]")
        XS = 'sc1' if L == 0 and OPT['xsc'] else ''
        for u in range(8): E(f"v_pk_add_f32 {vr(LO+2*u,2)}, {vr(LO+2*u,2)}, {vr(D+2*u,2)}")
        E(f"v_cndmask_b32 v{D+15}, v{D+15}, 0, s[36:37]")
        for u in range(8): E(f"v_cvt_pk_bf16_f32 v{192+u}, v{LO+2*u}, v{LO+2*u+1}")
        E(f"s_add_u32 s34, s33, {lb+XTMID}\ns_add_u32 s35, s34, 40960")
        for rh in range(2): E.vmop(f"buffer_store_dwordx4 {vr(192+4*rh)}, v3, s[8:11], s34 offen offset:{512*rh} {XS}", 'st')
        for u in range(8): E(f"v_pk_add_f32 {vr(HI+2*u,2)}, {vr(HI+2*u,2)}, {vr(D+2*u,2)}")
        for u in range(8): E(f"v_cvt_pk_bf16_f32 v{200+u}, v{HI+2*u}, v{HI+2*u+1}")
        for rh in range(2): E.vmop(f"buffer_store_dwordx4 {vr(200+4*rh)}, v4, s[8:11], s35 offen offset:{512*rh} {XS}", 'st')
        for (X, o) in ((LO, 224), (HI, 228)):
            E(f"v_pk_mul_f32 {vr(o+2,2)}, {vr(X,2)}, {vr(X,2)}\nv_pk_add_f32 {vr(o,2)}, {vr(X,2)}, {vr(X+2,2)}\nv_pk_fma_f32 {vr(o+2,2)}, {vr(X+2,2)}, {vr(X+2,2)}, {vr(o+2,2)}")
            for u in range(2, 8):
                E(f"v_pk_add_f32 {vr(o,2)}, {vr(o,2)}, {vr(X+2*u,2)}\nv_pk_fma_f32 {vr(o+2,2)}, {vr(X+2*u,2)}, {vr(X+2*u,2)}, {vr(o+2,2)}")
        E(f"""v_add_f32 v224, v224, v225
        v_add_f32 v225, v226, v227
        v_add_f32 v228, v228, v229
        v_add_f32 v229, v230, v231
        s_mul_i32 s23, s16, 10240
        s_lshl_b32 s38, s21, 9
        v_permlane32_swap_b32 v224, v228
        v_permlane32_swap_b32 v225, v229
        s_add_u32 s23, s23, s38
        s_add_u32 s23, s23, {lb+SS}
        v_pk_add_f32 v[224:225], v[224:225], v[228:229]""")
        E.vmop("buffer_store_dwordx2 v[224:225], v5, s[8:11], s23 offen", 'st')
        if L == 0:
            OOL.append(f"{l}:\nbuffer_load_dword v11, v12, s[8:11], 0 offen offset:{FLAGC+IDO} sc1\ns_waitcnt vmcnt(0)\ns_branch {l}x")
            E(f"{l}x:")
        else: E(f"{l}:")

    def rot(dst, base, add, mod, mul, plus):
        return f"s_add_u32 {dst}, {base}, {add}\ns_cmp_ge_u32 {dst}, {mod}\ns_cselect_b32 s38, {mod}, 0\ns_sub_u32 {dst}, {dst}, s38\ns_mul_i32 {dst}, {dst}, {mul}\ns_add_u32 {dst}, {dst}, {plus}"
    w1s = lambda p: f"s{42+p}" if p >= 11 else ['s96','s97','s98','s99','s43','s46','s47','s62'][10-p]
    def ffn1_pre(L):
        lb = LBASE + L*LSTR
        E(f"s_add_u32 s41, s24, {lb+XTMID}\ns_add_u32 s42, s29, s18\ns_lshl_b32 s40, s18, 12")
        for cc in range(5): E(rot(f"s{48+cc}", 's42', 4*cc, 20, 4096, 's41'))
        for p in range(NS, 20): E(rot(w1s(p), 's29', p, 20, 3072, 's39'))
        if L == 0:
            for kk in range(NW2, KS): E(rot(f"s{31+kk-NW2}", 's30', kk, 12, 5120, 's44'))
        E(f"""s_mul_i32 s42, s18, 3072
        s_min_u32 s42, s42, 7168
        s_mul_i32 s63, s16, 10240
        s_add_u32 s63, s63, s42
        s_add_u32 s63, s63, {lb+SS}
        s_add_u32 s42, s42, {L_RED}
        s_add_u32 m0, s40, {L_X}""")
    def ffn1(L):
        lb = LBASE + L*LSTR
        ACC, BF, ONES = 160, 208, 240
        xld = lambda cc, tt: E.vmop(f"buffer_load_dwordx4 v1, s[8:11], s{48+cc} offen offset:{1024*tt} {DS} lds", ('X', cc))
        for tt in range(4): xld(0, tt)
        E("s_mov_b32 m0, s42\nv_add_u32 v15, 0x10000, v1")
        for i in range(3): E.vmop(f"buffer_load_dwordx4 v1, s[8:11], s63 offen offset:{1024*i} {DS} lds", ('X', 1))
        E(f"s_add_u32 m0, s40, {L_X + 16384}\nv_lshlrev_b32 v14, 3, v0")
        for tt in range(4): xld(1, tt)
        E(f"v_add_u32 v14, {L_RED}, v14\nv_add_u32 v10, 4096, v1")
        if L == 0:
            for u in range(4): E(f"v_mov_b32 v{ONES+u}, 0x3f803f80")
            E("s_nop 0")
            E.waitvm(('W1', NS-1)); E("s_nop 0")
            for p in range(NS):
                for t in range(3):
                    E(f"v_mfma_f32_16x16x32_bf16 {ar(240+4*t)}, {vr(16+12*p+4*t)}, {vr(ONES)}, {'0' if p == 0 else ar(240+4*t)}")
        rdB = lambda p, tt: E.lgop(f"ds_read_b128 {vr(BF+16*(p&1)+4*tt)}, {'v1' if p < 16 else 'v15'} offset:{L_X + (p%16)*4096 + tt*1024}", ('B', p, tt))
        Q = []
        w1one = lambda p, t: E.vmop(f"buffer_load_dwordx4 {vr(16+12*(p%12)+4*t)}, v1, s[8:11], {w1s(p)} offen offset:{1024*t}", ('W1', p))
        w2one = lambda kk, t: E.vmop(f"buffer_load_dwordx4 {ar(20*kk+4*t)}, {'v1' if t < 4 else 'v10'}, s[8:11], s{31+kk-NW2} offen offset:{1024*(t%4)}{NT(1)}", 'W2')
        for it in list(range(NS, 8)) + [('X', 2)] + list(range(max(NS, 8), 12)) + [('X', 3), 12, 13, 14, 15, ('X', 4), 16, 17, 18, 19]:
            if isinstance(it, tuple): Q += [(0, (lambda c=it[1], t=t: xld(c, t)), (it[1] if t == 0 else None)) for t in range(4)]
            else: Q += [(max(it-11, 0), (lambda p=it, t=t: w1one(p, t)), None) for t in range(3)]
        NQ2 = 5*(KS-NW2) if L == 0 else 0
        if L == 0:
            for kk in range(NW2, KS): Q += [(0, (lambda k=kk, t=t: w2one(k, t)), None) for t in range(5)]
        FL = (f"s_mul_i32 s23, s17, 6\ns_add_u32 s41, s23, s18\ns_lshl_b32 s41, s41, 12\ns_add_u32 s41, s41, s28\ns_add_u32 s41, s41, {lb+HH}\n"
              f"s_lshr_b32 s42, s18, 1\ns_add_u32 s42, s42, s23\ns_add_u32 s42, s42, 4\ns_lshl_b32 s42, s42, 12\ns_add_u32 s42, s42, s28\ns_add_u32 s42, s42, {lb+HH}\n"
              f"s_mul_i32 s43, s18, {12*4096}\ns_add_u32 s43, s43, s28\ns_add_u32 s43, s43, {lb+HH}\ns_lshl_b32 s47, s30, 12\ns_add_u32 s52, s47, s43\ns_add_u32 s43, s43, {12*4096}").split('\n')
        for kk in range(1, 12): FL += [f"s_add_u32 s{52+kk}, s{51+kk}, 4096", f"s_cmp_ge_u32 s{52+kk}, s43\ns_cselect_b32 s38, {12*4096}, 0", f"s_sub_u32 s{52+kk}, s{52+kk}, s38"]
        for b in range(4): FL += [f"s_add_u32 s{48+b}, s18, {b+1}", f"s_and_b32 s{48+b}, s{48+b}, 3", f"s_lshl_b32 s{48+b}, s{48+b}, 10"]
        E.waitvm(('X', 0)); E("s_barrier"); E.stamp('X0')
        for tt in range(4): rdB(0, tt)
        ST, SM = 244, 248
        for p in range(20):
            n = 0
            slots = (5, 7, 9) if p < OPT['p4s'] else (4, 6, 8, 10)
            for tt in range(4):
                for t in range(3):
                    if n == 0: E.waitvm(('W1', p))
                    if t == 0: E.waitlg(('B', p, tt))
                    a = ACC + 16*t + 4*tt
                    E(f"v_mfma_f32_16x16x32_bf16 {vr(a)}, {vr(16+12*(p%12)+4*t)}, {vr(BF+16*(p&1)+4*tt)}, {'0' if p == 0 else vr(a)}")
                    n += 1
                    if n == 1 and p < 19 and (p+1) % 4 == 0: E.waitvm(('X', (p+1)//4)); E("s_barrier")
                    if n in (2, 4, 6, 8) and p < 19: rdB(p+1, n//2-1)
                    if n+1 in slots and Q and Q[0][2] is not None: E(f"s_add_u32 m0, s40, {L_X + Q[0][2]*16384}")
                    if n in slots and Q and Q[0][0] <= p: Q.pop(0)[1]()
                    if p >= 11 and len(Q) <= NQ2 and FL and n % 2 == 1: E(FL.pop(0))
                    if p >= 11 and len(Q) <= NQ2 and FL and n in (2, 12): E(FL.pop(0))
                    if 4 <= p <= 8:
                        if n in (1, 3): E.lgop(f"ds_read2st64_b64 {vr(SM+2*(n-1))}, v14 offset0:{4*(p-4)+n-1} offset1:{4*(p-4)+n}", ('S', p))
                        if n == 10:
                            E.waitlg(('S', p))
                            E(f"v_add_f32 v{SM}, v{SM}, v{SM+2}\nv_add_f32 v{SM+1}, v{SM+1}, v{SM+3}")
                        if n == 11: E(f"v_add_f32 v{SM+4}, v{SM+4}, v{SM+6}\nv_add_f32 v{SM+5}, v{SM+5}, v{SM+7}")
                        if n == 12:
                            if p == 4: E(f"v_add_f32 v{ST}, v{SM}, v{SM+4}\nv_add_f32 v{ST+1}, v{SM+1}, v{SM+5}")
                            else: E(f"v_add3_f32 v{ST}, v{SM}, v{SM+4}, v{ST}\nv_add3_f32 v{ST+1}, v{SM+1}, v{SM+5}, v{ST+1}".replace('v_add3_f32', 'v_xadd') if 0 else
                                    f"v_add_f32 v{ST}, v{ST}, v{SM}\nv_add_f32 v{ST+1}, v{ST+1}, v{SM+1}\nv_add_f32 v{ST}, v{ST}, v{SM+4}\nv_add_f32 v{ST+1}, v{ST+1}, v{SM+5}")
                    if p == 9:
                        seq = [f"v_mul_f32 v{ST}, {f2h(1/640)}, v{ST}", f"v_mul_f32 v{ST+1}, {f2h(1/640)}, v{ST+1}",
                               f"v_fma_f32 v{ST+1}, -v{ST}, v{ST}, v{ST+1}", f"v_max_f32 v{ST+1}, 0, v{ST+1}",
                               f"v_add_f32 v{ST+1}, {f2h(1e-5)}, v{ST+1}", f"v_rsq_f32 v{ST+1}, v{ST+1}",
                               f"v_and_b32 v{ST+2}, 15, v0", f"v_lshlrev_b32 v{ST+2}, 2, v{ST+2}", f"s_lshl_b32 s23, s18, 6",
                               f"v_add_u32 v{ST+3}, s23, v{ST+2}", f"v_sub_f32 v{ST}, 0, v{ST}", None]
                        if seq[n-1]: E(seq[n-1])
                    if p == 10 and n in (1, 3, 10, 11): tt2 = (1, 3, 10, 11).index(n); E.lgop(f"ds_bpermute_b32 v{SM+2*tt2}, v{ST+2}, v{ST} offset:{64*tt2}", 'm')
                    if p == 10 and n == 12: E.lgop(f"ds_bpermute_b32 v7, v{ST+3}, v{ST+1}", 'm')
            if L == 0 and p >= NS:
                for t in range(3):
                    E(f"v_mfma_f32_16x16x32_bf16 {ar(240+4*t)}, {vr(16+12*(p%12)+4*t)}, {vr(ONES)}, {ar(240+4*t)}")
        assert not Q, len(Q)
        for x in FL: E(x)
        E.stamp('f1end')
        CS = 128
        E("s_nop 5")
        for i in range(12): E(f"v_accvgpr_read_b32 v{CS+i}, a{240+i}")
        E.waitlg()
        O = 16
        for tt in range(4):
            for t in range(3):
                a = ACC + 16*t + 4*tt
                for u in range(2):
                    E(f"v_pk_fma_f32 {vr(a+2*u,2)}, {vr(CS+4*t+2*u,2)}, {vr(SM+2*tt,2)}, {vr(a+2*u,2)} op_sel_hi:[1,0,1]")
            for t in range(3):
                a = ACC + 16*t + 4*tt
                o = O + 4*tt + 2*t if t < 2 else O + 16 + 2*tt
                for u in range(2): E(f"v_cvt_pk_bf16_f32 v{o+u}, v{a+2*u}, v{a+2*u+1}")
            for t in range(3):
                o = O + 4*tt + 2*t if t < 2 else O + 16 + 2*tt
                for u in range(2): E(f"v_pk_max_i16 v{o+u}, v{o+u}, 0")
            E.vmop(f"buffer_store_dwordx4 {vr(O+4*tt)}, v1, s[8:11], s41 offen offset:{1024*tt}", 'st')
            if tt & 1:
                o = O + 16 + 2*(tt-1)
                E(f"s_nop 0\nv_permlane32_swap_b32 v{o}, v{o+2}\nv_permlane32_swap_b32 v{o+1}, v{o+3}")
                E.vmop(f"buffer_store_dwordx4 {vr(o)}, v6, s[8:11], s42 offen offset:{1024*(tt-1)}", 'st')

    def ffn2(L):
        lb = LBASE + L*LSTR
        HF, ACC = 16, (208, 228)
        for b in range(4): E(f"v_add_u32 v{248+b}, s{48+b}, v1")
        HQ = [(b, kk) for b in range(4) for kk in range(12)]
        def hld():
            b, kk = HQ.pop(0)
            E.vmop(f"buffer_load_dwordx4 {vr(HF+48*b+4*kk)}, v{248+b}, s[8:11], s{52+kk} offen {DS}{NT(4)}", ('h', b, kk))
        RES, PART = 16, 64
        DAF = OPT['daf'] & 1
        issued = []
        hins = lambda b, kk: f"buffer_load_dwordx4 {vr(HF+48*b+4*kk)}, v{248+b}, s[8:11], s{52+kk} offen {DS}"
        chk = lambda b, kk: [f"v_or3_b32 v252, v{HF+48*b+4*kk}, v{HF+48*b+4*kk+1}, v{HF+48*b+4*kk+2}", f"v_or_b32 v252, v252, v{HF+48*b+4*kk+3}", "v_cmp_gt_i32 vcc, 0, v252"]
        if OPT['c1']: chk = lambda b, kk: [f"v_cmp_gt_i32 vcc, 0, v{HF+48*b+4*kk+3}"]
        def retry(b, kk):
            l = lab('hr'); pend = [x for x in [(bb, k2) for bb in range(4) for k2 in range(12)] if x >= (b, kk) and x not in HQ]
            if b >= 2 or (b == 1 and kk > 0): pend = [(b, kk)]
            E(f"s_cbranch_vccnz {l}\n{l}b:")
            OOL.append(f"{l}:\ns_mov_b32 s38, 0\n{l}a:\n" + (f"s_add_u32 s97, s97, {1 if b == 0 else 100}\n" if OPT['stamps'] else '') + '\n'.join(hins(*x) for x in pend) + f"\ns_add_u32 s38, s38, 1\ns_cmp_gt_u32 s38, {SPIN}\ns_cbranch_scc1 {l}b\ns_waitcnt vmcnt(0)\n"
                       + '\n'.join(chk(b, kk)) + f"\ns_cbranch_vccnz {l}a\ns_branch {l}b")
        if DAF:
            l = lab('hs')
            E(f"s_cmp_lg_u32 s27, 0\ns_cbranch_scc1 {l}\n{l}b:")
            def slow():
                E(f"{l}:"); st = OPT['stamps']; OPT['stamps'] = ''
                sync(4*L+2, None); OPT['stamps'] = st
                E(f"s_branch {l}b")
            ool(slow)
            if L == 0:
                l = lab('w2s'); E(f"s_cmp_eq_u32 s18, 3\ns_cbranch_scc1 {l}")
                assert not OPT['hw'] or (5*(12-KS) < 60 and OPT['td'] != 3)
                for kk in range(KS, 12): w2_loads(kk)
                if OPT['hw']: E.waitvm('st'); E(f"s_branch {l}x\n{l}:\ns_waitcnt vmcnt(0)\n{l}x:")
                elif OPT['td'] == 3:
                    E(f"s_branch {l}x\n{l}:"); gpoll(2); E(f"{l}x:")
                else: E(f"{l}:")
            elif OPT['hw']: E.waitvm('st')
            E.stamp('pubh')
        else:
            sync(4*L+2, 'st', post012=(lambda: [w2_loads(kk) for kk in range(KS, 12)]) if L == 0 else None, name='h')
        for i in range(OPT['hpre']): hld()
        E(f"""v_lshrrev_b32 v14, 4, v0
        v_and_b32 v15, 15, v0
        s_mul_i32 s23, s17, 5
        v_add_u32 v8, s23, v14
        v_lshrrev_b32 v9, 2, v8
        v_lshlrev_b32 v9, 12, v9
        v_and_b32 v10, 3, v8
        v_lshl_add_u32 v9, v10, 8, v9
        v_lshlrev_b32 v10, 9, v8
        s_lshl_b32 s38, s18, 10
        v_lshl_add_u32 v11, v15, 4, s38
        v_add_u32 v8, v9, v11
        s_add_u32 s23, s23, 4
        s_lshr_b32 s35, s23, 2
        s_lshl_b32 s35, s35, 12
        s_and_b32 s36, s23, 3
        s_lshl_b32 s36, s36, 8
        s_add_u32 s35, s35, s36
        v_lshl_add_u32 v9, v14, 2, v11
        v_add_u32 v9, s35, v9
        s_lshr_b32 s35, s18, 1
        s_mul_i32 s35, s35, 40960
        s_and_b32 s36, s18, 1
        s_lshl_b32 s36, s36, 8
        s_add_u32 s35, s35, s36
        v_lshl_add_u32 v11, v15, 4, s35
        v_add_u32 v10, v10, v11
        s_lshl_b32 s23, s23, 9
        v_lshl_add_u32 v11, v14, 2, v11
        v_add_u32 v11, s23, v11""")
        if L == 0 and OPT['pr'] & 2:
            E(f"""s_add_u32 s34, s24, {XF2}
            s_add_u32 s35, s34, 20480
            s_lshl_b32 s23, s16, 12
            s_lshl_b32 s38, s17, 9
            s_add_u32 s23, s23, s38
            s_lshl_b32 s38, s18, 7
            s_add_u32 s23, s23, s38
            s_add_u32 s23, s23, {S2B}
            v_and_b32 v14, 31, v0
            v_lshlrev_b32 v14, 2, v14""")
            for (a, n, sr) in (('v10', 4, 's34'), ('v10', 4, 's35'), ('v11', 1, 's34'), ('v11', 1, 's35'), ('v14', 1, 's23')):
                E.vmop(f"buffer_store_dwordx4 v[0:3], {a}, s[8:11], {sr} offen" if n == 4 else f"buffer_store_dword v0, {a}, s[8:11], {sr} offen", 'pr')
        WQ = []
        if L == 0 and OPT['lw']:
            for p in range(3): E(rot(f"s{31+p}", 's29', p, 20, 3072, 's39'))
            E(f"s_mul_i32 s37, s18, 9216\ns_add_u32 s37, s37, {L_X + 40960}")
            WQ = [(p, t) for p in range(3) for t in range(3)]
        if L == 1:
            E(f"""s_sub_u32 s23, 64, s16
            s_cmp_eq_u32 s16, 0
            s_cselect_b32 s23, 32, s23
            s_cmp_lt_u32 s18, 2
            s_cselect_b32 s23, s16, s23
            s_and_b32 s38, s18, 1
            s_lshl_b32 s38, s38, 10
            s_add_u32 s23, s23, s38
            v_and_b32 v14, 15, v0
            v_lshl_add_u32 v14, v14, 6, s23
            v_mul_u32_u24 v14, 1280, v14
            v_lshrrev_b32 v15, 4, v0
            s_mul_i32 s23, s17, 80
            s_add_u32 s38, s23, 2
            v_lshl_add_u32 v2, v15, 4, s38
            v_add_u32 v2, v2, v14
            s_sub_u32 s38, 1264, s23
            v_lshlrev_b32 v3, 4, v15
            v_sub_u32 v3, s38, v3
            v_add_u32 v3, v3, v14
            s_add_u32 s38, s23, 66
            v_lshl_add_u32 v4, v15, 2, s38
            v_add_u32 v4, v4, v14
            s_sub_u32 s38, 1214, s23
            v_lshlrev_b32 v5, 2, v15
            v_sub_u32 v5, s38, v5
            v_add_u32 v6, -2, v5
            v_cmp_eq_u32 vcc, 640, v6
            v_add_u32 v5, v5, v14
            s_nop 0
            v_cndmask_b32 v6, v6, 0, vcc
            v_add_u32 v6, v6, v14""")
            if OPT['pr'] & 4:
                for x in ("dwordx4 v[8:11], v2", "dwordx4 v[8:11], v3", "dword v8, v4", "short v8, v5", "short v8, v6"): E.vmop(f"buffer_store_{x}, s[12:15], 0 offen", 'pr')
        E.waitvm('W2')
        if DAF:
            E.waitvm(('h', 0, 0))
            for c in chk(0, 0): E(c)
            retry(0, 0)
        for b in range(4):
            A = ACC[b & 1]; P = ACC[(b+1) & 1]
            n = 0
            for kk in range(12):
                E.waitvm(('h', b, kk))
                if b == 0 and kk == 0: E.stamp('h0')
                for t in range(5):
                    E(f"v_mfma_f32_16x16x32_bf16 {vr(A+4*t)}, {ar(20*kk+4*t)}, {vr(HF+48*b+4*kk)}, {'0' if kk == 0 else vr(A+4*t)}")
                    n += 1
                    if t == 0 and not HQ and WQ and WQ[0][1] == 0: E(f"s_add_u32 m0, s37, {3072*WQ[0][0]}")
                    if t == 1 and not HQ and WQ:
                        p_, t_ = WQ.pop(0); E.vmop(f"buffer_load_dwordx4 v1, s[8:11], s{31+p_} offen offset:{1024*t_} lds", 'lw')
                    if t == 1 and HQ: hld()
                    if DAF and (b, kk) != (3, 11):
                        nb, nk = (b, kk+1) if kk < 11 else (b+1, 0)
                        if OPT['c1']:
                            if t == 2 + OPT['cw']: E.waitvm(('h', nb, nk)); E(chk(nb, nk)[0])
                        else:
                            if t == 0: E.waitvm(('h', nb, nk))
                            if t == 2: E(chk(nb, nk)[0]); E(chk(nb, nk)[1])
                            if t == 3: E(chk(nb, nk)[2])
                        if t == 4: retry(nb, nk)
                    if b >= 1 and n == 9:
                        E(f"s_add_u32 s23, s18, {b}\ns_and_b32 s23, s23, 3\ns_mul_i32 s23, s23, {3*5120}\ns_add_u32 s23, s23, {L_RED + (b-1)*5120}\nv_add_u32 v14, s23, v1")
                    if b >= 1 and 11 <= n <= 19 and n % 2 == 1:
                        t2 = (n-11)//2
                        E.lgop(f"ds_write_b128 v14, {vr(P+4*t2)} offset:{1024*t2}", 'red')
                    if b == 1 and n == 25:
                        E(f"s_add_u32 s34, s24, {lb+XTMID}\ns_add_u32 s35, s34, 40960")
                        E.vmop(f"buffer_load_dwordx4 {vr(RES)}, v8, s[8:11], s34 offen {DS}", 'res')
                        E.vmop(f"buffer_load_dwordx4 {vr(RES+4)}, v8, s[8:11], s35 offen {DS}", 'res')
                        E.vmop(f"buffer_load_dword v{RES+8}, v9, s[8:11], s34 offen {DS}", 'res')
                        E.vmop(f"buffer_load_dword v{RES+9}, v9, s[8:11], s35 offen {DS}", 'res')
                    if b == 3 and n == 30:
                        E.waitlg(); E(f"s_barrier\ns_mul_i32 s23, s18, {3*5120}\ns_add_u32 s23, s23, {L_RED}\nv_add_u32 v14, s23, v1")
                    if b == 3 and 32 <= n < 47:
                        i = n - 32
                        E.lgop(f"ds_read_b128 {vr(PART+4*i)}, v14 offset:{1024*i}", 'part')
        assert not WQ
        E.stamp('f2end')
        if OPT['stamps']: E.note('cnt', 's97'); E("s_mov_b32 s97, 0")
        A = ACC[1]
        X = 32
        E.waitvm('res')
        pr = lambda u: (8*(u >> 2) + (u & 3), 8*(u >> 2) + (u & 3) + 4) if u < 8 else (2*u, 2*u+1)
        for u in range(10): E(f"v_lshlrev_b32 v{X+pr(u)[0]}, 16, v{RES+u}\nv_and_b32 v{X+pr(u)[1]}, 0xffff0000, v{RES+u}")
        E.waitlg()
        for u in range(10):
            E(f"v_pk_add_f32 {vr(PART+2*u,2)}, {vr(PART+2*u,2)}, {vr(PART+20+2*u,2)}\nv_pk_add_f32 {vr(A+2*u,2)}, {vr(A+2*u,2)}, {vr(PART+40+2*u,2)}")
        for u in range(10):
            E(f"v_pk_add_f32 {vr(A+2*u,2)}, {vr(A+2*u,2)}, {vr(PART+2*u,2)}")
        E("v_mov_b32 v14, v7")
        for u in range(10):
            E(f"v_pk_fma_f32 {vr(X+2*u,2)}, {vr(A+2*u,2)}, v[14:15], {vr(X+2*u,2)} op_sel_hi:[1,0,1]")
        O = 64
        if L == 0:
            nb = LBASE + LSTR
            for u in range(10): E(f"v_cvt_pk_bf16_f32 v{O+u}, v{X+pr(u)[0]}, v{X+pr(u)[1]}")
            EE, OO = 80, 92
            for u in range(4):
                E(f"v_pk_add_f32 {vr(EE+2*u,2)}, {vr(X+2*u,2)}, {vr(X+8+2*u,2)}\nv_pk_add_f32 {vr(OO+2*u,2)}, {vr(X+2*u,2)}, {vr(X+8+2*u,2)} neg_lo:[0,1] neg_hi:[0,1]")
            E(f"""v_pk_add_f32 {vr(EE+8,2)}, {vr(X+16,2)}, {vr(X+18,2)}
            v_pk_add_f32 {vr(OO+8,2)}, {vr(X+16,2)}, {vr(X+18,2)} neg_lo:[0,1] neg_hi:[0,1]
            s_cmp_eq_u32 s17, 7
            s_cselect_b32 s37, 0xffff0000, 0
            s_mov_b32 s36, 0
            s_add_u32 s34, s24, {XF2}
            s_add_u32 s35, s34, 20480
            v_cndmask_b32 v{EE+9}, v{EE+9}, v{X+17}, s[36:37]
            v_cndmask_b32 v{OO+9}, v{OO+9}, v{X+19}, s[36:37]""")
            for u in range(5):
                a, b = (u, u+4) if u < 4 else (8, 9)
                E(f"v_cvt_pk_bf16_f32 v{EE+u}, v{EE+a}, v{EE+b}\nv_cvt_pk_bf16_f32 v{OO+u}, v{OO+a}, v{OO+b}")
            E.vmop(f"buffer_store_dwordx4 {vr(EE)}, v10, s[8:11], s34 offen", 'st')
            E.vmop(f"buffer_store_dwordx4 {vr(OO)}, v10, s[8:11], s35 offen", 'st')
            E.vmop(f"buffer_store_dword v{EE+4}, v11, s[8:11], s34 offen", 'st')
            E.vmop(f"buffer_store_dword v{OO+4}, v11, s[8:11], s35 offen", 'st')
            E(f"v_pk_mul_f32 v[106:107], {vr(X,2)}, {vr(X,2)}\nv_pk_add_f32 v[104:105], {vr(X,2)}, {vr(X+2,2)}\nv_pk_fma_f32 v[106:107], {vr(X+2,2)}, {vr(X+2,2)}, v[106:107]")
            for u in range(2, 10): E(f"v_pk_add_f32 v[104:105], v[104:105], {vr(X+2*u,2)}\nv_pk_fma_f32 v[106:107], {vr(X+2*u,2)}, {vr(X+2*u,2)}, v[106:107]")
            E(f"""v_add_f32 v104, v104, v105
            v_add_f32 v105, v106, v107
            s_lshl_b32 s23, s16, 12
            s_lshl_b32 s38, s17, 9
            s_add_u32 s23, s23, s38
            v_permlane32_swap_b32 v104, v105
            s_lshl_b32 s38, s18, 7
            s_add_u32 s23, s23, s38
            v_add_f32 v104, v104, v105
            s_add_u32 s23, s23, {S2B}
            v_mov_b32 v105, v104
            v_and_b32 v106, 15, v0
            v_lshrrev_b32 v107, 5, v0
            v_permlane16_swap_b32 v104, v105
            v_lshlrev_b32 v106, 3, v106
            v_lshl_add_u32 v106, v107, 2, v106
            v_add_f32 v104, v104, v105""")
            E.vmop("buffer_store_dword v104, v106, s[8:11], s23 offen", 'st')
            E(f"s_add_u32 s34, s24, {nb+XTIN}\ns_add_u32 s35, s34, 40960")
            E.vmop(f"buffer_store_dwordx4 {vr(O)}, v8, s[8:11], s34 offen", 'st')
            E.vmop(f"buffer_store_dwordx4 {vr(O+4)}, v8, s[8:11], s35 offen", 'st')
            E.vmop(f"buffer_store_dword v{O+8}, v9, s[8:11], s34 offen", 'st')
            E.vmop(f"buffer_store_dword v{O+9}, v9, s[8:11], s35 offen", 'st')
        else:
            for u in range(4): E(f"v_cvt_pk_bf16_f32 v{O+u}, v{X+u}, v{X+4+u}\nv_cvt_pk_bf16_f32 v{O+4+u}, v{X+15-u}, v{X+11-u}")
            OS = 'sc1' if OPT['outsc'] else ''
            E(f"""buffer_store_dwordx4 {vr(O)}, v2, s[12:15], 0 offen {OS}
            v_cvt_pk_bf16_f32 v{O+8}, v{X+16}, v{X+17}
            v_cvt_pk_bf16_f32 v{O+9}, v{X+18}, v{X+19}
            buffer_store_dwordx4 {vr(O+4)}, v3, s[12:15], 0 offen {OS}
            buffer_store_dword v{O+8}, v4, s[12:15], 0 offen {OS}
            buffer_store_short v{O+9}, v5, s[12:15], 0 offen {OS}
            buffer_store_short_d16_hi v{O+9}, v6, s[12:15], 0 offen {OS}""")

    def p4():
        LW = OPT['lw']
        def one(i):
            p, t = 3 + i//3, i % 3
            if t == 0: E(rot('s47', 's29', p, 20, 3072, 's39') + f"\ns_mul_i32 s38, s18, 15360\ns_add_u32 m0, s38, {L_RED + 3072*(p-3)}\ns_nop 0")
            E(f"buffer_load_dwordx4 v1, s[8:11], s47 offen offset:{1024*t} lds")
        def g():
            l = lab('nog')
            E(f"s_cmp_ge_u32 s18, s22\ns_cbranch_scc1 {l}")
            GS = OPT['gs']
            gen_G(E, 's21', step=lambda k: one(k-max(GS, 2)) if k-max(GS, 2) < 3*LW else None, part=(GS, 20) if GS else None)
            if LW:
                E(f"s_branch {l}x\n{l}:")
                for i in range(3*LW): one(i)
                E(f"{l}x:")
            else: E(f"{l}:")
            E.stamp('gen')
        if OPT['xp']: E(f"s_mul_i32 s34, s19, 40960\ns_add_u32 s34, s34, s24\ns_lshl_b32 s36, s18, 10\ns_add_u32 s34, s34, s36\ns_add_u32 s34, s34, {XF2}\ns_add_u32 s35, s34, 20480")
        def g0():
            l = lab('g0'); E(f"s_cmp_ge_u32 s18, s22\ns_cbranch_scc1 {l}"); gen_G(E, 's21', part=(0, OPT['gs'])); E(f"{l}:")
        assert OPT['gs'] <= 5
        sync(3, None, pre012=g0 if OPT['gs'] else None, post012=g, name='xf', pre3=(lambda: [one(i) for i in range(3*OPT['l3'])]))
        if OPT['xp']:
            E(f"s_add_u32 m0, s36, {L_X}\ns_nop 0")
            for c in range(5):
                E.vmop(f"buffer_load_dwordx4 v1, s[8:11], s34 offen {DS}{NT(4)} lds", ('XF', c))
                E(f"s_add_u32 m0, s36, {L_X + 20480 + 4096*c}\ns_add_u32 s34, s34, 4096")
                E.vmop(f"buffer_load_dwordx4 v1, s[8:11], s35 offen {DS}{NT(4)} lds", ('XF', c))
                if c < 4: E(f"s_add_u32 m0, s36, {L_X + 4096*(c+1)}\ns_add_u32 s35, s35, 4096")
            if OPT['daf'] & 1 and OPT['hpl'] == 2: hpoison(1)
            E.stamp('yi')
            sv = list(E.vm)
            l = lab('nou'); l3 = lab('xw3'); lx = lab('xend')
            E(f"""s_cmp_ge_u32 s18, s22
            s_cbranch_scc1 {l}
            v_mov_b32 v10, v13
            v_lshrrev_b32 v9, 5, v0
            v_lshlrev_b32 v9, 4, v9
            v_add_u32 v9, {L_R}, v9
            s_mul_i32 s32, s21, 8192
            s_lshl_b32 s33, s20, 7
            s_add_u32 s32, s32, s33
            s_add_u32 s32, s32, {LBASE + TSTR + TT}""")
            def chunk(c):
                E.waitvm(('XF', c)); E("s_barrier")
                if c == 0: E.stamp('xf')
            dft_unit(E, L_X, 512, L_M1, 'v9', 's32', 'sc1', chunk=chunk, mid=lambda: E.stamp('ym'))
            E(f"v_mov_b32 v13, v10\ns_branch {lx}\n{l}:")
            sv2 = list(E.vm); E.vm = sv
            E(f"""s_cmp_lg_u32 s18, 3
            s_cbranch_scc1 {l3}
            v_and_b32 v14, 31, v0
            v_lshlrev_b32 v14, 3, v14
            s_lshl_b32 s23, s16, 12
            s_lshl_b32 s38, s19, 8
            s_add_u32 s23, s23, s38
            s_add_u32 s23, s23, {S2B}""")
            for m in range(8): E.vmop(f"buffer_load_dwordx2 {vr(224+2*m,2)}, v14, s[8:11], s23 offen offset:{512*m} {DS}", 'S')
            for c in range(4): E.waitvm(('XF', c)); E("s_barrier")
            E.waitvm('S')
            for m in range(1, 8): E(f"v_pk_add_f32 v[224:225], v[224:225], {vr(224+2*m,2)}")
            E(f"""v_mul_f32 v224, {f2h(1/640)}, v224
            v_mul_f32 v225, {f2h(1/640)}, v225
            v_fma_f32 v225, -v224, v224, v225
            v_max_f32 v225, 0, v225
            v_add_f32 v225, {f2h(1e-5)}, v225
            v_rsq_f32 v225, v225
            v_lshlrev_b32 v14, 2, v0
            v_add_u32 v14, {L_R}, v14
            ds_write_b32 v14, v225
            s_waitcnt lgkmcnt(0)
            s_barrier
            s_branch {lx}
            {l3}:""")
            E.vm = list(sv)
            for c in range(5): E.waitvm(('XF', c)); E("s_barrier")
            E(f"{lx}:"); E.vm = sv2
            return
        E(f"""s_mul_i32 s23, s19, 40960
        s_add_u32 s23, s23, s24
        s_mul_i32 s38, s18, 10240
        s_add_u32 s23, s23, s38
        s_add_u32 s23, s23, {XF2}""")
        for i in range(10):
            if i % 4 == 0: E(f"s_add_u32 m0, s38, {L_X + 1024*i}\ns_add_u32 s34, s23, {1024*i}")
            E.vmop(f"buffer_load_dwordx4 v1, s[8:11], s34 offen offset:{1024*(i%4)} {DS} lds", 'XF')
        E(f"""v_and_b32 v14, 31, v0
        v_lshlrev_b32 v14, 3, v14
        s_lshl_b32 s23, s16, 12
        s_lshl_b32 s38, s19, 8
        s_add_u32 s23, s23, s38
        s_add_u32 s23, s23, {S2B}""")
        for m in range(8): E.vmop(f"buffer_load_dwordx2 {vr(224+2*m,2)}, v14, s[8:11], s23 offen offset:{512*m} {DS}", 'S')
        E.stamp('yi')
        if OPT['daf'] & 1: hpoison(1)
        E.stamp('yp')
        E.waitvm('XF'); E.stamp('yx')
        E.waitvm('S'); E.stamp('ys')
        for m in range(1, 8): E(f"v_pk_add_f32 v[224:225], v[224:225], {vr(224+2*m,2)}")
        E(f"""v_mul_f32 v224, {f2h(1/640)}, v224
        v_mul_f32 v225, {f2h(1/640)}, v225
        v_fma_f32 v225, -v224, v224, v225
        v_max_f32 v225, 0, v225
        v_add_f32 v225, {f2h(1e-5)}, v225
        v_rsq_f32 v225, v225
        s_lshl_b32 s23, s18, 8
        s_add_u32 s23, s23, {L_R}
        v_lshl_add_u32 v14, v0, 2, s23
        ds_write_b32 v14, v225
        v_lshrrev_b32 v9, 5, v0
        v_lshl_add_u32 v9, v9, 4, s23
        s_waitcnt lgkmcnt(0)
        s_barrier""")
        E.stamp('xf')
        l = lab('nou')
        E(f"""s_cmp_ge_u32 s18, s22
        s_cbranch_scc1 {l}
        v_mov_b32 v10, v13
        s_mul_i32 s32, s21, 8192
        s_lshl_b32 s33, s20, 7
        s_add_u32 s32, s32, s33
        s_add_u32 s32, s32, {LBASE + TSTR + TT}""")
        dft_unit(E, L_X, 512, L_M1, 'v9', 's32', 'sc1')
        E(f"v_mov_b32 v13, v10\n{l}:")

    NA, NB = OPT['na'], OPT['nb']
    E(f"""s_cmp_eq_u32 s18, 3
    s_cbranch_scc1 k2_w3a
    s_cmp_ge_u32 s18, s22
    s_cbranch_scc1 k2_nou0
    s_mul_i32 s32, s21, 8192
    s_lshl_b32 s33, s20, 7
    s_add_u32 s32, s32, s33
    s_add_u32 s32, s32, {LBASE + TT}""")
    E("s_cmp_lg_u32 s18, 2\ns_cbranch_scc1 k2_nf2"); gflag(1, 16); E("k2_nf2:")
    if OPT['td']: assert OPT['daf'] & 2 and OPT['ord'] == 0 and not OPT['daf'] & 4
    if OPT['td'] == 1: tpoison(E, 1)
    dft_unit(E, L_X, XFS, L_M1, 'v9', 's32', 'sc1', mid=(lambda: E("s_waitcnt vmcnt(0)")) if OPT['daf'] & 4 else None)
    E("s_branch k2_nou1\nk2_nou0:")
    w2finish(); E("s_waitcnt vmcnt(0)"); gflag(1, 16)
    E("k2_nou1:"); E.stamp('dft')
    if not OPT['daf'] & 4: E.waitvm()
    gflag(1); E.stamp('gpub0')
    if OPT['ord'] == 0:
        if OPT['daf'] & 2 and OPT['td'] in (0, 3): tpoison(E, 1)
        setup()
        if OPT['daf'] & 1: hpoison(0)
        res_loads(0)
        if not OPT['m2l']: gen_M2()
        E("s_barrier"); E.stamp('w1ok')
        w1_loads(0, NA)
        if OPT['m2l']: gen_M2()
    else:
        setup()
        if OPT['ord'] == 2: res_loads(0)
        E("s_barrier"); E.stamp('w1ok')
        w1_loads(0, NA)
        if OPT['ord'] == 1: res_loads(0)
        gen_M2()
        if OPT['daf'] & 1: hpoison(0)
        if OPT['daf'] & 2: tpoison(E, 1)
    sv = list(E.vm)
    E("s_branch k2_B2\nk2_w3a:")
    w2finish(); E.stamp('w2st')
    if OPT['td'] == 2:
        E(f"""s_sub_u32 s40, s21, 3
        s_mul_i32 s40, s40, 8192
        s_lshl_b32 s41, s20, 7
        s_add_u32 s40, s40, s41
        s_add_u32 s40, s40, {LBASE + TSTR + TT}
        v_lshrrev_b32 v14, 3, v0
        v_mul_u32_u24 v14, 81920, v14
        v_and_b32 v15, 7, v0
        v_lshl_add_u32 v14, v15, 4, v14""")
        for u in range(4): E(f"v_mov_b32 v{248+u}, -1")
        for u in range(3):
            if u == 2: E("s_cmp_lt_u32 s22, 3\ns_cbranch_scc1 k2_tp3")
            for i in range(4): E(f"s_add_u32 s41, s40, {u*8192 + i*8*81920}\nbuffer_store_dwordx4 v[248:251], v14, s[8:11], s41 offen sc1")
        E("k2_tp3:")
    setup()
    E(f"v_mov_b32 v14, s45\nv_mov_b32 v15, s26\ns_mov_b64 exec, 1\nbuffer_store_dword v15, v14, s[8:11], 0 offen offset:{FLAGC+IDO-12} sc1\ns_mov_b64 exec, -1")
    gen_M2()
    E("s_waitcnt vmcnt(0)"); gflag(1, 16)
    if OPT['td'] == 2: gflag(1)
    E.stamp('w2pub')
    if OPT['daf'] & 1: hpoison(0)
    wpoll(1, 0); E.stamp('pkpoll')
    N3 = OPT['n3']
    w1_loads(0, N3)
    if OPT['wp'] == 1: wpoll(1, 1); E.stamp('pk2')
    E("s_barrier")
    w1_loads(N3, OPT['n3b'])
    if not OPT['wp']: wpoll(1, 1); E.stamp('pk2')
    W2A = list(range(NW2)) + list(range(KS, 12))
    for kk in W2A[:OPT['w2e']]: w2_loads(kk)
    gpoll(1)
    E("k2_B2:\ns_waitcnt lgkmcnt(0)\ns_barrier"); E.lg = []; E.stamp('gpoll0')
    E.vm = sv
    E.pre = 'k2_a_'
    E("s_cmp_eq_u32 s18, 3\ns_cbranch_scc1 k2_w3b")
    p2a(0)
    E.stamp('p2a')
    E.waitvm(); idcheck(); publish(1); E.stamp('pub1')
    if OPT['td'] == 3: gflag(2)
    w1_loads(NA, NS)
    for kk in range(NW2): w2_loads(kk)
    ffn1_pre(0)
    sv = list(E.vm)
    E("s_branch k2_sb1\nk2_w3b:")
    idload(); E.waitvm(); idcheck(); publish(1)
    if OPT['wp'] == 2: assert NW2 == 0 and OPT['w2e'] == 0; wpoll(1, 1); E.stamp('pk2')
    w1_loads(OPT['n3b'], NS)
    for kk in W2A[OPT['w2e']:]: w2_loads(kk)
    ffn1_pre(0)
    poll(1)
    E("k2_sb1:\ns_barrier"); acquire(); E.stamp('poll1')
    E.vm = sv
    ffn1(0)
    ffn2(0)
    p4()
    E("s_cmp_eq_u32 s18, 3\ns_cbranch_scc1 k2_gpoll")
    if not OPT['daf'] & 2: E.waitvm()
    if not OPT['td']: gflag(2)
    E.stamp('gpub')
    res_loads(1)
    HP = OPT['xp'] and OPT['daf'] & 1
    if HP and OPT['hpl'] == 0: hpoison(1)
    def w1_copy(n):
        E(f"s_mul_i32 s23, s18, 9216\ns_add_u32 s23, s23, {L_X + 40960}\nv_add_u32 v14, s23, v1\ns_mul_i32 s23, s18, 15360\ns_add_u32 s23, s23, {L_RED}\nv_add_u32 v15, s23, v1")
        for p in range(n):
            for t in range(3): E(f"ds_read_b128 {vr(16+12*p+4*t)}, {'v14' if p < 3 else 'v15'} offset:{3072*(p if p < 3 else p-3)+1024*t}")
    P0 = 3 + OPT['lw'] if OPT['lw'] else 0
    if P0: w1_copy(P0)
    w1_loads(P0, max(NB, P0)); NB = max(NB, P0)
    sv = list(E.vm)
    E("s_branch k2_gdone\nk2_gpoll:")
    if HP and OPT['hpl'] == 0: hpoison(1)
    P3 = 3 + OPT['l3'] if P0 else 0
    if P0: w1_copy(P3)
    OPT['n3l'] = max(OPT['n3l'], P3)
    w1_loads(P3, OPT['n3l'])
    if OPT['td']: E("k2_gdone:\ns_waitcnt lgkmcnt(0)")
    else:
        gpoll(2)
        E("k2_gdone:\ns_waitcnt lgkmcnt(0)\ns_barrier")
    E.vm = sv
    E.stamp('gpoll')
    E.pre = 'k2_b_'
    if OPT['n3l'] < NS:
        E("s_cmp_lg_u32 s18, 3\ns_cbranch_scc1 k2_n3l"); w1_loads(OPT['n3l'], NS); E("k2_n3l:"); E.vm = list(sv)
    p2a(1)
    if HP and OPT['hpl'] == 1: hpoison(1)
    E.stamp('p2a')
    ffn1_pre(1)
    sync(5, None, post012=lambda: w1_loads(NB, NS), name='1')
    ffn1(1)
    ffn2(1)
    if OPT['stamps']: E("s_waitcnt vmcnt(0)"); E.stamp('end')
    E.dump_stamps('s18'); E.dump_dbg()
    E("k2_done:\ns_endpgm")
    for o in OOL: E(o)
    E("k2_end:")
    return head(KN) + E.text()

src = f"""; FNet (folded hidden DFT + 2-stage sequence DFT on MFMA) + ReLU FFN, two layers, one persistent kernel.  Generated by hand-written generator scripts.
; @launch grid=(256,1,1) block=(256,1,1) lds={LDS2}
.amdgcn_target "amdgcn-amd-amdhsa--gfx950"
.text
""" + kern() + '.section .rodata,"a"\n.p2align 6\n' + desc(KN, 512, 256)
print(src + '\n'.join(NAMES))
```
